```python
import torch

def _softmax(x, axis=-1):
    return torch.softmax(x, dim=axis)

def _gelu(x):
    return torch.nn.functional.gelu(x, approximate='tanh')

def _silu(x):
    return torch.nn.functional.silu(x)

def _sigmoid(x):
    return torch.sigmoid(x)

def _layernorm(x, axis=-1, eps=1e-05):
    m = x.mean(dim=axis, keepdim=True)
    v = x.var(dim=axis, keepdim=True, unbiased=False)
    return (x - m) / torch.sqrt(v + eps)

def _scatter_add(tgt, idx, src, axis=0):
    return tgt.clone().index_add_(axis, idx, src)

def _segment_sum(src, seg, n):
    out = torch.zeros((n,) + src.shape[1:], dtype=src.dtype)
    return out.index_add_(0, seg, src)

def _pad(x, pw):
    flat = tuple((v for pair in reversed(pw) for v in pair))
    return torch.nn.functional.pad(x, flat)
kernel_name = 'standalone__video_timesformer__vision'

def setup_inputs():

    _w = lambda a: (lambda t: t.to(torch.bfloat16) if t.is_floating_point() else t)(torch.as_tensor(a))
    T = 7
    p = 14
    HW = 384 // p * p
    N = (HW // p) ** 2
    C = 384
    return {'x': _w((lambda *s: torch.randn(*s, dtype=torch.bfloat16) * 0.1)(1, T, N, C)), 'wqkv_t': _w((lambda *s: torch.randn(*s, dtype=torch.bfloat16) * 0.1)(C, 3 * C)), 'wo_t': _w((lambda *s: torch.randn(*s, dtype=torch.bfloat16) * 0.1)(C, C)), 'wqkv_s': _w((lambda *s: torch.randn(*s, dtype=torch.bfloat16) * 0.1)(C, 3 * C)), 'wo_s': _w((lambda *s: torch.randn(*s, dtype=torch.bfloat16) * 0.1)(C, C))}

def reference(x, wqkv_t, wo_t, wqkv_s, wo_s):
    B, T, N, C = x.shape
    scale = C ** (-0.5)
    xt = (lambda x, *d: x.permute(*d))(x, 0, 2, 1, 3).reshape(B * N, T, C)
    h = _layernorm(xt, axis=-1)
    qkv = h @ wqkv_t
    q, k, v = (qkv[..., :C].clone(), qkv[..., C:2 * C].clone(), qkv[..., 2 * C:].clone())
    a = _softmax(torch.einsum('btc,bsc->bts', q, k) * scale, axis=-1)
    xt = xt + torch.einsum('bts,bsc->btc', a, v) @ wo_t
    x1 = (lambda x, *d: x.permute(*d))(xt.reshape(B, N, T, C), 0, 2, 1, 3)
    xs = x1.reshape(B * T, N, C)
    h = _layernorm(xs, axis=-1)
    qkv = h @ wqkv_s
    q, k, v = (qkv[..., :C].clone(), qkv[..., C:2 * C].clone(), qkv[..., 2 * C:].clone())
    a = _softmax(torch.einsum('bnc,bmc->bnm', q, k) * scale, axis=-1)
    xs = xs + torch.einsum('bnm,bmc->bnc', a, v) @ wo_s
    return xs.reshape(B, T, N, C)
```

```python
import sys

T, N, C = 7, 729, 384
NP = 768
M1 = N * T
X_BYTES = T * N * C * 2
WQKV_BYTES = C * 3 * C * 2
WO_BYTES = C * C * 2
MiB = 1 << 20
WS_QKVT = 0
QKVT_BYTES = 5120 * 2304
WS_X1 = 12 * MiB
WS_H2 = 17 * MiB
WS_QS = 22 * MiB
WS_KS = 27 * MiB
WS_VT = 32 * MiB
WS_WOFT = 37 * MiB
WS_WOFS = 38 * MiB
PAD_BYTES = T * NP * C * 2
BIG = 0x7f000000
SCALE = C ** -0.5
import struct
def f2u(f): return struct.unpack('<I', struct.pack('<f', f))[0]
LOG2E = 1.4426950408889634

class K:
    def __init__(self):
        self.L = []
        self.vm = []
        self.lg = []
    def __call__(self, s):
        self.L.append("    " + s)
    def label(self, l):
        self.L.append(l + ":")
    def c(self, s):
        self.L.append("    ; " + s)
    def vmem(self, s, tag=None):
        self(s); self.vm.append(tag)
    def vmwait(self, tag):
        idx = max(i for i, t in enumerate(self.vm) if t == tag)
        n = len(self.vm) - 1 - idx
        self(f"s_waitcnt vmcnt({min(n,63)})")
    def vmwait_all(self):
        self("s_waitcnt vmcnt(0)")
    def ds(self, s, tag=None):
        self(s); self.lg.append(tag)
    def lgwait(self, tag):
        idx = max(i for i, t in enumerate(self.lg) if t == tag)
        n = len(self.lg) - 1 - idx
        self(f"s_waitcnt lgkmcnt({min(n,15)})")
    def lgwait_all(self):
        self("s_waitcnt lgkmcnt(0)")
    def srd(self, d, lo, off, size):
        if off:
            self(f"s_add_u32 s{d}, s{lo}, {off}")
            self(f"s_addc_u32 s{d+1}, s{lo+1}, 0")
        else:
            self(f"s_mov_b32 s{d}, s{lo}")
            self(f"s_mov_b32 s{d+1}, s{lo+1}")
        self(f"s_mov_b32 s{d+2}, {size}")
        self(f"s_mov_b32 s{d+3}, 0x00020000")
    def text(self):
        return "\n".join(self.L) + "\n"

def vr(b, n=4): return f"v[{b}:{b+n-1}]"
def ar(b, n=4): return f"a[{b}:{b+n-1}]"

def prologue(k, name, ngrid):
    k.label(name)
    k(f"s_cmp_ge_u32 s2, {ngrid}")
    k(f"s_cbranch_scc1 {name}_end")
    k("s_load_dwordx16 s[16:31], s[0:1], 0")
    k("v_and_b32 v1, 63, v0")
    k("v_lshrrev_b32 v4, 6, v0")
    k("v_and_b32 v2, 31, v1")
    k("v_readfirstlane_b32 s3, v4")
    k("v_lshrrev_b32 v3, 5, v1")
    k("s_waitcnt lgkmcnt(0)")

def bf16r(k, dst, src):
    k(f"v_cvt_pk_bf16_f32 v{dst}, v{src}, v{src}")
    k(f"v_lshlrev_b32 v{dst}, 16, v{dst}")

def ln_stats(k, s1, s2, m, rinv, t):
    k(f"v_mul_f32 v{s1}, {hex(f2u(1.0/C))}, v{s1}")
    k(f"v_mul_f32 v{s2}, {hex(f2u(1.0/C))}, v{s2}")
    k(f"v_fma_f32 v{s2}, -v{s1}, v{s1}, v{s2}")
    k(f"v_max_f32 v{s2}, 0, v{s2}")
    bf16r(k, m, s1)
    bf16r(k, t, s2)
    k(f"v_add_f32 v{t}, {hex(f2u(1e-5))}, v{t}")
    bf16r(k, t, t)
    k(f"v_sqrt_f32 v{t}, v{t}")
    k("s_nop 0")
    bf16r(k, t, t)
    k(f"v_rcp_f32 v{rinv}, v{t}")
    k("s_nop 0")

def xhalf_add(k, a, tmp):
    k(f"v_mov_b32 v{tmp}, v{a}")
    k("s_nop 1")
    k(f"v_permlane32_swap_b32 v{a}, v{tmp}")
    k("s_nop 1")
    k(f"v_add_f32 v{a}, v{a}, v{tmp}")

def xhalf_max(k, a, tmp):
    k(f"v_mov_b32 v{tmp}, v{a}")
    k("s_nop 1")
    k(f"v_permlane32_swap_b32 v{a}, v{tmp}")
    k("s_nop 1")
    k(f"v_max_f32 v{a}, v{a}, v{tmp}")

AF = 16
ACC = 112
BB = 208

def gemm_w_dma_setup(k):
    for b in range(3):
        k(f"v_add_u32 v4, {64*b}, v1")
        k("v_mul_u32_u24 v5, 5462, v4")
        k("v_lshrrev_b32 v5, 16, v5")
        k("v_mul_u32_u24 v6, 12, v5")
        k("v_sub_u32 v6, v4, v6")
        k("v_mul_u32_u24 v5, 2304, v5")
        k(f"v_lshl_add_u32 v{8+b}, v6, 4, v5")
    k("s_mul_i32 s8, s3, 73728")
    k("s_mul_i32 s9, s5, 384")
    k("s_add_u32 s8, s8, s9")
    k("s_mul_i32 s9, s3, 6144")

def gemm_w_dma(k, wsrd):
    for c in range(3):
        for da in range(2):
            for sub in range(2):
                for b in range(3):
                    a = 8 * c + da
                    k(f"s_add_u32 s10, s8, {a*36864 + sub*192}")
                    k(f"s_add_u32 m0, s9, {a*3072 + sub*73728 + b*1024}")
                    k("s_nop 0")
                    k.vmem(f"buffer_load_dwordx4 v{8+b}, s[{wsrd}:{wsrd+3}], s10 offen lds", tag=f"w{c}")

def gemm_tr_setup(k):
    k("v_and_b32 v4, 15, v1")
    k("v_lshrrev_b32 v5, 2, v4")
    k("v_and_b32 v4, 3, v4")
    k("v_lshl_add_u32 v5, v3, 3, v5")
    k("v_mul_u32_u24 v5, 192, v5")
    k("v_lshl_add_u32 v5, v4, 3, v5")
    k("v_bfe_u32 v4, v1, 4, 1")
    k("v_lshl_add_u32 v12, v4, 5, v5")
    k(f"v_add_u32 v13, {12*3072}, v12")
    k(f"v_add_u32 v14, {73728}, v12")
    k(f"v_add_u32 v15, {73728+12*3072}, v12")

def gemm_breads(k, s):
    buf = BB + (s & 1) * 24
    for ct in range(6):
        sub = ct // 3
        base = 12 + sub * 2 + (s // 12)
        for q in range(2):
            off = (s % 12) * 3072 + q * 768 + (ct % 3) * 64
            k.ds(f"ds_read_b64_tr_b16 v[{buf+ct*4+q*2}:{buf+ct*4+q*2+1}], v{base} offset:{off}", tag=f"b{s}")

def gemm_main(k, transposed):
    def mfmas(s):
        buf = BB + (s & 1) * 24
        for ct in range(6):
            a, b = vr(buf + ct * 4), vr(AF + s * 4)
            if not transposed: a, b = b, a
            c = vr(ACC + ct * 16, 16) if s else "0"
            k(f"v_mfma_f32_32x32x16_bf16 {vr(ACC+ct*16,16)}, {a}, {b}, {c}")
    for c in range(3):
        k.vmwait(f"w{c}")
        k("s_barrier")
        gemm_breads(k, 8 * c)
        for s in range(8 * c, 8 * c + 8):
            if s + 1 < 8 * c + 8:
                gemm_breads(k, s + 1)
            k.lgwait(f"b{s}")
            mfmas(s)
    k("s_nop 15")

def gen_KA():
    k = K()
    name = "ka_kernel"
    prologue(k, name, 256)
    k("s_cmp_ge_u32 s2, 240")
    k(f"s_cbranch_scc1 {name}_prep")
    k("s_mul_hi_u32 s4, s2, 0x2AAAAAAB")
    k("s_mul_i32 s5, s4, 6")
    k("s_sub_u32 s5, s2, s5")
    k.srd(32, 16, 0, X_BYTES)
    k.srd(36, 18, 0, WQKV_BYTES)
    k.srd(40, 30, WS_QKVT, QKVT_BYTES)
    k("s_lshl_b32 s6, s4, 7")
    k("s_lshl_b32 s7, s3, 5")
    k("s_add_u32 s6, s6, s7")
    k("v_add_u32 v11, s6, v2")
    k("v_mul_u32_u24 v5, 9363, v11")
    k("v_lshrrev_b32 v5, 16, v5")
    k("v_mul_u32_u24 v6, 7, v5")
    k("v_sub_u32 v6, v11, v6")
    k("v_mul_u32_u24 v6, 729, v6")
    k("v_add_u32 v6, v6, v5")
    k("v_mul_u32_u24 v6, 768, v6")
    k("v_lshl_add_u32 v6, v3, 4, v6")
    k(f"v_cmp_gt_u32 vcc, {M1}, v11")
    k(f"v_mov_b32 v7, {hex(BIG)}")
    k("s_nop 1")
    k("v_cndmask_b32 v7, v7, v6, vcc")
    for s in range(24):
        k.vmem(f"buffer_load_dwordx4 {vr(AF+4*s)}, v7, s[32:35], 0 offen offset:{32*s}", tag="x")
    gemm_w_dma_setup(k)
    gemm_w_dma(k, 36)
    gemm_tr_setup(k)
    k("s_mov_b32 s10, 0x3f803f80")
    t = ACC
    for i in range(8):
        k(f"v_mov_b32 v{t+i}, 0")
    k.vmwait("x")
    for i in range(96):
        k(f"v_dot2_f32_bf16 v{t+(i&3)}, v{AF+i}, s10, v{t+(i&3)}")
        k(f"v_dot2_f32_bf16 v{t+4+(i&3)}, v{AF+i}, v{AF+i}, v{t+4+(i&3)}")
    k("s_nop 3")
    k(f"v_add_f32 v{t}, v{t}, v{t+1}")
    k(f"v_add_f32 v{t+2}, v{t+2}, v{t+3}")
    k(f"v_add_f32 v{t+4}, v{t+4}, v{t+5}")
    k(f"v_add_f32 v{t+6}, v{t+6}, v{t+7}")
    k(f"v_add_f32 v{t}, v{t}, v{t+2}")
    k(f"v_add_f32 v{t+4}, v{t+4}, v{t+6}")
    xhalf_add(k, t, t + 1)
    xhalf_add(k, t + 4, t + 1)
    ln_stats(k, t, t + 4, t + 8, t + 9, t + 10)
    k("s_mov_b32 s11, 0xffff0000")
    U = 4
    for i0 in range(0, 96, U):
        tt = [t + 16 + 4 * u for u in range(U)]
        for u in range(U):
            k(f"v_lshlrev_b32 v{tt[u]}, 16, v{AF+i0+u}")
            k(f"v_and_b32 v{tt[u]+1}, s11, v{AF+i0+u}")
        for u in range(U):
            k(f"v_sub_f32 v{tt[u]}, v{tt[u]}, v{t+8}")
            k(f"v_sub_f32 v{tt[u]+1}, v{tt[u]+1}, v{t+8}")
        for u in range(U):
            k(f"v_cvt_pk_bf16_f32 v{tt[u]+2}, v{tt[u]}, v{tt[u]+1}")
        for u in range(U):
            k(f"v_lshlrev_b32 v{tt[u]}, 16, v{tt[u]+2}")
            k(f"v_and_b32 v{tt[u]+1}, s11, v{tt[u]+2}")
        for u in range(U):
            k(f"v_mul_f32 v{tt[u]}, v{tt[u]}, v{t+9}")
            k(f"v_mul_f32 v{tt[u]+1}, v{tt[u]+1}, v{t+9}")
        for u in range(U):
            k(f"v_cvt_pk_bf16_f32 v{AF+i0+u}, v{tt[u]}, v{tt[u]+1}")
    k("s_nop 1")
    gemm_main(k, True)
    k("v_mul_u32_u24 v4, 2304, v11")
    k("s_mul_i32 s6, s5, 384")
    k("v_lshl_add_u32 v4, v3, 3, v4")
    k("v_add_u32 v4, s6, v4")
    for ct in range(6):
        for j in range(4):
            a = ACC + ct * 16 + 4 * j
            d = BB + ((ct * 4 + j) % 12) * 2
            k(f"v_cvt_pk_bf16_f32 v{d}, v{a}, v{a+1}")
            k(f"v_cvt_pk_bf16_f32 v{d+1}, v{a+2}, v{a+3}")
            k.vmem(f"buffer_store_dwordx2 v[{d}:{d+1}], v4, s[40:43], 0 offen offset:{ct*64+j*16}")
    k("s_endpgm")
    k.label(f"{name}_prep")
    k("s_sub_u32 s4, s2, 240")
    k("s_lshr_b32 s5, s4, 3")
    k("s_and_b32 s4, s4, 7")
    k("s_cmp_eq_u32 s5, 0")
    k("s_cselect_b32 s6, s20, s24")
    k("s_cselect_b32 s7, s21, s25")
    k(f"s_mov_b32 s9, {WS_WOFS}")
    k(f"s_cselect_b32 s8, {WS_WOFT}, s9")
    k("s_mov_b32 s32, s6")
    k("s_mov_b32 s33, s7")
    k(f"s_mov_b32 s34, {WO_BYTES}")
    k("s_mov_b32 s35, 0x00020000")
    k("s_add_u32 s36, s30, s8")
    k("s_addc_u32 s37, s31, 0")
    k(f"s_mov_b32 s38, {WO_BYTES}")
    k("s_mov_b32 s39, 0x00020000")
    k("v_mul_u32_u24 v4, 3072, v3")
    k("v_lshl_add_u32 v4, v2, 1, v4")
    k("v_lshlrev_b32 v5, 4, v1")
    k("s_mul_i32 s9, s4, 36")
    k("s_mul_i32 s10, s3, 9")
    k("s_add_u32 s9, s9, s10")
    for i in range(9):
        k(f"s_add_u32 s10, s9, {i}")
        k("s_mul_hi_u32 s11, s10, 0x0AAAAAAB")
        k("s_mul_i32 s12, s11, 24")
        k("s_sub_u32 s12, s10, s12")
        k("s_mul_i32 s12, s12, 12288")
        k("s_lshl_b32 s11, s11, 6")
        k("s_add_u32 s12, s12, s11")
        k("s_add_u32 s13, s12, 6144")
        k("s_lshl_b32 s14, s10, 10")
        d = 16 + i * 8
        for e in range(8):
            so = "s12" if e < 4 else "s13"
            k.vmem(f"buffer_load_ushort v{d+e}, v4, s[32:35], {so} offen offset:{(e&3)*768}", tag=f"p{i}")
        k(f"s_mov_b32 s{48+i}, s14")
    for i in range(9):
        k.vmwait(f"p{i}")
        d = 16 + i * 8
        for e in range(4):
            k(f"v_lshl_or_b32 v{128+i*4+e}, v{d+2*e+1}, 16, v{d+2*e}")
        k.vmem(f"buffer_store_dwordx4 {vr(128+i*4)}, v5, s[36:39], s{48+i} offen")
    k.label(f"{name}_end")
    k("s_endpgm")
    return k.text()

def gen_KC():
    k = K()
    name = "kc_kernel"
    prologue(k, name, 252)
    k("s_mul_hi_u32 s4, s2, 0x2AAAAAAB")
    k("s_mul_i32 s5, s4, 6")
    k("s_sub_u32 s5, s2, s5")
    k("s_mul_hi_u32 s12, s4, 0x2AAAAAAB")
    k("s_mul_i32 s13, s12, 6")
    k("s_sub_u32 s13, s4, s13")
    k.srd(32, 30, WS_H2, PAD_BYTES)
    k.srd(36, 22, 0, WQKV_BYTES)
    k("s_lshl_b32 s6, s13, 7")
    k("s_lshl_b32 s7, s3, 5")
    k("s_add_u32 s14, s6, s7")
    k("v_add_u32 v5, s14, v2")
    k("s_mul_i32 s6, s12, 768")
    k("v_add_u32 v11, s6, v5")
    k("v_mul_u32_u24 v6, 768, v11")
    k("v_lshl_add_u32 v6, v3, 4, v6")
    k(f"v_cmp_gt_u32 vcc, {N}, v5")
    k(f"v_mov_b32 v7, {hex(BIG)}")
    k("s_nop 1")
    k("v_cndmask_b32 v7, v7, v6, vcc")
    for s in range(24):
        k.vmem(f"buffer_load_dwordx4 {vr(AF+4*s)}, v7, s[32:35], 0 offen offset:{32*s}", tag="x")
    gemm_w_dma_setup(k)
    gemm_w_dma(k, 36)
    gemm_tr_setup(k)
    k("s_cmp_ge_u32 s5, 4")
    k(f"s_cbranch_scc1 {name}_v")
    vm_save, lg_save = list(k.vm), list(k.lg)
    k.vmwait("x")
    gemm_main(k, True)
    k("s_cmp_ge_u32 s5, 2")
    k(f"s_mov_b32 s7, {WS_QS}")
    k(f"s_cselect_b32 s6, {WS_KS}, s7")
    k("s_add_u32 s40, s30, s6")
    k("s_addc_u32 s41, s31, 0")
    k(f"s_mov_b32 s42, {PAD_BYTES}")
    k("s_mov_b32 s43, 0x00020000")
    k("s_and_b32 s6, s5, 1")
    k("s_mul_i32 s6, s6, 384")
    k("v_mul_u32_u24 v4, 768, v11")
    k("v_lshl_add_u32 v4, v3, 3, v4")
    k("v_add_u32 v4, s6, v4")
    for ct in range(6):
        for j in range(4):
            a = ACC + ct * 16 + 4 * j
            d = BB + ((ct * 4 + j) % 12) * 2
            k(f"v_cvt_pk_bf16_f32 v{d}, v{a}, v{a+1}")
            k(f"v_cvt_pk_bf16_f32 v{d+1}, v{a+2}, v{a+3}")
            k.vmem(f"buffer_store_dwordx2 v[{d}:{d+1}], v4, s[40:43], 0 offen offset:{ct*64+j*16}")
    k("s_endpgm")
    k.label(f"{name}_v")
    k.vm, k.lg = vm_save, lg_save
    k.vmwait("x")
    gemm_main(k, False)
    k.srd(40, 30, WS_VT, PAD_BYTES)
    k("s_sub_u32 s6, s5, 4")
    k("s_mul_i32 s6, s6, 192")
    k("v_add_u32 v4, s6, v2")
    k("v_mul_u32_u24 v4, 1536, v4")
    k("v_lshl_add_u32 v4, v3, 4, v4")
    k("s_mul_i32 s6, s12, 589824")
    k("s_lshl_b32 s7, s14, 1")
    k("s_add_u32 s6, s6, s7")
    k("v_add_u32 v4, s6, v4")
    for ct in range(6):
        if ct:
            k(f"v_add_u32 v4, {32*1536}, v4")
        for g in range(2):
            a = ACC + ct * 16 + 8 * g
            d = BB + ((ct * 2 + g) % 12) * 4
            for e in range(4):
                k(f"v_cvt_pk_bf16_f32 v{d+e}, v{a+2*e}, v{a+2*e+1}")
            k.vmem(f"buffer_store_dwordx4 {vr(d)}, v4, s[40:43], 0 offen offset:{g*32}")
        k("s_nop 1")
    k.label(f"{name}_end")
    k("s_endpgm")
    return k.text()

VP = 832
def gen_KB():
    k = K()
    name = "kb_kernel"
    prologue(k, name, 183)
    KF, QF = 16, 112
    SA = 208
    PF = 224
    k.srd(32, 30, WS_QKVT, M1 * 2304)
    k.srd(36, 30, WS_WOFT, WO_BYTES)
    k.srd(40, 16, 0, X_BYTES)
    k.srd(44, 30, WS_X1, PAD_BYTES)
    k.srd(48, 30, WS_H2, PAD_BYTES)
    k("s_mul_i32 s4, s2, 28")
    k("v_add_u32 v4, s4, v2")
    k("v_mul_u32_u24 v4, 2304, v4")
    k("v_lshl_add_u32 v4, v3, 4, v4")
    for s in range(24):
        k.vmem(f"buffer_load_dwordx4 {vr(KF+4*s)}, v4, s[32:35], 0 offen offset:{768+32*s}", tag=f"kq{s}")
        k.vmem(f"buffer_load_dwordx4 {vr(QF+4*s)}, v4, s[32:35], 0 offen offset:{32*s}", tag=f"kq{s}")
    k("v_lshlrev_b32 v5, 4, v1")
    k("v_add_u32 v5, 1536, v5")
    k("s_lshl_b32 s5, s3, 3")
    k("s_add_u32 s6, s4, s5")
    k("s_mul_i32 s6, s6, 2304")
    k(f"s_mul_i32 s7, s5, {VP}")
    k("v_cmp_gt_u32 vcc, 48, v1")
    k("s_and_saveexec_b64 s[12:13], vcc")
    for r in range(8):
        k(f"s_add_u32 m0, s7, {r*VP}")
        k(f"s_add_u32 s8, s6, {r*2304}")
        k("s_nop 0")
        k.vmem("buffer_load_dwordx4 v5, s[32:35], s8 offen lds", tag="v")
    k("s_mov_b64 exec, s[12:13]")
    k("v_mul_u32_u24 v6, 9363, v2")
    k("v_lshrrev_b32 v6, 16, v6")
    k("v_mul_u32_u24 v7, 7, v6")
    k("v_sub_u32 v8, v2, v7")
    k("s_lshl_b32 s5, s2, 2")
    k("v_add_u32 v9, s5, v6")
    k("v_mul_u32_u24 v10, 729, v8")
    k("v_add_u32 v10, v10, v9")
    k("v_mul_u32_u24 v10, 768, v10")
    k("v_mul_u32_u24 v11, 768, v8")
    k("v_add_u32 v11, v11, v9")
    k("v_mul_u32_u24 v11, 768, v11")
    k("s_mul_i32 s5, s3, 192")
    k("v_lshl_add_u32 v12, v3, 3, s5")
    k("v_add_u32 v10, v10, v12")
    k("v_add_u32 v11, v11, v12")
    k(f"v_cmp_gt_u32 vcc, {N}, v9")
    k("s_mov_b64 s[12:13], vcc")
    k("v_cmp_gt_u32 vcc, 28, v2")
    k(f"v_mov_b32 v12, {hex(BIG)}")
    k("s_nop 1")
    k("s_and_b64 vcc, vcc, s[12:13]")
    k("s_nop 1")
    k("v_cndmask_b32 v10, v12, v10, vcc")
    k("v_cndmask_b32 v11, v12, v11, vcc")
    k("v_lshl_add_u32 v7, v3, 2, 0")
    k("v_mul_u32_u24 v12, 7, v6")
    k("v_sub_u32 v7, v12, v7")
    R = 36
    k("v_lshlrev_b32 v13, 4, v1")
    k("s_mul_i32 s9, s3, 73728")
    wo_issued = [0]
    def wo_issue(n):
        for _ in range(n):
            i = wo_issued[0]
            if i >= 72: return
            s, j = i // 3, i % 3
            off = (j * 24 + s) * 1024
            k(f"s_add_u32 s10, s9, {off & ~4095}")
            k.vmem(f"buffer_load_dwordx4 {ar((i % R)*4)}, v13, s[36:39], s10 offen offset:{off & 4095}", tag=f"wo{i}")
            wo_issued[0] += 1
    for g in range(6):
        k.vmwait(f"kq{4*g+3}")
        for s in range(4 * g, 4 * g + 4):
            c = vr(SA, 16) if s else "0"
            k(f"v_mfma_f32_32x32x16_bf16 {vr(SA,16)}, {vr(KF+4*s)}, {vr(QF+4*s)}, {c}")
        wo_issue(6)
    k("s_nop 15")
    XR = 176
    for j in range(3):
        for q in range(4):
            k.vmem(f"buffer_load_dwordx2 v[{XR+(j*4+q)*2}:{XR+(j*4+q)*2+1}], v10, s[40:43], 0 offen offset:{j*64+q*16}", tag="xr")
    k(f"s_mov_b32 s10, {hex(f2u(SCALE))}")
    k("s_mov_b32 s11, 0xffff0000")
    k(f"s_mov_b32 s12, {hex(f2u(LOG2E))}")
    k("v_mov_b32 v14, 0xff800000")
    T0 = 112
    for p in range(8):
        a = SA + 2 * p
        k(f"v_cvt_pk_bf16_f32 v{T0}, v{a}, v{a+1}")
        k(f"v_lshlrev_b32 v{a}, 16, v{T0}")
        k(f"v_and_b32 v{a+1}, s11, v{T0}")
        k(f"v_mul_f32 v{a}, s10, v{a}")
        k(f"v_mul_f32 v{a+1}, s10, v{a+1}")
        k(f"v_cvt_pk_bf16_f32 v{T0}, v{a}, v{a+1}")
        k(f"v_lshlrev_b32 v{a}, 16, v{T0}")
        k(f"v_and_b32 v{a+1}, s11, v{T0}")
    for r in range(16):
        cr = 8 * (r >> 2) + (r & 3)
        k(f"v_sub_u32 v{T0}, {cr}, v7")
        k(f"v_cmp_gt_u32 vcc, 7, v{T0}")
        k("s_nop 1")
        k(f"v_cndmask_b32 v{SA+r}, v14, v{SA+r}, vcc")
    MX = T0 + 1
    k(f"v_max_f32 v{MX}, v{SA}, v{SA+1}")
    for r in range(2, 16):
        k(f"v_max_f32 v{MX}, v{MX}, v{SA+r}")
    xhalf_max(k, MX, T0 + 2)
    k(f"v_max_f32 v{MX}, 0xff7fffff, v{MX}")
    k(f"v_mul_f32 v{T0+3}, s12, v{MX}")
    SUM = T0 + 4
    for r in range(16):
        k(f"v_fma_f32 v{SA+r}, v{SA+r}, s12, -v{T0+3}")
    for r in range(16):
        k(f"v_exp_f32 v{SA+r}, v{SA+r}")
    k("s_nop 0")
    k(f"v_add_f32 v{SUM}, v{SA}, v{SA+1}")
    for r in range(2, 16):
        k(f"v_add_f32 v{SUM}, v{SUM}, v{SA+r}")
    xhalf_add(k, SUM, T0 + 2)
    k(f"v_rcp_f32 v{SUM}, v{SUM}")
    k("s_nop 0")
    for r in range(16):
        k(f"v_mul_f32 v{SA+r}, v{SA+r}, v{SUM}")
    for p in range(8):
        k(f"v_cvt_pk_bf16_f32 v{PF+p}, v{SA+2*p}, v{SA+2*p+1}")
    k.vmwait("v")
    k("s_barrier")
    k("v_and_b32 v4, 15, v1")
    k("v_lshrrev_b32 v5, 2, v4")
    k("v_and_b32 v4, 3, v4")
    k("v_lshl_add_u32 v5, v3, 2, v5")
    k(f"v_mul_u32_u24 v5, {VP}, v5")
    k("v_lshl_add_u32 v5, v4, 3, v5")
    k("v_bfe_u32 v4, v1, 4, 1")
    k("v_lshl_add_u32 v5, v4, 5, v5")
    OF = 16
    OA = [120, 136]
    VF = [152, 160]
    def vreads(ct):
        b = VF[ct & 1]
        for sp in range(2):
            for q in range(2):
                off = (16 * sp + 8 * q) * VP + ct * 64
                k.ds(f"ds_read_b64_tr_b16 v[{b+sp*4+q*2}:{b+sp*4+q*2+1}], v5 offset:{off}", tag=f"vf{ct}")
    def ocvt(ct):
        a = OA[ct & 1]
        for e in range(8):
            k(f"v_cvt_pk_bf16_f32 v{OF+ct*8+e}, v{a+2*e}, v{a+2*e+1}")
    vreads(0)
    for ct in range(12):
        if ct + 1 < 12: vreads(ct + 1)
        k.lgwait(f"vf{ct}")
        b = VF[ct & 1]; a = OA[ct & 1]
        k(f"v_mfma_f32_32x32x16_bf16 {vr(a,16)}, {vr(b)}, {vr(PF)}, 0")
        k(f"v_mfma_f32_32x32x16_bf16 {vr(a,16)}, {vr(b+4)}, {vr(PF+4)}, {vr(a,16)}")
        if ct >= 1:
            k("s_nop 7")
            ocvt(ct - 1)
    k("s_nop 15")
    ocvt(11)
    k("s_nop 1")
    YA = 128
    for i in range(72):
        s, j = i // 3, i % 3
        k.vmwait(f"wo{i}")
        c = vr(YA + j * 16, 16) if s else "0"
        k(f"v_mfma_f32_32x32x16_bf16 {vr(YA+j*16,16)}, {ar((i%R)*4)}, {vr(OF+4*s)}, {c}")
        wo_issue(1)
    k("s_nop 15")
    k.vmwait("xr")
    S1, S2 = 16, 17
    k(f"v_mov_b32 v{S1}, 0")
    k(f"v_mov_b32 v{S2}, 0")
    for jq in range(12):
        for e in range(2):
            a = YA + jq * 4 + 2 * e
            x = XR + jq * 2 + e
            k(f"v_cvt_pk_bf16_f32 v20, v{a}, v{a+1}")
            k(f"v_lshlrev_b32 v{a}, 16, v20")
            k(f"v_and_b32 v{a+1}, s11, v20")
            k(f"v_lshlrev_b32 v21, 16, v{x}")
            k(f"v_and_b32 v22, s11, v{x}")
            k(f"v_add_f32 v{a}, v{a}, v21")
            k(f"v_add_f32 v{a+1}, v{a+1}, v22")
            k(f"v_cvt_pk_bf16_f32 v{x}, v{a}, v{a+1}")
            k(f"v_lshlrev_b32 v{a}, 16, v{x}")
            k(f"v_and_b32 v{a+1}, s11, v{x}")
            k(f"v_add_f32 v{S1}, v{S1}, v{a}")
            k(f"v_fmac_f32 v{S2}, v{a}, v{a}")
            k(f"v_add_f32 v{S1}, v{S1}, v{a+1}")
            k(f"v_fmac_f32 v{S2}, v{a+1}, v{a+1}")
    for j in range(3):
        for q in range(4):
            x = XR + (j * 4 + q) * 2
            k.vmem(f"buffer_store_dwordx2 v[{x}:{x+1}], v11, s[44:47], 0 offen offset:{j*64+q*16}")
    xhalf_add(k, S1, 20)
    xhalf_add(k, S2, 20)
    LB = 32 * VP
    k("v_lshlrev_b32 v20, 3, v2")
    k("s_lshl_b32 s5, s3, 8")
    k("v_add_u32 v21, s5, v20")
    k.ds(f"ds_write_b64 v21, v[{S1}:{S2}] offset:{LB}")
    k.lgwait_all()
    k("s_barrier")
    for w in range(4):
        k.ds(f"ds_read_b64 v[{24+2*w}:{25+2*w}], v20 offset:{LB+256*w}")
    k.lgwait_all()
    k("v_add_f32 v24, v24, v26")
    k("v_add_f32 v25, v25, v27")
    k("v_add_f32 v28, v28, v30")
    k("v_add_f32 v29, v29, v31")
    k("v_add_f32 v24, v24, v28")
    k("v_add_f32 v25, v25, v29")
    ln_stats(k, 24, 25, 26, 27, 28)
    for jq in range(12):
        for e in range(2):
            a = YA + jq * 4 + 2 * e
            d = 32 + jq * 2 + e
            k(f"v_sub_f32 v{a}, v{a}, v26")
            k(f"v_sub_f32 v{a+1}, v{a+1}, v26")
            k(f"v_cvt_pk_bf16_f32 v20, v{a}, v{a+1}")
            k(f"v_lshlrev_b32 v{a}, 16, v20")
            k(f"v_and_b32 v{a+1}, s11, v20")
            k(f"v_mul_f32 v{a}, v{a}, v27")
            k(f"v_mul_f32 v{a+1}, v{a+1}, v27")
            k(f"v_cvt_pk_bf16_f32 v{d}, v{a}, v{a+1}")
    for j in range(3):
        for q in range(4):
            d = 32 + (j * 4 + q) * 2
            k.vmem(f"buffer_store_dwordx2 v[{d}:{d+1}], v11, s[48:51], 0 offen offset:{j*64+q*16}")
    k.label(f"{name}_end")
    k("s_endpgm")
    return k.text()

def gen_KD():
    k = K()
    name = "kd_kernel"
    prologue(k, name, 161)
    k("s_and_b32 s4, s2, 7")
    k("s_lshr_b32 s5, s2, 3")
    k("s_mul_i32 s6, s4, 20")
    k("s_min_u32 s7, s4, 1")
    k("s_add_u32 s6, s6, s7")
    k("s_add_u32 s6, s6, s5")
    k(f"s_mul_hi_u32 s4, s6, {((1<<32)+22)//23}")
    k("s_mul_i32 s5, s4, 23")
    k("s_sub_u32 s5, s6, s5")
    k.srd(32, 30, WS_QS, PAD_BYTES)
    k.srd(36, 30, WS_KS, PAD_BYTES)
    k.srd(40, 30, WS_VT, PAD_BYTES)
    k.srd(44, 30, WS_WOFS, WO_BYTES)
    k.srd(48, 30, WS_X1, PAD_BYTES)
    k.srd(52, 26, 0, X_BYTES)
    QF = 0
    RB = 96
    R = 40
    SA = 64
    k("s_mul_i32 s6, s4, 768")
    k("s_lshl_b32 s7, s5, 5")
    k("s_add_u32 s6, s6, s7")
    k("v_add_u32 v4, s6, v2")
    k("v_mul_u32_u24 v4, 768, v4")
    k("v_lshl_add_u32 v4, v3, 4, v4")
    for s in range(24):
        k.vmem(f"buffer_load_dwordx4 {ar(QF+4*s)}, v4, s[32:35], 0 offen offset:{32*s}", tag="q")
    k("v_mul_u32_u24 v5, 768, v2")
    k("v_lshl_add_u32 v5, v3, 4, v5")
    k("s_mul_i32 s8, s4, 589824")
    k("s_mul_i32 s9, s3, 147456")
    k("s_add_u32 s8, s8, s9")
    k("v_mul_u32_u24 v6, 1536, v2")
    k("v_lshl_add_u32 v6, v3, 4, v6")
    k("s_mul_i32 s10, s4, 589824")
    k("s_mul_i32 s11, s3, 147456")
    k("s_add_u32 s10, s10, s11")
    k("v_lshlrev_b32 v7, 4, v1")
    k("s_mul_i32 s11, s3, 73728")
    items = []
    for kt in range(6):
        for s in range(24):
            items.append(("k", kt, s))
    NS2 = 46
    for s in range(NS2):
        for ct in range(3):
            items.append(("v", ct, s))
    for s in range(24):
        for j in range(3):
            items.append(("w", j, s))
    issued = [0]
    def issue(n=1):
        for _ in range(n):
            i = issued[0]
            if i >= len(items): return
            kind, a, s = items[i]
            d = ar(RB + (i % R) * 4)
            if kind == "k":
                k(f"s_add_u32 s12, s8, {a*24576}")
                k.vmem(f"buffer_load_dwordx4 {d}, v5, s[36:39], s12 offen offset:{32*s}", tag=f"i{i}")
            elif kind == "v":
                k(f"s_add_u32 s12, s10, {a*49152}")
                k.vmem(f"buffer_load_dwordx4 {d}, v6, s[40:43], s12 offen offset:{32*s}", tag=f"i{i}")
            else:
                off = (a * 24 + s) * 1024
                k(f"s_add_u32 s12, s11, {off & ~4095}")
                k.vmem(f"buffer_load_dwordx4 {d}, v7, s[44:47], s12 offen offset:{off & 4095}", tag=f"i{i}")
            issued[0] += 1
    issue(R)
    k.vmwait("q")
    it = 0
    for kt in range(6):
        for s in range(24):
            k.vmwait(f"i{it}")
            c = vr(SA + kt * 16, 16) if s else "0"
            k(f"v_mfma_f32_32x32x16_bf16 {vr(SA+kt*16,16)}, {ar(RB+(it%R)*4)}, {ar(QF+4*s)}, {c}")
            issue(1)
            it += 1
    k("s_nop 15")
    k(f"s_mov_b32 s13, {hex(f2u(SCALE))}")
    k("s_mov_b32 s14, 0xffff0000")
    k(f"s_mov_b32 s15, {hex(f2u(LOG2E))}")
    for p0 in range(0, 48, 4):
        for u in range(4):
            a = SA + 2 * (p0 + u)
            k(f"v_cvt_pk_bf16_f32 v{16+u}, v{a}, v{a+1}")
        for u in range(4):
            a = SA + 2 * (p0 + u)
            k(f"v_lshlrev_b32 v{a}, 16, v{16+u}")
            k(f"v_and_b32 v{a+1}, s14, v{16+u}")
        for u in range(4):
            a = SA + 2 * (p0 + u)
            k(f"v_mul_f32 v{a}, s13, v{a}")
            k(f"v_mul_f32 v{a+1}, s13, v{a+1}")
        for u in range(4):
            a = SA + 2 * (p0 + u)
            k(f"v_cvt_pk_bf16_f32 v{16+u}, v{a}, v{a+1}")
        for u in range(4):
            a = SA + 2 * (p0 + u)
            k(f"v_lshlrev_b32 v{a}, 16, v{16+u}")
            k(f"v_and_b32 v{a+1}, s14, v{16+u}")
    k("s_cmp_lg_u32 s3, 3")
    k(f"s_cbranch_scc1 {name}_nomask")
    k("v_mov_b32 v16, 0xff800000")
    k("v_lshlrev_b32 v17, 2, v3")
    for r in range(16):
        cr = 8 * (r >> 2) + (r & 3)
        a = SA + 4 * 16 + r
        if cr + 4 < 25:
            continue
        if cr >= 25:
            k(f"v_mov_b32 v{a}, v16")
        else:
            k(f"v_cmp_gt_u32 vcc, {25-cr}, v17")
            k("s_nop 1")
            k(f"v_cndmask_b32 v{a}, v16, v{a}, vcc")
    for r in range(16):
        k(f"v_mov_b32 v{SA+5*16+r}, v16")
    k.label(f"{name}_nomask")
    k(f"v_max3_f32 v16, v{SA}, v{SA+1}, v{SA+2}")
    k(f"v_max3_f32 v17, v{SA+3}, v{SA+4}, v{SA+5}")
    for r in range(6, 96, 4):
        k(f"v_max3_f32 v16, v16, v{SA+r}, v{SA+r+1}")
        if r + 3 < 96:
            k(f"v_max3_f32 v17, v17, v{SA+r+2}, v{SA+r+3}")
    k("v_max_f32 v16, v16, v17")
    xhalf_max(k, 16, 17)
    ST = 0
    OX = 1024
    PLB = 25600
    PL = 0
    k(f"v_add_u32 v8, {PLB}, v7")
    k("v_lshlrev_b32 v18, 2, v2")
    k("s_lshl_b32 s12, s3, 7")
    k("v_add_u32 v19, s12, v18")
    k.ds(f"ds_write_b32 v19, v16 offset:{ST}")
    k.lgwait_all()
    k("s_barrier")
    for w in range(4):
        k.ds(f"ds_read_b32 v{20+w}, v18 offset:{ST+128*w}")
    k.lgwait_all()
    k("v_max3_f32 v16, v20, v21, v22")
    k("v_max_f32 v16, v16, v23")
    k("v_mul_f32 v16, s15, v16")
    for r in range(96):
        k(f"v_fma_f32 v{SA+r}, v{SA+r}, s15, -v16")
    for r in range(96):
        k(f"v_exp_f32 v{SA+r}, v{SA+r}")
    k("s_nop 0")
    k(f"v_add_f32 v20, v{SA}, v{SA+1}")
    k(f"v_add_f32 v21, v{SA+2}, v{SA+3}")
    for r in range(4, 96, 2):
        k(f"v_add_f32 v20, v20, v{SA+r}")
        k(f"v_add_f32 v21, v21, v{SA+r+1}")
    k("v_add_f32 v20, v20, v21")
    xhalf_add(k, 20, 21)
    k.ds(f"ds_write_b32 v19, v20 offset:{ST+512}")
    k.lgwait_all()
    k("s_barrier")
    for w in range(4):
        k.ds(f"ds_read_b32 v{20+w}, v18 offset:{ST+512+128*w}")
    k.lgwait_all()
    k("v_add_f32 v20, v20, v21")
    k("v_add_f32 v22, v22, v23")
    k("v_add_f32 v20, v20, v22")
    k("v_rcp_f32 v20, v20")
    k("s_nop 0")
    k("s_mul_i32 s12, s3, 12288")
    k("v_add_u32 v19, s12, v8")
    for kt in range(6):
        for sp in range(2):
            a = SA + kt * 16 + sp * 8
            for e in range(8):
                k(f"v_mul_f32 v{a+e}, v{a+e}, v20")
            d = 24 + ((kt * 2 + sp) & 1) * 4
            for e in range(4):
                k(f"v_cvt_pk_bf16_f32 v{d+e}, v{a+2*e}, v{a+2*e+1}")
            k.ds(f"ds_write_b128 v19, {vr(d)} offset:{PL+(kt*2+sp)*1024}")
    k.lgwait_all()
    k("s_barrier")
    OA = 64
    PB = 32
    PR = 8
    def pread(s):
        k.ds(f"ds_read_b128 {vr(PB+(s%PR)*4)}, v8 offset:{PL+s*1024}", tag=f"p{s}")
    for s in range(min(PR - 1, NS2)):
        pread(s)
    for s in range(NS2):
        if s + PR - 1 < NS2: pread(s + PR - 1)
        k.lgwait(f"p{s}")
        for ct in range(3):
            k.vmwait(f"i{it}")
            c = vr(OA + ct * 16, 16) if s else "0"
            k(f"v_mfma_f32_32x32x16_bf16 {vr(OA+ct*16,16)}, {ar(RB+(it%R)*4)}, {vr(PB+(s%PR)*4)}, {c}")
            issue(1)
            it += 1
    k("s_nop 15")
    k("s_mul_i32 s12, s3, 192")
    k("v_add_u32 v16, s6, v2")
    k("v_mul_u32_u24 v16, 768, v16")
    k("v_lshl_add_u32 v17, v3, 3, s12")
    k("v_add_u32 v16, v16, v17")
    XR = 112
    for j in range(3):
        for q in range(4):
            k.vmem(f"buffer_load_dwordx2 v[{XR+(j*4+q)*2}:{XR+(j*4+q)*2+1}], v16, s[48:51], 0 offen offset:{j*64+q*16}", tag="xr")
    k("s_lshl_b32 s12, s5, 5")
    k("v_add_u32 v18, s12, v2")
    k("s_mul_i32 s12, s4, 729")
    k("v_add_u32 v19, s12, v18")
    k("v_mul_u32_u24 v19, 768, v19")
    k("v_add_u32 v19, v19, v17")
    k(f"v_cmp_gt_u32 vcc, {N}, v18")
    k(f"v_mov_b32 v18, {hex(BIG)}")
    k("s_nop 1")
    k("v_cndmask_b32 v19, v18, v19, vcc")
    k("s_mul_i32 s12, s3, 6144")
    k("v_add_u32 v18, s12, v7")
    for ct in range(3):
        for sp in range(2):
            a = OA + ct * 16 + sp * 8
            d = 24 + ((ct * 2 + sp) & 1) * 4
            for e in range(4):
                k(f"v_cvt_pk_bf16_f32 v{d+e}, v{a+2*e}, v{a+2*e+1}")
            k.ds(f"ds_write_b128 v18, {vr(d)} offset:{OX+(ct*2+sp)*1024}")
    k.lgwait_all()
    k("s_barrier")
    YA = 64
    def oread(s):
        k.ds(f"ds_read_b128 {vr(PB+(s%PR)*4)}, v7 offset:{OX+s*1024}", tag=f"o{s}")
    for s in range(PR - 1):
        oread(s)
    for s in range(24):
        if s + PR - 1 < 24: oread(s + PR - 1)
        k.lgwait(f"o{s}")
        for j in range(3):
            k.vmwait(f"i{it}")
            c = vr(YA + j * 16, 16) if s else "0"
            k(f"v_mfma_f32_32x32x16_bf16 {vr(YA+j*16,16)}, {ar(RB+(it%R)*4)}, {vr(PB+(s%PR)*4)}, {c}")
            issue(1)
            it += 1
    k("s_nop 15")
    k.vmwait("xr")
    for jq in range(12):
        for e in range(2):
            a = YA + jq * 4 + 2 * e
            x = XR + jq * 2 + e
            k(f"v_cvt_pk_bf16_f32 v20, v{a}, v{a+1}")
            k(f"v_lshlrev_b32 v{a}, 16, v20")
            k(f"v_and_b32 v{a+1}, s14, v20")
            k(f"v_lshlrev_b32 v21, 16, v{x}")
            k(f"v_and_b32 v22, s14, v{x}")
            k(f"v_add_f32 v{a}, v{a}, v21")
            k(f"v_add_f32 v{a+1}, v{a+1}, v22")
            k(f"v_cvt_pk_bf16_f32 v{x}, v{a}, v{a+1}")
    for j in range(3):
        for q in range(4):
            x = XR + (j * 4 + q) * 2
            k.vmem(f"buffer_store_dwordx2 v[{x}:{x+1}], v19, s[52:55], 0 offen offset:{j*64+q*16}")
    k.label(f"{name}_end")
    k("s_endpgm")
    return k.text()

HEADER = """; TimeSformer divided space-time attention block, gfx950.  Generated by gen.py (own generator).
; @launch kernel=ka_kernel grid=(256,1,1) block=(256,1,1) lds=147456
; @launch kernel=kb_kernel grid=(183,1,1) block=(256,1,1) lds=28672
; @launch kernel=kc_kernel grid=(252,1,1) block=(256,1,1) lds=147456
; @launch kernel=kd_kernel grid=(161,1,1) block=(256,1,1) lds=74752
.amdgcn_target "amdgcn-amd-amdhsa--gfx950"
.text
"""

def desc(name, vgpr, accum):
    return f""".amdhsa_kernel {name}
  .amdhsa_next_free_vgpr {vgpr}
  .amdhsa_next_free_sgpr 102
  .amdhsa_accum_offset {accum}
  .amdhsa_group_segment_fixed_size 0
  .amdhsa_kernarg_size 64
  .amdhsa_user_sgpr_count 2
  .amdhsa_user_sgpr_kernarg_segment_ptr 1
  .amdhsa_system_sgpr_workgroup_id_x 1
  .amdhsa_float_denorm_mode_32 3
.end_amdhsa_kernel
"""

def main():
    out = HEADER
    for name, g in (("ka_kernel", gen_KA), ("kb_kernel", gen_KB), ("kc_kernel", gen_KC), ("kd_kernel", gen_KD)):
        out += f".globl {name}\n.p2align 8\n.type {name},@function\n" + g()
    out += '.section .rodata,"a"\n.p2align 6\n'
    out += desc("ka_kernel", 256, 256)
    out += ".p2align 6\n" + desc("kb_kernel", 512, 256)
    out += ".p2align 6\n" + desc("kc_kernel", 256, 256)
    out += ".p2align 6\n" + desc("kd_kernel", 512, 256)
    path = sys.argv[1] if len(sys.argv) > 1 else "standalone__video_timesformer__vision.s"
    open(path, "w").write(out)
    print("wrote", path, len(out))

if __name__ == "__main__":
    main()
```

```python
import sys, os
FL = os.environ.get('GENFLAGS','').split(',')

T, N, C = 7, 729, 384
NP = 768
M1 = N * T
X_BYTES = T * N * C * 2
WQKV_BYTES = C * 3 * C * 2
WO_BYTES = C * C * 2
MiB = 1 << 20
WS_QKVT = 0
QKVT_BYTES = 5120 * 2304
WS_X1 = 12 * MiB
WS_H2 = 17 * MiB
WS_QS = 22 * MiB
WS_KS = 27 * MiB
WS_VT = 32 * MiB
WS_WOFT = 37 * MiB
WS_WOFS = 38 * MiB
PAD_BYTES = T * NP * C * 2
BIG = 0x7f000000
SCALE = C ** -0.5
import struct
def f2u(f): return struct.unpack('<I', struct.pack('<f', f))[0]
LOG2E = 1.4426950408889634

class K:
    def __init__(self):
        self.L = []
        self.vm = []
        self.lg = []
    def __call__(self, s):
        self.L.append("    " + s)
    def label(self, l):
        self.L.append(l + ":")
    def c(self, s):
        self.L.append("    ; " + s)
    def vmem(self, s, tag=None):
        if 'nostore' in FL and s.startswith('buffer_store'): return
        if 'noxload' in FL and tag == 'x' and 'offset:0' not in s: return
        self(s); self.vm.append(tag)
    def vmwait(self, tag):
        idx = max(i for i, t in enumerate(self.vm) if t == tag)
        n = len(self.vm) - 1 - idx
        self(f"s_waitcnt vmcnt({min(n,63)})")
    def vmwait_all(self):
        self("s_waitcnt vmcnt(0)")
    def ds(self, s, tag=None):
        self(s); self.lg.append(tag)
    def lgwait(self, tag):
        idx = max(i for i, t in enumerate(self.lg) if t == tag)
        n = len(self.lg) - 1 - idx
        self(f"s_waitcnt lgkmcnt({min(n,15)})")
    def lgwait_all(self):
        self("s_waitcnt lgkmcnt(0)")
    def srd(self, d, lo, off, size):
        if off:
            self(f"s_add_u32 s{d}, s{lo}, {off}")
            self(f"s_addc_u32 s{d+1}, s{lo+1}, 0")
        else:
            self(f"s_mov_b32 s{d}, s{lo}")
            self(f"s_mov_b32 s{d+1}, s{lo+1}")
        self(f"s_mov_b32 s{d+2}, {size}")
        self(f"s_mov_b32 s{d+3}, 0x00020000")
    def text(self):
        return "\n".join(self.L) + "\n"

def vr(b, n=4): return f"v[{b}:{b+n-1}]"
def ar(b, n=4): return f"a[{b}:{b+n-1}]"

def prologue(k, name, ngrid):
    k.label(name)
    k(f"s_cmp_ge_u32 s2, {ngrid}")
    k(f"s_cbranch_scc1 {name}_end")
    k("s_load_dwordx16 s[16:31], s[0:1], 0")
    k("v_and_b32 v1, 63, v0")
    k("v_lshrrev_b32 v4, 6, v0")
    k("v_and_b32 v2, 31, v1")
    k("v_readfirstlane_b32 s3, v4")
    k("v_lshrrev_b32 v3, 5, v1")
    k("s_waitcnt lgkmcnt(0)")

def bf16r(k, dst, src):
    k(f"v_cvt_pk_bf16_f32 v{dst}, v{src}, v{src}")
    k(f"v_lshlrev_b32 v{dst}, 16, v{dst}")

def ln_stats(k, s1, s2, m, rinv, t):
    k(f"v_mul_f32 v{s1}, {hex(f2u(1.0/C))}, v{s1}")
    k(f"v_mul_f32 v{s2}, {hex(f2u(1.0/C))}, v{s2}")
    k(f"v_fma_f32 v{s2}, -v{s1}, v{s1}, v{s2}")
    k(f"v_max_f32 v{s2}, 0, v{s2}")
    bf16r(k, m, s1)
    bf16r(k, t, s2)
    k(f"v_add_f32 v{t}, {hex(f2u(1e-5))}, v{t}")
    bf16r(k, t, t)
    k(f"v_sqrt_f32 v{t}, v{t}")
    k("s_nop 0")
    bf16r(k, t, t)
    k(f"v_rcp_f32 v{rinv}, v{t}")
    k("s_nop 0")

def xhalf_add(k, a, tmp):
    k(f"v_mov_b32 v{tmp}, v{a}")
    k("s_nop 1")
    k(f"v_permlane32_swap_b32 v{a}, v{tmp}")
    k("s_nop 1")
    k(f"v_add_f32 v{a}, v{a}, v{tmp}")

def xhalf_max(k, a, tmp):
    k(f"v_mov_b32 v{tmp}, v{a}")
    k("s_nop 1")
    k(f"v_permlane32_swap_b32 v{a}, v{tmp}")
    k("s_nop 1")
    k(f"v_max_f32 v{a}, v{a}, v{tmp}")

AF = 16
ACC = 112
BB = 208

def gemm_w_dma_setup(k):
    for b in range(3):
        k(f"v_add_u32 v4, {64*b}, v1")
        k("v_mul_u32_u24 v5, 5462, v4")
        k("v_lshrrev_b32 v5, 16, v5")
        k("v_mul_u32_u24 v6, 12, v5")
        k("v_sub_u32 v6, v4, v6")
        k("v_mul_u32_u24 v5, 2304, v5")
        k(f"v_lshl_add_u32 v{8+b}, v6, 4, v5")
    k("s_mul_i32 s8, s3, 73728")
    k("s_mul_i32 s9, s5, 384")
    k("s_add_u32 s8, s8, s9")
    k("s_mul_i32 s9, s3, 6144")

def gemm_w_dma(k, wsrd):
    for c in range(3):
        for da in range(2):
            for sub in range(2):
                for b in range(3):
                    a = 8 * c + da
                    k(f"s_add_u32 s10, s8, {a*36864 + sub*192}")
                    k(f"s_add_u32 m0, s9, {a*3072 + sub*73728 + b*1024}")
                    k("s_nop 0")
                    if 'nodma' in FL and (da+sub+b) > 0: continue
                    k.vmem(f"buffer_load_dwordx4 v{8+b}, s[{wsrd}:{wsrd+3}], s10 offen lds", tag=f"w{c}")

def gemm_tr_setup(k):
    k("v_and_b32 v4, 15, v1")
    k("v_lshrrev_b32 v5, 2, v4")
    k("v_and_b32 v4, 3, v4")
    k("v_lshl_add_u32 v5, v3, 3, v5")
    k("v_mul_u32_u24 v5, 192, v5")
    k("v_lshl_add_u32 v5, v4, 3, v5")
    k("v_bfe_u32 v4, v1, 4, 1")
    k("v_lshl_add_u32 v12, v4, 5, v5")
    k(f"v_add_u32 v13, {12*3072}, v12")
    k(f"v_add_u32 v14, {73728}, v12")
    k(f"v_add_u32 v15, {73728+12*3072}, v12")

def gemm_breads(k, s):
    buf = BB + (s & 1) * 24
    for ct in range(6):
        sub = ct // 3
        base = 12 + sub * 2 + (s // 12)
        for q in range(2):
            off = (s % 12) * 3072 + q * 768 + (ct % 3) * 64
            if 'nodsr' in FL and ct*2+q > 0: continue
            k.ds(f"ds_read_b64_tr_b16 v[{buf+ct*4+q*2}:{buf+ct*4+q*2+1}], v{base} offset:{off}", tag=f"b{s}")

def gemm_main(k, transposed):
    def mfmas(s):
        buf = BB + (s & 1) * 24
        for ct in range(6):
            a, b = vr(buf + ct * 4), vr(AF + s * 4)
            if not transposed: a, b = b, a
            c = vr(ACC + ct * 16, 16) if s else "0"
            if 'nomfma' not in FL: k(f"v_mfma_f32_32x32x16_bf16 {vr(ACC+ct*16,16)}, {a}, {b}, {c}")
    for c in range(3):
        k.vmwait(f"w{c}")
        k("s_barrier")
        gemm_breads(k, 8 * c)
        for s in range(8 * c, 8 * c + 8):
            if s + 1 < 8 * c + 8:
                gemm_breads(k, s + 1)
            k.lgwait(f"b{s}")
            mfmas(s)
    k("s_nop 15")

def gen_KA():
    k = K()
    name = "ka_kernel"
    prologue(k, name, 256)
    k("s_cmp_ge_u32 s2, 240")
    k(f"s_cbranch_scc1 {name}_prep")
    k("s_mul_hi_u32 s4, s2, 0x2AAAAAAB")
    k("s_mul_i32 s5, s4, 6")
    k("s_sub_u32 s5, s2, s5")
    k.srd(32, 16, 0, X_BYTES)
    k.srd(36, 18, 0, WQKV_BYTES)
    k.srd(40, 30, WS_QKVT, QKVT_BYTES)
    k("s_lshl_b32 s6, s4, 7")
    k("s_lshl_b32 s7, s3, 5")
    k("s_add_u32 s6, s6, s7")
    k("v_add_u32 v11, s6, v2")
    k("v_mul_u32_u24 v5, 9363, v11")
    k("v_lshrrev_b32 v5, 16, v5")
    k("v_mul_u32_u24 v6, 7, v5")
    k("v_sub_u32 v6, v11, v6")
    k("v_mul_u32_u24 v6, 729, v6")
    k("v_add_u32 v6, v6, v5")
    k("v_mul_u32_u24 v6, 768, v6")
    k("v_lshl_add_u32 v6, v3, 4, v6")
    k(f"v_cmp_gt_u32 vcc, {M1}, v11")
    k(f"v_mov_b32 v7, {hex(BIG)}")
    k("s_nop 1")
    k("v_cndmask_b32 v7, v7, v6, vcc")
    for s in range(24):
        k.vmem(f"buffer_load_dwordx4 {vr(AF+4*s)}, v7, s[32:35], 0 offen offset:{32*s}", tag="x")
    gemm_w_dma_setup(k)
    gemm_w_dma(k, 36)
    gemm_tr_setup(k)
    k("s_mov_b32 s10, 0x3f803f80")
    t = ACC
    for i in range(8):
        k(f"v_mov_b32 v{t+i}, 0")
    k.vmwait("x")
    for i in range(96):
        k(f"v_dot2_f32_bf16 v{t+(i&3)}, v{AF+i}, s10, v{t+(i&3)}")
        k(f"v_dot2_f32_bf16 v{t+4+(i&3)}, v{AF+i}, v{AF+i}, v{t+4+(i&3)}")
    k("s_nop 3")
    k(f"v_add_f32 v{t}, v{t}, v{t+1}")
    k(f"v_add_f32 v{t+2}, v{t+2}, v{t+3}")
    k(f"v_add_f32 v{t+4}, v{t+4}, v{t+5}")
    k(f"v_add_f32 v{t+6}, v{t+6}, v{t+7}")
    k(f"v_add_f32 v{t}, v{t}, v{t+2}")
    k(f"v_add_f32 v{t+4}, v{t+4}, v{t+6}")
    xhalf_add(k, t, t + 1)
    xhalf_add(k, t + 4, t + 1)
    ln_stats(k, t, t + 4, t + 8, t + 9, t + 10)
    k("s_mov_b32 s11, 0xffff0000")
    U = 4
    for i0 in range(0, 96, U):
        tt = [t + 16 + 4 * u for u in range(U)]
        for u in range(U):
            k(f"v_lshlrev_b32 v{tt[u]}, 16, v{AF+i0+u}")
            k(f"v_and_b32 v{tt[u]+1}, s11, v{AF+i0+u}")
        for u in range(U):
            k(f"v_sub_f32 v{tt[u]}, v{tt[u]}, v{t+8}")
            k(f"v_sub_f32 v{tt[u]+1}, v{tt[u]+1}, v{t+8}")
        for u in range(U):
            k(f"v_cvt_pk_bf16_f32 v{tt[u]+2}, v{tt[u]}, v{tt[u]+1}")
        for u in range(U):
            k(f"v_lshlrev_b32 v{tt[u]}, 16, v{tt[u]+2}")
            k(f"v_and_b32 v{tt[u]+1}, s11, v{tt[u]+2}")
        for u in range(U):
            k(f"v_mul_f32 v{tt[u]}, v{tt[u]}, v{t+9}")
            k(f"v_mul_f32 v{tt[u]+1}, v{tt[u]+1}, v{t+9}")
        for u in range(U):
            k(f"v_cvt_pk_bf16_f32 v{AF+i0+u}, v{tt[u]}, v{tt[u]+1}")
    k("s_nop 1")
    gemm_main(k, True)
    k("v_mul_u32_u24 v4, 2304, v11")
    k("s_mul_i32 s6, s5, 384")
    k("v_lshl_add_u32 v4, v3, 3, v4")
    k("v_add_u32 v4, s6, v4")
    for ct in range(6):
        for j in range(4):
            a = ACC + ct * 16 + 4 * j
            d = BB + ((ct * 4 + j) % 12) * 2
            k(f"v_cvt_pk_bf16_f32 v{d}, v{a}, v{a+1}")
            k(f"v_cvt_pk_bf16_f32 v{d+1}, v{a+2}, v{a+3}")
            k.vmem(f"buffer_store_dwordx2 v[{d}:{d+1}], v4, s[40:43], 0 offen offset:{ct*64+j*16}")
    k("s_endpgm")
    k.label(f"{name}_prep")
    k("s_sub_u32 s4, s2, 240")
    k("s_lshr_b32 s5, s4, 3")
    k("s_and_b32 s4, s4, 7")
    k("s_cmp_eq_u32 s5, 0")
    k("s_cselect_b32 s6, s20, s24")
    k("s_cselect_b32 s7, s21, s25")
    k(f"s_mov_b32 s9, {WS_WOFS}")
    k(f"s_cselect_b32 s8, {WS_WOFT}, s9")
    k("s_mov_b32 s32, s6")
    k("s_mov_b32 s33, s7")
    k(f"s_mov_b32 s34, {WO_BYTES}")
    k("s_mov_b32 s35, 0x00020000")
    k("s_add_u32 s36, s30, s8")
    k("s_addc_u32 s37, s31, 0")
    k(f"s_mov_b32 s38, {WO_BYTES}")
    k("s_mov_b32 s39, 0x00020000")
    k("v_mul_u32_u24 v4, 3072, v3")
    k("v_lshl_add_u32 v4, v2, 1, v4")
    k("v_lshlrev_b32 v5, 4, v1")
    k("s_mul_i32 s9, s4, 36")
    k("s_mul_i32 s10, s3, 9")
    k("s_add_u32 s9, s9, s10")
    for i in range(9):
        k(f"s_add_u32 s10, s9, {i}")
        k("s_mul_hi_u32 s11, s10, 0x0AAAAAAB")
        k("s_mul_i32 s12, s11, 24")
        k("s_sub_u32 s12, s10, s12")
        k("s_mul_i32 s12, s12, 12288")
        k("s_lshl_b32 s11, s11, 6")
        k("s_add_u32 s12, s12, s11")
        k("s_add_u32 s13, s12, 6144")
        k("s_lshl_b32 s14, s10, 10")
        d = 16 + i * 8
        for e in range(8):
            so = "s12" if e < 4 else "s13"
            k.vmem(f"buffer_load_ushort v{d+e}, v4, s[32:35], {so} offen offset:{(e&3)*768}", tag=f"p{i}")
        k(f"s_mov_b32 s{48+i}, s14")
    for i in range(9):
        k.vmwait(f"p{i}")
        d = 16 + i * 8
        for e in range(4):
            k(f"v_lshl_or_b32 v{128+i*4+e}, v{d+2*e+1}, 16, v{d+2*e}")
        k.vmem(f"buffer_store_dwordx4 {vr(128+i*4)}, v5, s[36:39], s{48+i} offen")
    k.label(f"{name}_end")
    k("s_endpgm")
    return k.text()

def gen_KC():
    k = K()
    name = "kc_kernel"
    prologue(k, name, 252)
    k("s_mul_hi_u32 s4, s2, 0x2AAAAAAB")
    k("s_mul_i32 s5, s4, 6")
    k("s_sub_u32 s5, s2, s5")
    k("s_mul_hi_u32 s12, s4, 0x2AAAAAAB")
    k("s_mul_i32 s13, s12, 6")
    k("s_sub_u32 s13, s4, s13")
    k.srd(32, 30, WS_H2, PAD_BYTES)
    k.srd(36, 22, 0, WQKV_BYTES)
    k("s_lshl_b32 s6, s13, 7")
    k("s_lshl_b32 s7, s3, 5")
    k("s_add_u32 s14, s6, s7")
    k("v_add_u32 v5, s14, v2")
    k("s_mul_i32 s6, s12, 768")
    k("v_add_u32 v11, s6, v5")
    k("v_mul_u32_u24 v6, 768, v11")
    k("v_lshl_add_u32 v6, v3, 4, v6")
    k(f"v_cmp_gt_u32 vcc, {N}, v5")
    k(f"v_mov_b32 v7, {hex(BIG)}")
    k("s_nop 1")
    k("v_cndmask_b32 v7, v7, v6, vcc")
    for s in range(24):
        k.vmem(f"buffer_load_dwordx4 {vr(AF+4*s)}, v7, s[32:35], 0 offen offset:{32*s}", tag="x")
    gemm_w_dma_setup(k)
    gemm_w_dma(k, 36)
    gemm_tr_setup(k)
    k("s_cmp_ge_u32 s5, 4")
    k(f"s_cbranch_scc1 {name}_v")
    vm_save, lg_save = list(k.vm), list(k.lg)
    k.vmwait("x")
    gemm_main(k, True)
    k("s_cmp_ge_u32 s5, 2")
    k(f"s_mov_b32 s7, {WS_QS}")
    k(f"s_cselect_b32 s6, {WS_KS}, s7")
    k("s_add_u32 s40, s30, s6")
    k("s_addc_u32 s41, s31, 0")
    k(f"s_mov_b32 s42, {PAD_BYTES}")
    k("s_mov_b32 s43, 0x00020000")
    k("s_and_b32 s6, s5, 1")
    k("s_mul_i32 s6, s6, 384")
    k("v_mul_u32_u24 v4, 768, v11")
    k("v_lshl_add_u32 v4, v3, 3, v4")
    k("v_add_u32 v4, s6, v4")
    for ct in range(6):
        for j in range(4):
            a = ACC + ct * 16 + 4 * j
            d = BB + ((ct * 4 + j) % 12) * 2
            k(f"v_cvt_pk_bf16_f32 v{d}, v{a}, v{a+1}")
            k(f"v_cvt_pk_bf16_f32 v{d+1}, v{a+2}, v{a+3}")
            k.vmem(f"buffer_store_dwordx2 v[{d}:{d+1}], v4, s[40:43], 0 offen offset:{ct*64+j*16}")
    k("s_endpgm")
    k.label(f"{name}_v")
    k.vm, k.lg = vm_save, lg_save
    k.vmwait("x")
    gemm_main(k, False)
    k.srd(40, 30, WS_VT, PAD_BYTES)
    k("s_sub_u32 s6, s5, 4")
    k("s_mul_i32 s6, s6, 192")
    k("v_add_u32 v4, s6, v2")
    k("v_mul_u32_u24 v4, 1536, v4")
    k("v_lshl_add_u32 v4, v3, 4, v4")
    k("s_mul_i32 s6, s12, 589824")
    k("s_lshl_b32 s7, s14, 1")
    k("s_add_u32 s6, s6, s7")
    k("v_add_u32 v4, s6, v4")
    for ct in range(6):
        if ct:
            k(f"v_add_u32 v4, {32*1536}, v4")
        for g in range(2):
            a = ACC + ct * 16 + 8 * g
            d = BB + ((ct * 2 + g) % 12) * 4
            for e in range(4):
                k(f"v_cvt_pk_bf16_f32 v{d+e}, v{a+2*e}, v{a+2*e+1}")
            k.vmem(f"buffer_store_dwordx4 {vr(d)}, v4, s[40:43], 0 offen offset:{g*32}")
        k("s_nop 1")
    k.label(f"{name}_end")
    k("s_endpgm")
    return k.text()

VP = 832
def gen_KB():
    k = K()
    name = "kb_kernel"
    prologue(k, name, 183)
    KF, QF = 16, 112
    SA = 208
    PF = 224
    k.srd(32, 30, WS_QKVT, M1 * 2304)
    k.srd(36, 30, WS_WOFT, WO_BYTES)
    k.srd(40, 16, 0, X_BYTES)
    k.srd(44, 30, WS_X1, PAD_BYTES)
    k.srd(48, 30, WS_H2, PAD_BYTES)
    k("s_mul_i32 s4, s2, 28")
    k("v_add_u32 v4, s4, v2")
    k("v_mul_u32_u24 v4, 2304, v4")
    k("v_lshl_add_u32 v4, v3, 4, v4")
    for s in range(24):
        k.vmem(f"buffer_load_dwordx4 {vr(KF+4*s)}, v4, s[32:35], 0 offen offset:{768+32*s}", tag=f"kq{s}")
        k.vmem(f"buffer_load_dwordx4 {vr(QF+4*s)}, v4, s[32:35], 0 offen offset:{32*s}", tag=f"kq{s}")
    k("v_lshlrev_b32 v5, 4, v1")
    k("v_add_u32 v5, 1536, v5")
    k("s_lshl_b32 s5, s3, 3")
    k("s_add_u32 s6, s4, s5")
    k("s_mul_i32 s6, s6, 2304")
    k(f"s_mul_i32 s7, s5, {VP}")
    k("v_cmp_gt_u32 vcc, 48, v1")
    k("s_and_saveexec_b64 s[12:13], vcc")
    for r in range(8):
        k(f"s_add_u32 m0, s7, {r*VP}")
        k(f"s_add_u32 s8, s6, {r*2304}")
        k("s_nop 0")
        k.vmem("buffer_load_dwordx4 v5, s[32:35], s8 offen lds", tag="v")
    k("s_mov_b64 exec, s[12:13]")
    k("v_mul_u32_u24 v6, 9363, v2")
    k("v_lshrrev_b32 v6, 16, v6")
    k("v_mul_u32_u24 v7, 7, v6")
    k("v_sub_u32 v8, v2, v7")
    k("s_lshl_b32 s5, s2, 2")
    k("v_add_u32 v9, s5, v6")
    k("v_mul_u32_u24 v10, 729, v8")
    k("v_add_u32 v10, v10, v9")
    k("v_mul_u32_u24 v10, 768, v10")
    k("v_mul_u32_u24 v11, 768, v8")
    k("v_add_u32 v11, v11, v9")
    k("v_mul_u32_u24 v11, 768, v11")
    k("s_mul_i32 s5, s3, 192")
    k("v_lshl_add_u32 v12, v3, 3, s5")
    k("v_add_u32 v10, v10, v12")
    k("v_add_u32 v11, v11, v12")
    k(f"v_cmp_gt_u32 vcc, {N}, v9")
    k("s_mov_b64 s[12:13], vcc")
    k("v_cmp_gt_u32 vcc, 28, v2")
    k(f"v_mov_b32 v12, {hex(BIG)}")
    k("s_nop 1")
    k("s_and_b64 vcc, vcc, s[12:13]")
    k("s_nop 1")
    k("v_cndmask_b32 v10, v12, v10, vcc")
    k("v_cndmask_b32 v11, v12, v11, vcc")
    k("v_lshl_add_u32 v7, v3, 2, 0")
    k("v_mul_u32_u24 v12, 7, v6")
    k("v_sub_u32 v7, v12, v7")
    R = 36
    k("v_lshlrev_b32 v13, 4, v1")
    k("s_mul_i32 s9, s3, 73728")
    wo_issued = [0]
    def wo_issue(n):
        for _ in range(n):
            i = wo_issued[0]
            if i >= 72: return
            s, j = i // 3, i % 3
            off = (j * 24 + s) * 1024
            k(f"s_add_u32 s10, s9, {off & ~4095}")
            k.vmem(f"buffer_load_dwordx4 {ar((i % R)*4)}, v13, s[36:39], s10 offen offset:{off & 4095}", tag=f"wo{i}")
            wo_issued[0] += 1
    for g in range(6):
        k.vmwait(f"kq{4*g+3}")
        for s in range(4 * g, 4 * g + 4):
            c = vr(SA, 16) if s else "0"
            k(f"v_mfma_f32_32x32x16_bf16 {vr(SA,16)}, {vr(KF+4*s)}, {vr(QF+4*s)}, {c}")
        wo_issue(6)
    k("s_nop 15")
    XR = 176
    for j in range(3):
        for q in range(4):
            k.vmem(f"buffer_load_dwordx2 v[{XR+(j*4+q)*2}:{XR+(j*4+q)*2+1}], v10, s[40:43], 0 offen offset:{j*64+q*16}", tag="xr")
    k(f"s_mov_b32 s10, {hex(f2u(SCALE))}")
    k("s_mov_b32 s11, 0xffff0000")
    k(f"s_mov_b32 s12, {hex(f2u(LOG2E))}")
    k("v_mov_b32 v14, 0xff800000")
    T0 = 112
    for p in range(8):
        a = SA + 2 * p
        if 'noround' in FL:
            k(f"v_mul_f32 v{a}, s10, v{a}")
            k(f"v_mul_f32 v{a+1}, s10, v{a+1}")
            continue
        k(f"v_cvt_pk_bf16_f32 v{T0}, v{a}, v{a+1}")
        k(f"v_lshlrev_b32 v{a}, 16, v{T0}")
        k(f"v_and_b32 v{a+1}, s11, v{T0}")
        k(f"v_mul_f32 v{a}, s10, v{a}")
        k(f"v_mul_f32 v{a+1}, s10, v{a+1}")
        k(f"v_cvt_pk_bf16_f32 v{T0}, v{a}, v{a+1}")
        k(f"v_lshlrev_b32 v{a}, 16, v{T0}")
        k(f"v_and_b32 v{a+1}, s11, v{T0}")
    for r in range(16):
        cr = 8 * (r >> 2) + (r & 3)
        k(f"v_sub_u32 v{T0}, {cr}, v7")
        k(f"v_cmp_gt_u32 vcc, 7, v{T0}")
        k("s_nop 1")
        k(f"v_cndmask_b32 v{SA+r}, v14, v{SA+r}, vcc")
    MX = T0 + 1
    k(f"v_max_f32 v{MX}, v{SA}, v{SA+1}")
    for r in range(2, 16):
        k(f"v_max_f32 v{MX}, v{MX}, v{SA+r}")
    xhalf_max(k, MX, T0 + 2)
    k(f"v_max_f32 v{MX}, 0xff7fffff, v{MX}")
    k(f"v_mul_f32 v{T0+3}, s12, v{MX}")
    SUM = T0 + 4
    for r in range(16):
        k(f"v_fma_f32 v{SA+r}, v{SA+r}, s12, -v{T0+3}")
    for r in range(16):
        k(f"v_exp_f32 v{SA+r}, v{SA+r}")
    k("s_nop 0")
    k(f"v_add_f32 v{SUM}, v{SA}, v{SA+1}")
    for r in range(2, 16):
        k(f"v_add_f32 v{SUM}, v{SUM}, v{SA+r}")
    xhalf_add(k, SUM, T0 + 2)
    k(f"v_rcp_f32 v{SUM}, v{SUM}")
    k("s_nop 0")
    for r in range(16):
        k(f"v_mul_f32 v{SA+r}, v{SA+r}, v{SUM}")
    for p in range(8):
        k(f"v_cvt_pk_bf16_f32 v{PF+p}, v{SA+2*p}, v{SA+2*p+1}")
    k.vmwait("v")
    k("s_barrier")
    k("v_and_b32 v4, 15, v1")
    k("v_lshrrev_b32 v5, 2, v4")
    k("v_and_b32 v4, 3, v4")
    k("v_lshl_add_u32 v5, v3, 2, v5")
    k(f"v_mul_u32_u24 v5, {VP}, v5")
    k("v_lshl_add_u32 v5, v4, 3, v5")
    k("v_bfe_u32 v4, v1, 4, 1")
    k("v_lshl_add_u32 v5, v4, 5, v5")
    OF = 16
    OA = [120, 136]
    VF = [152, 160]
    def vreads(ct):
        b = VF[ct & 1]
        for sp in range(2):
            for q in range(2):
                off = (16 * sp + 8 * q) * VP + ct * 64
                k.ds(f"ds_read_b64_tr_b16 v[{b+sp*4+q*2}:{b+sp*4+q*2+1}], v5 offset:{off}", tag=f"vf{ct}")
    def ocvt(ct):
        a = OA[ct & 1]
        for e in range(8):
            k(f"v_cvt_pk_bf16_f32 v{OF+ct*8+e}, v{a+2*e}, v{a+2*e+1}")
    vreads(0)
    for ct in range(12):
        if ct + 1 < 12: vreads(ct + 1)
        k.lgwait(f"vf{ct}")
        b = VF[ct & 1]; a = OA[ct & 1]
        k(f"v_mfma_f32_32x32x16_bf16 {vr(a,16)}, {vr(b)}, {vr(PF)}, 0")
        k(f"v_mfma_f32_32x32x16_bf16 {vr(a,16)}, {vr(b+4)}, {vr(PF+4)}, {vr(a,16)}")
        if ct >= 1:
            k("s_nop 7")
            ocvt(ct - 1)
    k("s_nop 15")
    ocvt(11)
    k("s_nop 1")
    YA = 128
    for i in range(72):
        s, j = i // 3, i % 3
        k.vmwait(f"wo{i}")
        c = vr(YA + j * 16, 16) if s else "0"
        k(f"v_mfma_f32_32x32x16_bf16 {vr(YA+j*16,16)}, {ar((i%R)*4)}, {vr(OF+4*s)}, {c}")
        wo_issue(1)
    k("s_nop 15")
    k.vmwait("xr")
    S1, S2 = 16, 17
    k(f"v_mov_b32 v{S1}, 0")
    k(f"v_mov_b32 v{S2}, 0")
    for jq in range(12):
        for e in range(2):
            a = YA + jq * 4 + 2 * e
            x = XR + jq * 2 + e
            k(f"v_cvt_pk_bf16_f32 v20, v{a}, v{a+1}")
            k(f"v_lshlrev_b32 v{a}, 16, v20")
            k(f"v_and_b32 v{a+1}, s11, v20")
            k(f"v_lshlrev_b32 v21, 16, v{x}")
            k(f"v_and_b32 v22, s11, v{x}")
            k(f"v_add_f32 v{a}, v{a}, v21")
            k(f"v_add_f32 v{a+1}, v{a+1}, v22")
            k(f"v_cvt_pk_bf16_f32 v{x}, v{a}, v{a+1}")
            k(f"v_lshlrev_b32 v{a}, 16, v{x}")
            k(f"v_and_b32 v{a+1}, s11, v{x}")
            k(f"v_add_f32 v{S1}, v{S1}, v{a}")
            k(f"v_fmac_f32 v{S2}, v{a}, v{a}")
            k(f"v_add_f32 v{S1}, v{S1}, v{a+1}")
            k(f"v_fmac_f32 v{S2}, v{a+1}, v{a+1}")
    for j in range(3):
        for q in range(4):
            x = XR + (j * 4 + q) * 2
            k.vmem(f"buffer_store_dwordx2 v[{x}:{x+1}], v11, s[44:47], 0 offen offset:{j*64+q*16}")
    xhalf_add(k, S1, 20)
    xhalf_add(k, S2, 20)
    LB = 32 * VP
    k("v_lshlrev_b32 v20, 3, v2")
    k("s_lshl_b32 s5, s3, 8")
    k("v_add_u32 v21, s5, v20")
    k.ds(f"ds_write_b64 v21, v[{S1}:{S2}] offset:{LB}")
    k.lgwait_all()
    k("s_barrier")
    for w in range(4):
        k.ds(f"ds_read_b64 v[{24+2*w}:{25+2*w}], v20 offset:{LB+256*w}")
    k.lgwait_all()
    k("v_add_f32 v24, v24, v26")
    k("v_add_f32 v25, v25, v27")
    k("v_add_f32 v28, v28, v30")
    k("v_add_f32 v29, v29, v31")
    k("v_add_f32 v24, v24, v28")
    k("v_add_f32 v25, v25, v29")
    ln_stats(k, 24, 25, 26, 27, 28)
    for jq in range(12):
        for e in range(2):
            a = YA + jq * 4 + 2 * e
            d = 32 + jq * 2 + e
            k(f"v_sub_f32 v{a}, v{a}, v26")
            k(f"v_sub_f32 v{a+1}, v{a+1}, v26")
            k(f"v_cvt_pk_bf16_f32 v20, v{a}, v{a+1}")
            k(f"v_lshlrev_b32 v{a}, 16, v20")
            k(f"v_and_b32 v{a+1}, s11, v20")
            k(f"v_mul_f32 v{a}, v{a}, v27")
            k(f"v_mul_f32 v{a+1}, v{a+1}, v27")
            k(f"v_cvt_pk_bf16_f32 v{d}, v{a}, v{a+1}")
    for j in range(3):
        for q in range(4):
            d = 32 + (j * 4 + q) * 2
            k.vmem(f"buffer_store_dwordx2 v[{d}:{d+1}], v11, s[48:51], 0 offen offset:{j*64+q*16}")
    k.label(f"{name}_end")
    k("s_endpgm")
    return k.text()

def gen_KD():
    k = K()
    name = "kd_kernel"
    prologue(k, name, 161)
    k("s_and_b32 s4, s2, 7")
    k("s_lshr_b32 s5, s2, 3")
    k("s_mul_i32 s6, s4, 20")
    k("s_min_u32 s7, s4, 1")
    k("s_add_u32 s6, s6, s7")
    k("s_add_u32 s6, s6, s5")
    k(f"s_mul_hi_u32 s4, s6, {((1<<32)+22)//23}")
    k("s_mul_i32 s5, s4, 23")
    k("s_sub_u32 s5, s6, s5")
    k.srd(32, 30, WS_QS, PAD_BYTES)
    k.srd(36, 30, WS_KS, PAD_BYTES)
    k.srd(40, 30, WS_VT, PAD_BYTES)
    k.srd(44, 30, WS_WOFS, WO_BYTES)
    k.srd(48, 30, WS_X1, PAD_BYTES)
    k.srd(52, 26, 0, X_BYTES)
    QF = 0
    RB = 96
    R = 40
    SA = 64
    k("s_mul_i32 s6, s4, 768")
    k("s_lshl_b32 s7, s5, 5")
    k("s_add_u32 s6, s6, s7")
    k("v_add_u32 v4, s6, v2")
    k("v_mul_u32_u24 v4, 768, v4")
    k("v_lshl_add_u32 v4, v3, 4, v4")
    for s in range(24):
        k.vmem(f"buffer_load_dwordx4 {ar(QF+4*s)}, v4, s[32:35], 0 offen offset:{32*s}", tag="q")
    k("v_mul_u32_u24 v5, 768, v2")
    k("v_lshl_add_u32 v5, v3, 4, v5")
    k("s_mul_i32 s8, s4, 589824")
    k("s_mul_i32 s9, s3, 147456")
    k("s_add_u32 s8, s8, s9")
    k("v_mul_u32_u24 v6, 1536, v2")
    k("v_lshl_add_u32 v6, v3, 4, v6")
    k("s_mul_i32 s10, s4, 589824")
    k("s_mul_i32 s11, s3, 147456")
    k("s_add_u32 s10, s10, s11")
    k("v_lshlrev_b32 v7, 4, v1")
    k("s_mul_i32 s11, s3, 73728")
    items = []
    for kt in range(6):
        for s in range(24):
            items.append(("k", kt, s))
    NS2 = 46
    for s in range(NS2):
        for ct in range(3):
            items.append(("v", ct, s))
    for s in range(24):
        for j in range(3):
            items.append(("w", j, s))
    issued = [0]
    def issue(n=1):
        for _ in range(n):
            i = issued[0]
            if i >= len(items): return
            kind, a, s = items[i]
            d = ar(RB + (i % R) * 4)
            if kind == "k":
                k(f"s_add_u32 s12, s8, {a*24576}")
                k.vmem(f"buffer_load_dwordx4 {d}, v5, s[36:39], s12 offen offset:{32*s}", tag=f"i{i}")
            elif kind == "v":
                k(f"s_add_u32 s12, s10, {a*49152}")
                k.vmem(f"buffer_load_dwordx4 {d}, v6, s[40:43], s12 offen offset:{32*s}", tag=f"i{i}")
            else:
                off = (a * 24 + s) * 1024
                k(f"s_add_u32 s12, s11, {off & ~4095}")
                k.vmem(f"buffer_load_dwordx4 {d}, v7, s[44:47], s12 offen offset:{off & 4095}", tag=f"i{i}")
            issued[0] += 1
    issue(R)
    k.vmwait("q")
    it = 0
    for kt in range(6):
        for s in range(24):
            k.vmwait(f"i{it}")
            c = vr(SA + kt * 16, 16) if s else "0"
            k(f"v_mfma_f32_32x32x16_bf16 {vr(SA+kt*16,16)}, {ar(RB+(it%R)*4)}, {ar(QF+4*s)}, {c}")
            issue(1)
            it += 1
    k("s_nop 15")
    k(f"s_mov_b32 s13, {hex(f2u(SCALE))}")
    k("s_mov_b32 s14, 0xffff0000")
    k(f"s_mov_b32 s15, {hex(f2u(LOG2E))}")
    for p0 in range(0, 48, 4):
        if 'noround' in FL:
            for u in range(8):
                k(f"v_mul_f32 v{SA+2*p0+u}, s13, v{SA+2*p0+u}")
            continue
        for u in range(4):
            a = SA + 2 * (p0 + u)
            k(f"v_cvt_pk_bf16_f32 v{16+u}, v{a}, v{a+1}")
        for u in range(4):
            a = SA + 2 * (p0 + u)
            k(f"v_lshlrev_b32 v{a}, 16, v{16+u}")
            k(f"v_and_b32 v{a+1}, s14, v{16+u}")
        for u in range(4):
            a = SA + 2 * (p0 + u)
            k(f"v_mul_f32 v{a}, s13, v{a}")
            k(f"v_mul_f32 v{a+1}, s13, v{a+1}")
        for u in range(4):
            a = SA + 2 * (p0 + u)
            k(f"v_cvt_pk_bf16_f32 v{16+u}, v{a}, v{a+1}")
        for u in range(4):
            a = SA + 2 * (p0 + u)
            k(f"v_lshlrev_b32 v{a}, 16, v{16+u}")
            k(f"v_and_b32 v{a+1}, s14, v{16+u}")
    k("s_cmp_lg_u32 s3, 3")
    k(f"s_cbranch_scc1 {name}_nomask")
    k("v_mov_b32 v16, 0xff800000")
    k("v_lshlrev_b32 v17, 2, v3")
    for r in range(16):
        cr = 8 * (r >> 2) + (r & 3)
        a = SA + 4 * 16 + r
        if cr + 4 < 25:
            continue
        if cr >= 25:
            k(f"v_mov_b32 v{a}, v16")
        else:
            k(f"v_cmp_gt_u32 vcc, {25-cr}, v17")
            k("s_nop 1")
            k(f"v_cndmask_b32 v{a}, v16, v{a}, vcc")
    for r in range(16):
        k(f"v_mov_b32 v{SA+5*16+r}, v16")
    k.label(f"{name}_nomask")
    k(f"v_max3_f32 v16, v{SA}, v{SA+1}, v{SA+2}")
    k(f"v_max3_f32 v17, v{SA+3}, v{SA+4}, v{SA+5}")
    for r in range(6, 96, 4):
        k(f"v_max3_f32 v16, v16, v{SA+r}, v{SA+r+1}")
        if r + 3 < 96:
            k(f"v_max3_f32 v17, v17, v{SA+r+2}, v{SA+r+3}")
    k("v_max_f32 v16, v16, v17")
    xhalf_max(k, 16, 17)
    ST = 0
    OX = 1024
    PLB = 25600
    PL = 0
    k(f"v_add_u32 v8, {PLB}, v7")
    k("v_lshlrev_b32 v18, 2, v2")
    k("s_lshl_b32 s12, s3, 7")
    k("v_add_u32 v19, s12, v18")
    k.ds(f"ds_write_b32 v19, v16 offset:{ST}")
    k.lgwait_all()
    k("s_barrier")
    for w in range(4):
        k.ds(f"ds_read_b32 v{20+w}, v18 offset:{ST+128*w}")
    k.lgwait_all()
    k("v_max3_f32 v16, v20, v21, v22")
    k("v_max_f32 v16, v16, v23")
    k("v_mul_f32 v16, s15, v16")
    for r in range(96):
        k(f"v_fma_f32 v{SA+r}, v{SA+r}, s15, -v16")
    for r in range(96):
        k(f"v_exp_f32 v{SA+r}, v{SA+r}")
    k("s_nop 0")
    k(f"v_add_f32 v20, v{SA}, v{SA+1}")
    k(f"v_add_f32 v21, v{SA+2}, v{SA+3}")
    for r in range(4, 96, 2):
        k(f"v_add_f32 v20, v20, v{SA+r}")
        k(f"v_add_f32 v21, v21, v{SA+r+1}")
    k("v_add_f32 v20, v20, v21")
    xhalf_add(k, 20, 21)
    k.ds(f"ds_write_b32 v19, v20 offset:{ST+512}")
    k.lgwait_all()
    k("s_barrier")
    for w in range(4):
        k.ds(f"ds_read_b32 v{20+w}, v18 offset:{ST+512+128*w}")
    k.lgwait_all()
    k("v_add_f32 v20, v20, v21")
    k("v_add_f32 v22, v22, v23")
    k("v_add_f32 v20, v20, v22")
    k("v_rcp_f32 v20, v20")
    k("s_nop 0")
    k("s_mul_i32 s12, s3, 12288")
    k("v_add_u32 v19, s12, v8")
    for kt in range(6):
        for sp in range(2):
            a = SA + kt * 16 + sp * 8
            for e in range(8):
                k(f"v_mul_f32 v{a+e}, v{a+e}, v20")
            d = 24 + ((kt * 2 + sp) & 1) * 4
            for e in range(4):
                k(f"v_cvt_pk_bf16_f32 v{d+e}, v{a+2*e}, v{a+2*e+1}")
            k.ds(f"ds_write_b128 v19, {vr(d)} offset:{PL+(kt*2+sp)*1024}")
    k.lgwait_all()
    k("s_barrier")
    OA = 64
    PB = 32
    PR = 8
    def pread(s):
        k.ds(f"ds_read_b128 {vr(PB+(s%PR)*4)}, v8 offset:{PL+s*1024}", tag=f"p{s}")
    for s in range(min(PR - 1, NS2)):
        pread(s)
    for s in range(NS2):
        if s + PR - 1 < NS2: pread(s + PR - 1)
        k.lgwait(f"p{s}")
        for ct in range(3):
            k.vmwait(f"i{it}")
            c = vr(OA + ct * 16, 16) if s else "0"
            k(f"v_mfma_f32_32x32x16_bf16 {vr(OA+ct*16,16)}, {ar(RB+(it%R)*4)}, {vr(PB+(s%PR)*4)}, {c}")
            issue(1)
            it += 1
    k("s_nop 15")
    k("s_mul_i32 s12, s3, 192")
    k("v_add_u32 v16, s6, v2")
    k("v_mul_u32_u24 v16, 768, v16")
    k("v_lshl_add_u32 v17, v3, 3, s12")
    k("v_add_u32 v16, v16, v17")
    XR = 112
    for j in range(3):
        for q in range(4):
            k.vmem(f"buffer_load_dwordx2 v[{XR+(j*4+q)*2}:{XR+(j*4+q)*2+1}], v16, s[48:51], 0 offen offset:{j*64+q*16}", tag="xr")
    k("s_lshl_b32 s12, s5, 5")
    k("v_add_u32 v18, s12, v2")
    k("s_mul_i32 s12, s4, 729")
    k("v_add_u32 v19, s12, v18")
    k("v_mul_u32_u24 v19, 768, v19")
    k("v_add_u32 v19, v19, v17")
    k(f"v_cmp_gt_u32 vcc, {N}, v18")
    k(f"v_mov_b32 v18, {hex(BIG)}")
    k("s_nop 1")
    k("v_cndmask_b32 v19, v18, v19, vcc")
    k("s_mul_i32 s12, s3, 6144")
    k("v_add_u32 v18, s12, v7")
    for ct in range(3):
        for sp in range(2):
            a = OA + ct * 16 + sp * 8
            d = 24 + ((ct * 2 + sp) & 1) * 4
            for e in range(4):
                k(f"v_cvt_pk_bf16_f32 v{d+e}, v{a+2*e}, v{a+2*e+1}")
            k.ds(f"ds_write_b128 v18, {vr(d)} offset:{OX+(ct*2+sp)*1024}")
    k.lgwait_all()
    k("s_barrier")
    YA = 64
    def oread(s):
        k.ds(f"ds_read_b128 {vr(PB+(s%PR)*4)}, v7 offset:{OX+s*1024}", tag=f"o{s}")
    for s in range(PR - 1):
        oread(s)
    for s in range(24):
        if s + PR - 1 < 24: oread(s + PR - 1)
        k.lgwait(f"o{s}")
        for j in range(3):
            k.vmwait(f"i{it}")
            c = vr(YA + j * 16, 16) if s else "0"
            k(f"v_mfma_f32_32x32x16_bf16 {vr(YA+j*16,16)}, {ar(RB+(it%R)*4)}, {vr(PB+(s%PR)*4)}, {c}")
            issue(1)
            it += 1
    k("s_nop 15")
    k.vmwait("xr")
    for jq in range(12):
        for e in range(2):
            a = YA + jq * 4 + 2 * e
            x = XR + jq * 2 + e
            k(f"v_cvt_pk_bf16_f32 v20, v{a}, v{a+1}")
            k(f"v_lshlrev_b32 v{a}, 16, v20")
            k(f"v_and_b32 v{a+1}, s14, v20")
            k(f"v_lshlrev_b32 v21, 16, v{x}")
            k(f"v_and_b32 v22, s14, v{x}")
            k(f"v_add_f32 v{a}, v{a}, v21")
            k(f"v_add_f32 v{a+1}, v{a+1}, v22")
            k(f"v_cvt_pk_bf16_f32 v{x}, v{a}, v{a+1}")
    for j in range(3):
        for q in range(4):
            x = XR + (j * 4 + q) * 2
            k.vmem(f"buffer_store_dwordx2 v[{x}:{x+1}], v19, s[52:55], 0 offen offset:{j*64+q*16}")
    k.label(f"{name}_end")
    k("s_endpgm")
    return k.text()

HEADER = """; TimeSformer divided space-time attention block, gfx950.  Generated by gen.py (own generator).
; @launch kernel=ka_kernel grid=(256,1,1) block=(256,1,1) lds=147456
; @launch kernel=kb_kernel grid=(183,1,1) block=(256,1,1) lds=28672
; @launch kernel=kc_kernel grid=(252,1,1) block=(256,1,1) lds=147456
; @launch kernel=kd_kernel grid=(161,1,1) block=(256,1,1) lds=74752
.amdgcn_target "amdgcn-amd-amdhsa--gfx950"
.text
"""

def desc(name, vgpr, accum):
    return f""".amdhsa_kernel {name}
  .amdhsa_next_free_vgpr {vgpr}
  .amdhsa_next_free_sgpr 102
  .amdhsa_accum_offset {accum}
  .amdhsa_group_segment_fixed_size 0
  .amdhsa_kernarg_size 64
  .amdhsa_user_sgpr_count 2
  .amdhsa_user_sgpr_kernarg_segment_ptr 1
  .amdhsa_system_sgpr_workgroup_id_x 1
  .amdhsa_float_denorm_mode_32 3
.end_amdhsa_kernel
"""

def main():
    out = HEADER
    for name, g in (("ka_kernel", gen_KA), ("kb_kernel", gen_KB), ("kc_kernel", gen_KC), ("kd_kernel", gen_KD)):
        out += f".globl {name}\n.p2align 8\n.type {name},@function\n" + g()
    out += '.section .rodata,"a"\n.p2align 6\n'
    out += desc("ka_kernel", 256, 256)
    out += ".p2align 6\n" + desc("kb_kernel", 512, 256)
    out += ".p2align 6\n" + desc("kc_kernel", 256, 256)
    out += ".p2align 6\n" + desc("kd_kernel", 512, 256)
    path = sys.argv[1] if len(sys.argv) > 1 else "standalone__video_timesformer__vision.s"
    open(path, "w").write(out)
    print("wrote", path, len(out))

if __name__ == "__main__":
    main()
```

```python
import sys, os
FL = os.environ.get('GENFLAGS','').split(',')

T, N, C = 7, 729, 384
NP = 768
M1 = N * T
X_BYTES = T * N * C * 2
WQKV_BYTES = C * 3 * C * 2
WO_BYTES = C * C * 2
MiB = 1 << 20
WS_QKVT = 0
QKVT_BYTES = 5120 * 2304
WS_X1 = 12 * MiB
WS_H2 = 17 * MiB
WS_QS = 22 * MiB
WS_KS = 27 * MiB
WS_VT = 32 * MiB
WS_WOFT = 37 * MiB
WS_WOFS = 38 * MiB
PAD_BYTES = T * NP * C * 2
BIG = 0x7f000000
SCALE = C ** -0.5
import struct
def f2u(f): return struct.unpack('<I', struct.pack('<f', f))[0]
LOG2E = 1.4426950408889634

class K:
    def __init__(self):
        self.L = []
        self.vm = []
        self.lg = []
    def __call__(self, s):
        self.L.append("    " + s)
    def label(self, l):
        self.L.append(l + ":")
    def c(self, s):
        self.L.append("    ; " + s)
    def vmem(self, s, tag=None):
        if 'nostore' in FL and s.startswith('buffer_store'): return
        if 'noxload' in FL and tag == 'x' and 'offset:0' not in s: return
        self(s); self.vm.append(tag)
    def vmwait(self, tag):
        idx = max(i for i, t in enumerate(self.vm) if t == tag)
        n = len(self.vm) - 1 - idx
        self(f"s_waitcnt vmcnt({min(n,63)})")
    def vmwait_all(self):
        self("s_waitcnt vmcnt(0)")
    def ds(self, s, tag=None):
        self(s); self.lg.append(tag)
    def lgwait(self, tag):
        idx = max(i for i, t in enumerate(self.lg) if t == tag)
        n = len(self.lg) - 1 - idx
        self(f"s_waitcnt lgkmcnt({min(n,15)})")
    def lgwait_all(self):
        self("s_waitcnt lgkmcnt(0)")
    def srd(self, d, lo, off, size):
        if off:
            self(f"s_add_u32 s{d}, s{lo}, {off}")
            self(f"s_addc_u32 s{d+1}, s{lo+1}, 0")
        else:
            self(f"s_mov_b32 s{d}, s{lo}")
            self(f"s_mov_b32 s{d+1}, s{lo+1}")
        self(f"s_mov_b32 s{d+2}, {size}")
        self(f"s_mov_b32 s{d+3}, 0x00020000")
    def text(self):
        return "\n".join(self.L) + "\n"

def vr(b, n=4): return f"v[{b}:{b+n-1}]"
def ar(b, n=4): return f"a[{b}:{b+n-1}]"

def prologue(k, name, ngrid):
    k.label(name)
    k(f"s_cmp_ge_u32 s2, {ngrid}")
    k(f"s_cbranch_scc1 {name}_end")
    k("s_load_dwordx16 s[16:31], s[0:1], 0")
    k("v_and_b32 v1, 63, v0")
    k("v_lshrrev_b32 v4, 6, v0")
    k("v_and_b32 v2, 31, v1")
    k("v_readfirstlane_b32 s3, v4")
    k("v_lshrrev_b32 v3, 5, v1")
    k("s_waitcnt lgkmcnt(0)")

def bf16r(k, dst, src):
    k(f"v_cvt_pk_bf16_f32 v{dst}, v{src}, v{src}")
    k(f"v_lshlrev_b32 v{dst}, 16, v{dst}")

def ln_stats(k, s1, s2, m, rinv, t):
    k(f"v_mul_f32 v{s1}, {hex(f2u(1.0/C))}, v{s1}")
    k(f"v_mul_f32 v{s2}, {hex(f2u(1.0/C))}, v{s2}")
    k(f"v_fma_f32 v{s2}, -v{s1}, v{s1}, v{s2}")
    k(f"v_max_f32 v{s2}, 0, v{s2}")
    bf16r(k, m, s1)
    bf16r(k, t, s2)
    k(f"v_add_f32 v{t}, {hex(f2u(1e-5))}, v{t}")
    bf16r(k, t, t)
    k(f"v_sqrt_f32 v{t}, v{t}")
    k("s_nop 0")
    bf16r(k, t, t)
    k(f"v_rcp_f32 v{rinv}, v{t}")
    k("s_nop 0")

def xhalf_add(k, a, tmp):
    k(f"v_mov_b32 v{tmp}, v{a}")
    k("s_nop 1")
    k(f"v_permlane32_swap_b32 v{a}, v{tmp}")
    k("s_nop 1")
    k(f"v_add_f32 v{a}, v{a}, v{tmp}")

def xhalf_max(k, a, tmp):
    k(f"v_mov_b32 v{tmp}, v{a}")
    k("s_nop 1")
    k(f"v_permlane32_swap_b32 v{a}, v{tmp}")
    k("s_nop 1")
    k(f"v_max_f32 v{a}, v{a}, v{tmp}")

AF = 16
ACC = 112
BB = 208

def gemm_w_dma_setup(k):
    for b in range(3):
        k(f"v_add_u32 v4, {64*b}, v1")
        k("v_mul_u32_u24 v5, 5462, v4")
        k("v_lshrrev_b32 v5, 16, v5")
        k("v_mul_u32_u24 v6, 12, v5")
        k("v_sub_u32 v6, v4, v6")
        k("v_mul_u32_u24 v5, 2304, v5")
        k(f"v_lshl_add_u32 v{8+b}, v6, 4, v5")
    k("s_mul_i32 s8, s3, 73728")
    k("s_mul_i32 s9, s5, 384")
    k("s_add_u32 s8, s8, s9")
    k("s_mul_i32 s9, s3, 6144")

def gemm_w_dma(k, wsrd):
    for c in range(3):
        for da in range(2):
            for sub in range(2):
                for b in range(3):
                    a = 8 * c + da
                    k(f"s_add_u32 s10, s8, {a*36864 + sub*192}")
                    k(f"s_add_u32 m0, s9, {a*3072 + sub*73728 + b*1024}")
                    k("s_nop 0")
                    if 'nodma' in FL and (da+sub+b) > 0: continue
                    k.vmem(f"buffer_load_dwordx4 v{8+b}, s[{wsrd}:{wsrd+3}], s10 offen lds", tag=f"w{c}")

def gemm_tr_setup(k):
    k("v_and_b32 v4, 15, v1")
    k("v_lshrrev_b32 v5, 2, v4")
    k("v_and_b32 v4, 3, v4")
    k("v_lshl_add_u32 v5, v3, 3, v5")
    k("v_mul_u32_u24 v5, 192, v5")
    k("v_lshl_add_u32 v5, v4, 3, v5")
    k("v_bfe_u32 v4, v1, 4, 1")
    k("v_lshl_add_u32 v12, v4, 5, v5")
    k(f"v_add_u32 v13, {12*3072}, v12")
    k(f"v_add_u32 v14, {73728}, v12")
    k(f"v_add_u32 v15, {73728+12*3072}, v12")

def gemm_breads(k, s):
    buf = BB + (s & 1) * 24
    for ct in range(6):
        sub = ct // 3
        base = 12 + sub * 2 + (s // 12)
        for q in range(2):
            off = (s % 12) * 3072 + q * 768 + (ct % 3) * 64
            if 'nodsr' in FL and ct*2+q > 0: continue
            k.ds(f"ds_read_b64_tr_b16 v[{buf+ct*4+q*2}:{buf+ct*4+q*2+1}], v{base} offset:{off}", tag=f"b{s}")

def gemm_main(k, transposed):
    def mfmas(s):
        buf = BB + (s & 1) * 24
        for ct in range(6):
            a, b = vr(buf + ct * 4), vr(AF + s * 4)
            if not transposed: a, b = b, a
            c = vr(ACC + ct * 16, 16) if s else "0"
            if 'nomfma' not in FL: k(f"v_mfma_f32_32x32x16_bf16 {vr(ACC+ct*16,16)}, {a}, {b}, {c}")
    for c in range(3):
        k.vmwait(f"w{c}")
        k("s_barrier")
        gemm_breads(k, 8 * c)
        for s in range(8 * c, 8 * c + 8):
            if s + 1 < 8 * c + 8:
                gemm_breads(k, s + 1)
            k.lgwait(f"b{s}")
            mfmas(s)
    k("s_nop 15")

def gen_KA():
    k = K()
    name = "ka_kernel"
    prologue(k, name, 256)
    k("s_cmp_ge_u32 s2, 240")
    k(f"s_cbranch_scc1 {name}_prep")
    k("s_mul_hi_u32 s4, s2, 0x2AAAAAAB")
    k("s_mul_i32 s5, s4, 6")
    k("s_sub_u32 s5, s2, s5")
    k.srd(32, 16, 0, X_BYTES)
    k.srd(36, 18, 0, WQKV_BYTES)
    k.srd(40, 30, WS_QKVT, QKVT_BYTES)
    k("s_lshl_b32 s6, s4, 7")
    k("s_lshl_b32 s7, s3, 5")
    k("s_add_u32 s6, s6, s7")
    k("v_add_u32 v11, s6, v2")
    k("v_mul_u32_u24 v5, 9363, v11")
    k("v_lshrrev_b32 v5, 16, v5")
    k("v_mul_u32_u24 v6, 7, v5")
    k("v_sub_u32 v6, v11, v6")
    k("v_mul_u32_u24 v6, 729, v6")
    k("v_add_u32 v6, v6, v5")
    k("v_mul_u32_u24 v6, 768, v6")
    k("v_lshl_add_u32 v6, v3, 4, v6")
    k(f"v_cmp_gt_u32 vcc, {M1}, v11")
    k(f"v_mov_b32 v7, {hex(BIG)}")
    k("s_nop 1")
    k("v_cndmask_b32 v7, v7, v6, vcc")
    for s in range(24):
        k.vmem(f"buffer_load_dwordx4 {vr(AF+4*s)}, v7, s[32:35], 0 offen offset:{32*s}", tag="x")
    gemm_w_dma_setup(k)
    gemm_w_dma(k, 36)
    gemm_tr_setup(k)
    k("s_mov_b32 s10, 0x3f803f80")
    t = ACC
    for i in range(8):
        k(f"v_mov_b32 v{t+i}, 0")
    k.vmwait("x")
    for i in range(96):
        k(f"v_dot2_f32_bf16 v{t+(i&3)}, v{AF+i}, s10, v{t+(i&3)}")
        k(f"v_dot2_f32_bf16 v{t+4+(i&3)}, v{AF+i}, v{AF+i}, v{t+4+(i&3)}")
    k("s_nop 3")
    k(f"v_add_f32 v{t}, v{t}, v{t+1}")
    k(f"v_add_f32 v{t+2}, v{t+2}, v{t+3}")
    k(f"v_add_f32 v{t+4}, v{t+4}, v{t+5}")
    k(f"v_add_f32 v{t+6}, v{t+6}, v{t+7}")
    k(f"v_add_f32 v{t}, v{t}, v{t+2}")
    k(f"v_add_f32 v{t+4}, v{t+4}, v{t+6}")
    xhalf_add(k, t, t + 1)
    xhalf_add(k, t + 4, t + 1)
    ln_stats(k, t, t + 4, t + 8, t + 9, t + 10)
    k("s_mov_b32 s11, 0xffff0000")
    U = 4
    for i0 in range(0, 96, U):
        tt = [t + 16 + 4 * u for u in range(U)]
        for u in range(U):
            k(f"v_lshlrev_b32 v{tt[u]}, 16, v{AF+i0+u}")
            k(f"v_and_b32 v{tt[u]+1}, s11, v{AF+i0+u}")
        for u in range(U):
            k(f"v_sub_f32 v{tt[u]}, v{tt[u]}, v{t+8}")
            k(f"v_sub_f32 v{tt[u]+1}, v{tt[u]+1}, v{t+8}")
        for u in range(U):
            k(f"v_cvt_pk_bf16_f32 v{tt[u]+2}, v{tt[u]}, v{tt[u]+1}")
        for u in range(U):
            k(f"v_lshlrev_b32 v{tt[u]}, 16, v{tt[u]+2}")
            k(f"v_and_b32 v{tt[u]+1}, s11, v{tt[u]+2}")
        for u in range(U):
            k(f"v_mul_f32 v{tt[u]}, v{tt[u]}, v{t+9}")
            k(f"v_mul_f32 v{tt[u]+1}, v{tt[u]+1}, v{t+9}")
        for u in range(U):
            k(f"v_cvt_pk_bf16_f32 v{AF+i0+u}, v{tt[u]}, v{tt[u]+1}")
    k("s_nop 1")
    gemm_main(k, True)
    k("v_mul_u32_u24 v4, 2304, v11")
    k("s_mul_i32 s6, s5, 384")
    k("v_lshl_add_u32 v4, v3, 3, v4")
    k("v_add_u32 v4, s6, v4")
    for ct in range(6):
        for j in range(4):
            a = ACC + ct * 16 + 4 * j
            d = BB + ((ct * 4 + j) % 12) * 2
            k(f"v_cvt_pk_bf16_f32 v{d}, v{a}, v{a+1}")
            k(f"v_cvt_pk_bf16_f32 v{d+1}, v{a+2}, v{a+3}")
            k.vmem(f"buffer_store_dwordx2 v[{d}:{d+1}], v4, s[40:43], 0 offen offset:{ct*64+j*16}")
    k("s_endpgm")
    k.label(f"{name}_prep")
    k("s_sub_u32 s4, s2, 240")
    k("s_lshr_b32 s5, s4, 3")
    k("s_and_b32 s4, s4, 7")
    k("s_cmp_eq_u32 s5, 0")
    k("s_cselect_b32 s6, s20, s24")
    k("s_cselect_b32 s7, s21, s25")
    k(f"s_mov_b32 s9, {WS_WOFS}")
    k(f"s_cselect_b32 s8, {WS_WOFT}, s9")
    k("s_mov_b32 s32, s6")
    k("s_mov_b32 s33, s7")
    k(f"s_mov_b32 s34, {WO_BYTES}")
    k("s_mov_b32 s35, 0x00020000")
    k("s_add_u32 s36, s30, s8")
    k("s_addc_u32 s37, s31, 0")
    k(f"s_mov_b32 s38, {WO_BYTES}")
    k("s_mov_b32 s39, 0x00020000")
    k("v_mul_u32_u24 v4, 3072, v3")
    k("v_lshl_add_u32 v4, v2, 1, v4")
    k("v_lshlrev_b32 v5, 4, v1")
    k("s_mul_i32 s9, s4, 36")
    k("s_mul_i32 s10, s3, 9")
    k("s_add_u32 s9, s9, s10")
    for i in range(9):
        k(f"s_add_u32 s10, s9, {i}")
        k("s_mul_hi_u32 s11, s10, 0x0AAAAAAB")
        k("s_mul_i32 s12, s11, 24")
        k("s_sub_u32 s12, s10, s12")
        k("s_mul_i32 s12, s12, 12288")
        k("s_lshl_b32 s11, s11, 6")
        k("s_add_u32 s12, s12, s11")
        k("s_add_u32 s13, s12, 6144")
        k("s_lshl_b32 s14, s10, 10")
        d = 16 + i * 8
        for e in range(8):
            so = "s12" if e < 4 else "s13"
            k.vmem(f"buffer_load_ushort v{d+e}, v4, s[32:35], {so} offen offset:{(e&3)*768}", tag=f"p{i}")
        k(f"s_mov_b32 s{48+i}, s14")
    for i in range(9):
        k.vmwait(f"p{i}")
        d = 16 + i * 8
        for e in range(4):
            k(f"v_lshl_or_b32 v{128+i*4+e}, v{d+2*e+1}, 16, v{d+2*e}")
        k.vmem(f"buffer_store_dwordx4 {vr(128+i*4)}, v5, s[36:39], s{48+i} offen")
    k.label(f"{name}_end")
    k("s_endpgm")
    return k.text()

def gen_KC():
    k = K()
    name = "kc_kernel"
    prologue(k, name, 252)
    k("s_mul_hi_u32 s4, s2, 0x2AAAAAAB")
    k("s_mul_i32 s5, s4, 6")
    k("s_sub_u32 s5, s2, s5")
    k("s_mul_hi_u32 s12, s4, 0x2AAAAAAB")
    k("s_mul_i32 s13, s12, 6")
    k("s_sub_u32 s13, s4, s13")
    k.srd(32, 30, WS_H2, PAD_BYTES)
    k.srd(36, 22, 0, WQKV_BYTES)
    k("s_lshl_b32 s6, s13, 7")
    k("s_lshl_b32 s7, s3, 5")
    k("s_add_u32 s14, s6, s7")
    k("v_add_u32 v5, s14, v2")
    k("s_mul_i32 s6, s12, 768")
    k("v_add_u32 v11, s6, v5")
    k("v_mul_u32_u24 v6, 768, v11")
    k("v_lshl_add_u32 v6, v3, 4, v6")
    k(f"v_cmp_gt_u32 vcc, {N}, v5")
    k(f"v_mov_b32 v7, {hex(BIG)}")
    k("s_nop 1")
    k("v_cndmask_b32 v7, v7, v6, vcc")
    for s in range(24):
        k.vmem(f"buffer_load_dwordx4 {vr(AF+4*s)}, v7, s[32:35], 0 offen offset:{32*s}", tag="x")
    gemm_w_dma_setup(k)
    gemm_w_dma(k, 36)
    gemm_tr_setup(k)
    k("s_cmp_ge_u32 s5, 4")
    k(f"s_cbranch_scc1 {name}_v")
    vm_save, lg_save = list(k.vm), list(k.lg)
    k.vmwait("x")
    gemm_main(k, True)
    k("s_cmp_ge_u32 s5, 2")
    k(f"s_mov_b32 s7, {WS_QS}")
    k(f"s_cselect_b32 s6, {WS_KS}, s7")
    k("s_add_u32 s40, s30, s6")
    k("s_addc_u32 s41, s31, 0")
    k(f"s_mov_b32 s42, {PAD_BYTES}")
    k("s_mov_b32 s43, 0x00020000")
    k("s_and_b32 s6, s5, 1")
    k("s_mul_i32 s6, s6, 384")
    k("v_mul_u32_u24 v4, 768, v11")
    k("v_lshl_add_u32 v4, v3, 3, v4")
    k("v_add_u32 v4, s6, v4")
    for ct in range(6):
        for j in range(4):
            a = ACC + ct * 16 + 4 * j
            d = BB + ((ct * 4 + j) % 12) * 2
            k(f"v_cvt_pk_bf16_f32 v{d}, v{a}, v{a+1}")
            k(f"v_cvt_pk_bf16_f32 v{d+1}, v{a+2}, v{a+3}")
            k.vmem(f"buffer_store_dwordx2 v[{d}:{d+1}], v4, s[40:43], 0 offen offset:{ct*64+j*16}")
    k("s_endpgm")
    k.label(f"{name}_v")
    k.vm, k.lg = vm_save, lg_save
    k.vmwait("x")
    gemm_main(k, False)
    k.srd(40, 30, WS_VT, PAD_BYTES)
    k("s_sub_u32 s6, s5, 4")
    k("s_mul_i32 s6, s6, 192")
    k("v_add_u32 v4, s6, v2")
    k("v_mul_u32_u24 v4, 1536, v4")
    k("v_lshl_add_u32 v4, v3, 4, v4")
    k("s_mul_i32 s6, s12, 589824")
    k("s_lshl_b32 s7, s14, 1")
    k("s_add_u32 s6, s6, s7")
    k("v_add_u32 v4, s6, v4")
    for ct in range(6):
        if ct:
            k(f"v_add_u32 v4, {32*1536}, v4")
        for g in range(2):
            a = ACC + ct * 16 + 8 * g
            d = BB + ((ct * 2 + g) % 12) * 4
            for e in range(4):
                k(f"v_cvt_pk_bf16_f32 v{d+e}, v{a+2*e}, v{a+2*e+1}")
            k.vmem(f"buffer_store_dwordx4 {vr(d)}, v4, s[40:43], 0 offen offset:{g*32}")
        k("s_nop 1")
    k.label(f"{name}_end")
    k("s_endpgm")
    return k.text()

VP = 832
def gen_KB():
    k = K()
    name = "kb_kernel"
    prologue(k, name, 183)
    KF, QF = 16, 112
    SA = 208
    PF = 224
    k.srd(32, 30, WS_QKVT, M1 * 2304)
    k.srd(36, 30, WS_WOFT, WO_BYTES)
    k.srd(40, 16, 0, X_BYTES)
    k.srd(44, 30, WS_X1, PAD_BYTES)
    k.srd(48, 30, WS_H2, PAD_BYTES)
    k("s_mul_i32 s4, s2, 28")
    k("v_add_u32 v4, s4, v2")
    k("v_mul_u32_u24 v4, 2304, v4")
    k("v_lshl_add_u32 v4, v3, 4, v4")
    for s in range(24):
        k.vmem(f"buffer_load_dwordx4 {vr(KF+4*s)}, v4, s[32:35], 0 offen offset:{768+32*s}", tag=f"kq{s}")
        k.vmem(f"buffer_load_dwordx4 {vr(QF+4*s)}, v4, s[32:35], 0 offen offset:{32*s}", tag=f"kq{s}")
    k("v_lshlrev_b32 v5, 4, v1")
    k("v_add_u32 v5, 1536, v5")
    k("s_lshl_b32 s5, s3, 3")
    k("s_add_u32 s6, s4, s5")
    k("s_mul_i32 s6, s6, 2304")
    k(f"s_mul_i32 s7, s5, {VP}")
    k("v_cmp_gt_u32 vcc, 48, v1")
    k("s_and_saveexec_b64 s[12:13], vcc")
    for r in range(8):
        k(f"s_add_u32 m0, s7, {r*VP}")
        k(f"s_add_u32 s8, s6, {r*2304}")
        k("s_nop 0")
        k.vmem("buffer_load_dwordx4 v5, s[32:35], s8 offen lds", tag="v")
    k("s_mov_b64 exec, s[12:13]")
    k("v_mul_u32_u24 v6, 9363, v2")
    k("v_lshrrev_b32 v6, 16, v6")
    k("v_mul_u32_u24 v7, 7, v6")
    k("v_sub_u32 v8, v2, v7")
    k("s_lshl_b32 s5, s2, 2")
    k("v_add_u32 v9, s5, v6")
    k("v_mul_u32_u24 v10, 729, v8")
    k("v_add_u32 v10, v10, v9")
    k("v_mul_u32_u24 v10, 768, v10")
    k("v_mul_u32_u24 v11, 768, v8")
    k("v_add_u32 v11, v11, v9")
    k("v_mul_u32_u24 v11, 768, v11")
    k("s_mul_i32 s5, s3, 192")
    k("v_lshl_add_u32 v12, v3, 3, s5")
    k("v_add_u32 v10, v10, v12")
    k("v_add_u32 v11, v11, v12")
    k(f"v_cmp_gt_u32 vcc, {N}, v9")
    k("s_mov_b64 s[12:13], vcc")
    k("v_cmp_gt_u32 vcc, 28, v2")
    k(f"v_mov_b32 v12, {hex(BIG)}")
    k("s_nop 1")
    k("s_and_b64 vcc, vcc, s[12:13]")
    k("s_nop 1")
    k("v_cndmask_b32 v10, v12, v10, vcc")
    k("v_cndmask_b32 v11, v12, v11, vcc")
    k("v_lshl_add_u32 v7, v3, 2, 0")
    k("v_mul_u32_u24 v12, 7, v6")
    k("v_sub_u32 v7, v12, v7")
    R = 36
    k("v_lshlrev_b32 v13, 4, v1")
    k("s_mul_i32 s9, s3, 73728")
    wo_issued = [0]
    def wo_issue(n):
        for _ in range(n):
            i = wo_issued[0]
            if i >= 72: return
            s, j = i // 3, i % 3
            off = (j * 24 + s) * 1024
            k(f"s_add_u32 s10, s9, {off & ~4095}")
            k.vmem(f"buffer_load_dwordx4 {ar((i % R)*4)}, v13, s[36:39], s10 offen offset:{off & 4095}", tag=f"wo{i}")
            wo_issued[0] += 1
    for g in range(6):
        k.vmwait(f"kq{4*g+3}")
        for s in range(4 * g, 4 * g + 4):
            c = vr(SA, 16) if s else "0"
            k(f"v_mfma_f32_32x32x16_bf16 {vr(SA,16)}, {vr(KF+4*s)}, {vr(QF+4*s)}, {c}")
        wo_issue(6)
    k("s_nop 15")
    XR = 176
    for j in range(3):
        for q in range(4):
            k.vmem(f"buffer_load_dwordx2 v[{XR+(j*4+q)*2}:{XR+(j*4+q)*2+1}], v10, s[40:43], 0 offen offset:{j*64+q*16}", tag="xr")
    k(f"s_mov_b32 s10, {hex(f2u(SCALE))}")
    k("s_mov_b32 s11, 0xffff0000")
    k(f"s_mov_b32 s12, {hex(f2u(LOG2E))}")
    k("v_mov_b32 v14, 0xff800000")
    T0 = 112
    for p in range(8):
        a = SA + 2 * p
        if 'noround' in FL:
            k(f"v_mul_f32 v{a}, s10, v{a}")
            k(f"v_mul_f32 v{a+1}, s10, v{a+1}")
            continue
        k(f"v_cvt_pk_bf16_f32 v{T0}, v{a}, v{a+1}")
        k(f"v_lshlrev_b32 v{a}, 16, v{T0}")
        k(f"v_and_b32 v{a+1}, s11, v{T0}")
        k(f"v_mul_f32 v{a}, s10, v{a}")
        k(f"v_mul_f32 v{a+1}, s10, v{a+1}")
        k(f"v_cvt_pk_bf16_f32 v{T0}, v{a}, v{a+1}")
        k(f"v_lshlrev_b32 v{a}, 16, v{T0}")
        k(f"v_and_b32 v{a+1}, s11, v{T0}")
    for r in range(16):
        cr = 8 * (r >> 2) + (r & 3)
        k(f"v_sub_u32 v{T0}, {cr}, v7")
        k(f"v_cmp_gt_u32 vcc, 7, v{T0}")
        k("s_nop 1")
        k(f"v_cndmask_b32 v{SA+r}, v14, v{SA+r}, vcc")
    MX = T0 + 1
    k(f"v_max_f32 v{MX}, v{SA}, v{SA+1}")
    for r in range(2, 16):
        k(f"v_max_f32 v{MX}, v{MX}, v{SA+r}")
    xhalf_max(k, MX, T0 + 2)
    k(f"v_max_f32 v{MX}, 0xff7fffff, v{MX}")
    k(f"v_mul_f32 v{T0+3}, s12, v{MX}")
    SUM = T0 + 4
    for r in range(16):
        k(f"v_fma_f32 v{SA+r}, v{SA+r}, s12, -v{T0+3}")
    for r in range(16):
        k(f"v_exp_f32 v{SA+r}, v{SA+r}")
    k("s_nop 0")
    k(f"v_add_f32 v{SUM}, v{SA}, v{SA+1}")
    for r in range(2, 16):
        k(f"v_add_f32 v{SUM}, v{SUM}, v{SA+r}")
    xhalf_add(k, SUM, T0 + 2)
    k(f"v_rcp_f32 v{SUM}, v{SUM}")
    k("s_nop 0")
    for r in range(16):
        k(f"v_mul_f32 v{SA+r}, v{SA+r}, v{SUM}")
    for p in range(8):
        k(f"v_cvt_pk_bf16_f32 v{PF+p}, v{SA+2*p}, v{SA+2*p+1}")
    k.vmwait("v")
    k("s_barrier")
    k("v_and_b32 v4, 15, v1")
    k("v_lshrrev_b32 v5, 2, v4")
    k("v_and_b32 v4, 3, v4")
    k("v_lshl_add_u32 v5, v3, 2, v5")
    k(f"v_mul_u32_u24 v5, {VP}, v5")
    k("v_lshl_add_u32 v5, v4, 3, v5")
    k("v_bfe_u32 v4, v1, 4, 1")
    k("v_lshl_add_u32 v5, v4, 5, v5")
    OF = 16
    OA = [120, 136]
    VF = [152, 160]
    def vreads(ct):
        b = VF[ct & 1]
        for sp in range(2):
            for q in range(2):
                off = (16 * sp + 8 * q) * VP + ct * 64
                k.ds(f"ds_read_b64_tr_b16 v[{b+sp*4+q*2}:{b+sp*4+q*2+1}], v5 offset:{off}", tag=f"vf{ct}")
    def ocvt(ct):
        a = OA[ct & 1]
        for e in range(8):
            k(f"v_cvt_pk_bf16_f32 v{OF+ct*8+e}, v{a+2*e}, v{a+2*e+1}")
    vreads(0)
    for ct in range(12):
        if ct + 1 < 12: vreads(ct + 1)
        k.lgwait(f"vf{ct}")
        b = VF[ct & 1]; a = OA[ct & 1]
        k(f"v_mfma_f32_32x32x16_bf16 {vr(a,16)}, {vr(b)}, {vr(PF)}, 0")
        k(f"v_mfma_f32_32x32x16_bf16 {vr(a,16)}, {vr(b+4)}, {vr(PF+4)}, {vr(a,16)}")
        if ct >= 1:
            k("s_nop 7")
            ocvt(ct - 1)
    k("s_nop 15")
    ocvt(11)
    k("s_nop 1")
    YA = 128
    for i in range(72):
        s, j = i // 3, i % 3
        k.vmwait(f"wo{i}")
        c = vr(YA + j * 16, 16) if s else "0"
        k(f"v_mfma_f32_32x32x16_bf16 {vr(YA+j*16,16)}, {ar((i%R)*4)}, {vr(OF+4*s)}, {c}")
        wo_issue(1)
    k("s_nop 15")
    k.vmwait("xr")
    S1, S2 = 16, 17
    k(f"v_mov_b32 v{S1}, 0")
    k(f"v_mov_b32 v{S2}, 0")
    for jq in range(12):
        for e in range(2):
            a = YA + jq * 4 + 2 * e
            x = XR + jq * 2 + e
            k(f"v_cvt_pk_bf16_f32 v20, v{a}, v{a+1}")
            k(f"v_lshlrev_b32 v{a}, 16, v20")
            k(f"v_and_b32 v{a+1}, s11, v20")
            k(f"v_lshlrev_b32 v21, 16, v{x}")
            k(f"v_and_b32 v22, s11, v{x}")
            k(f"v_add_f32 v{a}, v{a}, v21")
            k(f"v_add_f32 v{a+1}, v{a+1}, v22")
            k(f"v_cvt_pk_bf16_f32 v{x}, v{a}, v{a+1}")
            k(f"v_lshlrev_b32 v{a}, 16, v{x}")
            k(f"v_and_b32 v{a+1}, s11, v{x}")
            k(f"v_add_f32 v{S1}, v{S1}, v{a}")
            k(f"v_fmac_f32 v{S2}, v{a}, v{a}")
            k(f"v_add_f32 v{S1}, v{S1}, v{a+1}")
            k(f"v_fmac_f32 v{S2}, v{a+1}, v{a+1}")
    for j in range(3):
        for q in range(4):
            x = XR + (j * 4 + q) * 2
            k.vmem(f"buffer_store_dwordx2 v[{x}:{x+1}], v11, s[44:47], 0 offen offset:{j*64+q*16}")
    xhalf_add(k, S1, 20)
    xhalf_add(k, S2, 20)
    LB = 32 * VP
    k("v_lshlrev_b32 v20, 3, v2")
    k("s_lshl_b32 s5, s3, 8")
    k("v_add_u32 v21, s5, v20")
    k.ds(f"ds_write_b64 v21, v[{S1}:{S2}] offset:{LB}")
    k.lgwait_all()
    k("s_barrier")
    for w in range(4):
        k.ds(f"ds_read_b64 v[{24+2*w}:{25+2*w}], v20 offset:{LB+256*w}")
    k.lgwait_all()
    k("v_add_f32 v24, v24, v26")
    k("v_add_f32 v25, v25, v27")
    k("v_add_f32 v28, v28, v30")
    k("v_add_f32 v29, v29, v31")
    k("v_add_f32 v24, v24, v28")
    k("v_add_f32 v25, v25, v29")
    ln_stats(k, 24, 25, 26, 27, 28)
    for jq in range(12):
        for e in range(2):
            a = YA + jq * 4 + 2 * e
            d = 32 + jq * 2 + e
            k(f"v_sub_f32 v{a}, v{a}, v26")
            k(f"v_sub_f32 v{a+1}, v{a+1}, v26")
            k(f"v_cvt_pk_bf16_f32 v20, v{a}, v{a+1}")
            k(f"v_lshlrev_b32 v{a}, 16, v20")
            k(f"v_and_b32 v{a+1}, s11, v20")
            k(f"v_mul_f32 v{a}, v{a}, v27")
            k(f"v_mul_f32 v{a+1}, v{a+1}, v27")
            k(f"v_cvt_pk_bf16_f32 v{d}, v{a}, v{a+1}")
    for j in range(3):
        for q in range(4):
            d = 32 + (j * 4 + q) * 2
            k.vmem(f"buffer_store_dwordx2 v[{d}:{d+1}], v11, s[48:51], 0 offen offset:{j*64+q*16}")
    k.label(f"{name}_end")
    k("s_endpgm")
    return k.text()

def gen_KD():
    k = K()
    name = "kd_kernel"
    prologue(k, name, 161)
    k("s_and_b32 s4, s2, 7")
    k("s_lshr_b32 s5, s2, 3")
    k("s_mul_i32 s6, s4, 20")
    k("s_min_u32 s7, s4, 1")
    k("s_add_u32 s6, s6, s7")
    k("s_add_u32 s6, s6, s5")
    k(f"s_mul_hi_u32 s4, s6, {((1<<32)+22)//23}")
    k("s_mul_i32 s5, s4, 23")
    k("s_sub_u32 s5, s6, s5")
    k.srd(32, 30, WS_QS, PAD_BYTES)
    k.srd(36, 30, WS_KS, PAD_BYTES)
    k.srd(40, 30, WS_VT, PAD_BYTES)
    k.srd(44, 30, WS_WOFS, WO_BYTES)
    k.srd(48, 30, WS_X1, PAD_BYTES)
    k.srd(52, 26, 0, X_BYTES)
    QF = 0
    RB = 96
    R = 40
    SA = 64
    k("s_mul_i32 s6, s4, 768")
    k("s_lshl_b32 s7, s5, 5")
    k("s_add_u32 s6, s6, s7")
    k("v_add_u32 v4, s6, v2")
    k("v_mul_u32_u24 v4, 768, v4")
    k("v_lshl_add_u32 v4, v3, 4, v4")
    for s in range(24):
        k.vmem(f"buffer_load_dwordx4 {ar(QF+4*s)}, v4, s[32:35], 0 offen offset:{32*s}", tag="q")
    k("v_mul_u32_u24 v5, 768, v2")
    k("v_lshl_add_u32 v5, v3, 4, v5")
    k("s_mul_i32 s8, s4, 589824")
    k("s_mul_i32 s9, s3, 147456")
    k("s_add_u32 s8, s8, s9")
    k("v_mul_u32_u24 v6, 1536, v2")
    k("v_lshl_add_u32 v6, v3, 4, v6")
    k("s_mul_i32 s10, s4, 589824")
    k("s_mul_i32 s11, s3, 147456")
    k("s_add_u32 s10, s10, s11")
    k("v_lshlrev_b32 v7, 4, v1")
    k("s_mul_i32 s11, s3, 73728")
    items = []
    for kt in range(6):
        for s in range(24):
            items.append(("k", kt, s))
    NS2 = 46
    for s in range(NS2):
        for ct in range(3):
            items.append(("v", ct, s))
    for s in range(24):
        for j in range(3):
            items.append(("w", j, s))
    issued = [0]
    def issue(n=1):
        for _ in range(n):
            i = issued[0]
            if i >= len(items): return
            kind, a, s = items[i]
            d = ar(RB + (i % R) * 4)
            if kind == "k":
                k(f"s_add_u32 s12, s8, {a*24576}")
                k.vmem(f"buffer_load_dwordx4 {d}, v5, s[36:39], s12 offen offset:{32*s}", tag=f"i{i}")
            elif kind == "v":
                k(f"s_add_u32 s12, s10, {a*49152}")
                k.vmem(f"buffer_load_dwordx4 {d}, v6, s[40:43], s12 offen offset:{32*s}", tag=f"i{i}")
            else:
                off = (a * 24 + s) * 1024
                k(f"s_add_u32 s12, s11, {off & ~4095}")
                k.vmem(f"buffer_load_dwordx4 {d}, v7, s[44:47], s12 offen offset:{off & 4095}", tag=f"i{i}")
            issued[0] += 1
    issue(R)
    k.vmwait("q")
    it = 0
    for kt in range(6):
        for s in range(24):
            k.vmwait(f"i{it}")
            c = vr(SA + kt * 16, 16) if s else "0"
            k(f"v_mfma_f32_32x32x16_bf16 {vr(SA+kt*16,16)}, {ar(RB+(it%R)*4)}, {ar(QF+4*s)}, {c}")
            issue(1)
            it += 1
    k("s_nop 15")
    k(f"s_mov_b32 s13, {hex(f2u(SCALE))}")
    k("s_mov_b32 s14, 0xffff0000")
    k(f"s_mov_b32 s15, {hex(f2u(LOG2E))}")
    for p0 in range(0, 48, 4):
        if 'noround' in FL:
            for u in range(8):
                k(f"v_mul_f32 v{SA+2*p0+u}, s13, v{SA+2*p0+u}")
            continue
        for u in range(4):
            a = SA + 2 * (p0 + u)
            k(f"v_cvt_pk_bf16_f32 v{16+u}, v{a}, v{a+1}")
        for u in range(4):
            a = SA + 2 * (p0 + u)
            k(f"v_lshlrev_b32 v{a}, 16, v{16+u}")
            k(f"v_and_b32 v{a+1}, s14, v{16+u}")
        for u in range(4):
            a = SA + 2 * (p0 + u)
            k(f"v_mul_f32 v{a}, s13, v{a}")
            k(f"v_mul_f32 v{a+1}, s13, v{a+1}")
        for u in range(4):
            a = SA + 2 * (p0 + u)
            k(f"v_cvt_pk_bf16_f32 v{16+u}, v{a}, v{a+1}")
        for u in range(4):
            a = SA + 2 * (p0 + u)
            k(f"v_lshlrev_b32 v{a}, 16, v{16+u}")
            k(f"v_and_b32 v{a+1}, s14, v{16+u}")
    k("s_cmp_lg_u32 s3, 3")
    k(f"s_cbranch_scc1 {name}_nomask")
    k("v_mov_b32 v16, 0xff800000")
    k("v_lshlrev_b32 v17, 2, v3")
    for r in range(16):
        cr = 8 * (r >> 2) + (r & 3)
        a = SA + 4 * 16 + r
        if cr + 4 < 25:
            continue
        if cr >= 25:
            k(f"v_mov_b32 v{a}, v16")
        else:
            k(f"v_cmp_gt_u32 vcc, {25-cr}, v17")
            k("s_nop 1")
            k(f"v_cndmask_b32 v{a}, v16, v{a}, vcc")
    for r in range(16):
        k(f"v_mov_b32 v{SA+5*16+r}, v16")
    k.label(f"{name}_nomask")
    k(f"v_max3_f32 v16, v{SA}, v{SA+1}, v{SA+2}")
    k(f"v_max3_f32 v17, v{SA+3}, v{SA+4}, v{SA+5}")
    for r in range(6, 96, 4):
        k(f"v_max3_f32 v16, v16, v{SA+r}, v{SA+r+1}")
        if r + 3 < 96:
            k(f"v_max3_f32 v17, v17, v{SA+r+2}, v{SA+r+3}")
    k("v_max_f32 v16, v16, v17")
    xhalf_max(k, 16, 17)
    ST = 0
    OX = 1024
    PLB = 25600
    PL = 0
    k(f"v_add_u32 v8, {PLB}, v7")
    k("v_lshlrev_b32 v18, 2, v2")
    k("s_lshl_b32 s12, s3, 7")
    k("v_add_u32 v19, s12, v18")
    k.ds(f"ds_write_b32 v19, v16 offset:{ST}")
    k.lgwait_all()
    k("s_barrier")
    for w in range(4):
        k.ds(f"ds_read_b32 v{20+w}, v18 offset:{ST+128*w}")
    k.lgwait_all()
    k("v_max3_f32 v16, v20, v21, v22")
    k("v_max_f32 v16, v16, v23")
    k("v_mul_f32 v16, s15, v16")
    for r in range(96):
        k(f"v_fma_f32 v{SA+r}, v{SA+r}, s15, -v16")
    for r in range(96):
        k(f"v_exp_f32 v{SA+r}, v{SA+r}")
    k("s_nop 0")
    k(f"v_add_f32 v20, v{SA}, v{SA+1}")
    k(f"v_add_f32 v21, v{SA+2}, v{SA+3}")
    for r in range(4, 96, 2):
        k(f"v_add_f32 v20, v20, v{SA+r}")
        k(f"v_add_f32 v21, v21, v{SA+r+1}")
    k("v_add_f32 v20, v20, v21")
    xhalf_add(k, 20, 21)
    k.ds(f"ds_write_b32 v19, v20 offset:{ST+512}")
    k.lgwait_all()
    k("s_barrier")
    for w in range(4):
        k.ds(f"ds_read_b32 v{20+w}, v18 offset:{ST+512+128*w}")
    k.lgwait_all()
    k("v_add_f32 v20, v20, v21")
    k("v_add_f32 v22, v22, v23")
    k("v_add_f32 v20, v20, v22")
    k("v_rcp_f32 v20, v20")
    k("s_nop 0")
    k("s_mul_i32 s12, s3, 12288")
    k("v_add_u32 v19, s12, v8")
    for kt in range(6):
        for sp in range(2):
            a = SA + kt * 16 + sp * 8
            for e in range(8):
                k(f"v_mul_f32 v{a+e}, v{a+e}, v20")
            d = 24 + ((kt * 2 + sp) & 1) * 4
            for e in range(4):
                k(f"v_cvt_pk_bf16_f32 v{d+e}, v{a+2*e}, v{a+2*e+1}")
            k.ds(f"ds_write_b128 v19, {vr(d)} offset:{PL+(kt*2+sp)*1024}")
    k.lgwait_all()
    k("s_barrier")
    OA = 64
    PB = 32
    PR = 8
    def pread(s):
        k.ds(f"ds_read_b128 {vr(PB+(s%PR)*4)}, v8 offset:{PL+s*1024}", tag=f"p{s}")
    for s in range(min(PR - 1, NS2)):
        pread(s)
    for s in range(NS2):
        if s + PR - 1 < NS2: pread(s + PR - 1)
        k.lgwait(f"p{s}")
        for ct in range(3):
            k.vmwait(f"i{it}")
            c = vr(OA + ct * 16, 16) if s else "0"
            k(f"v_mfma_f32_32x32x16_bf16 {vr(OA+ct*16,16)}, {ar(RB+(it%R)*4)}, {vr(PB+(s%PR)*4)}, {c}")
            issue(1)
            it += 1
    k("s_nop 15")
    k("s_mul_i32 s12, s3, 192")
    k("v_add_u32 v16, s6, v2")
    k("v_mul_u32_u24 v16, 768, v16")
    k("v_lshl_add_u32 v17, v3, 3, s12")
    k("v_add_u32 v16, v16, v17")
    XR = 112
    for j in range(3):
        for q in range(4):
            k.vmem(f"buffer_load_dwordx2 v[{XR+(j*4+q)*2}:{XR+(j*4+q)*2+1}], v16, s[48:51], 0 offen offset:{j*64+q*16}", tag="xr")
    k("s_lshl_b32 s12, s5, 5")
    k("v_add_u32 v18, s12, v2")
    k("s_mul_i32 s12, s4, 729")
    k("v_add_u32 v19, s12, v18")
    k("v_mul_u32_u24 v19, 768, v19")
    k("v_add_u32 v19, v19, v17")
    k(f"v_cmp_gt_u32 vcc, {N}, v18")
    k(f"v_mov_b32 v18, {hex(BIG)}")
    k("s_nop 1")
    k("v_cndmask_b32 v19, v18, v19, vcc")
    k("s_mul_i32 s12, s3, 6144")
    k("v_add_u32 v18, s12, v7")
    for ct in range(3):
        for sp in range(2):
            a = OA + ct * 16 + sp * 8
            d = 24 + ((ct * 2 + sp) & 1) * 4
            for e in range(4):
                k(f"v_cvt_pk_bf16_f32 v{d+e}, v{a+2*e}, v{a+2*e+1}")
            k.ds(f"ds_write_b128 v18, {vr(d)} offset:{OX+(ct*2+sp)*1024}")
    k.lgwait_all()
    k("s_barrier")
    YA = 64
    def oread(s):
        k.ds(f"ds_read_b128 {vr(PB+(s%PR)*4)}, v7 offset:{OX+s*1024}", tag=f"o{s}")
    for s in range(PR - 1):
        oread(s)
    for s in range(24):
        if s + PR - 1 < 24: oread(s + PR - 1)
        k.lgwait(f"o{s}")
        for j in range(3):
            k.vmwait(f"i{it}")
            c = vr(YA + j * 16, 16) if s else "0"
            k(f"v_mfma_f32_32x32x16_bf16 {vr(YA+j*16,16)}, {ar(RB+(it%R)*4)}, {vr(PB+(s%PR)*4)}, {c}")
            issue(1)
            it += 1
    k("s_nop 15")
    k.vmwait("xr")
    for f in FL:
        if f.startswith('pert'):
            for r in range(48):
                k(f"v_mul_f32 v{YA+r}, {hex(f2u(1.0+float(f[4:])))}, v{YA+r}")
    for jq in range(12):
        for e in range(2):
            a = YA + jq * 4 + 2 * e
            x = XR + jq * 2 + e
            k(f"v_cvt_pk_bf16_f32 v20, v{a}, v{a+1}")
            k(f"v_lshlrev_b32 v{a}, 16, v20")
            k(f"v_and_b32 v{a+1}, s14, v20")
            k(f"v_lshlrev_b32 v21, 16, v{x}")
            k(f"v_and_b32 v22, s14, v{x}")
            k(f"v_add_f32 v{a}, v{a}, v21")
            k(f"v_add_f32 v{a+1}, v{a+1}, v22")
            k(f"v_cvt_pk_bf16_f32 v{x}, v{a}, v{a+1}")
    for j in range(3):
        for q in range(4):
            x = XR + (j * 4 + q) * 2
            k.vmem(f"buffer_store_dwordx2 v[{x}:{x+1}], v19, s[52:55], 0 offen offset:{j*64+q*16}")
    k.label(f"{name}_end")
    k("s_endpgm")
    return k.text()

HEADER = """; TimeSformer divided space-time attention block, gfx950.  Generated by gen.py (own generator).
; @launch kernel=ka_kernel grid=(256,1,1) block=(256,1,1) lds=147456
; @launch kernel=kb_kernel grid=(183,1,1) block=(256,1,1) lds=28672
; @launch kernel=kc_kernel grid=(252,1,1) block=(256,1,1) lds=147456
; @launch kernel=kd_kernel grid=(161,1,1) block=(256,1,1) lds=74752
.amdgcn_target "amdgcn-amd-amdhsa--gfx950"
.text
"""

def desc(name, vgpr, accum):
    return f""".amdhsa_kernel {name}
  .amdhsa_next_free_vgpr {vgpr}
  .amdhsa_next_free_sgpr 102
  .amdhsa_accum_offset {accum}
  .amdhsa_group_segment_fixed_size 0
  .amdhsa_kernarg_size 64
  .amdhsa_user_sgpr_count 2
  .amdhsa_user_sgpr_kernarg_segment_ptr 1
  .amdhsa_system_sgpr_workgroup_id_x 1
  .amdhsa_float_denorm_mode_32 3
.end_amdhsa_kernel
"""

def main():
    out = HEADER
    for name, g in (("ka_kernel", gen_KA), ("kb_kernel", gen_KB), ("kc_kernel", gen_KC), ("kd_kernel", gen_KD)):
        out += f".globl {name}\n.p2align 8\n.type {name},@function\n" + g()
    out += '.section .rodata,"a"\n.p2align 6\n'
    out += desc("ka_kernel", 256, 256)
    out += ".p2align 6\n" + desc("kb_kernel", 512, 256)
    out += ".p2align 6\n" + desc("kc_kernel", 256, 256)
    out += ".p2align 6\n" + desc("kd_kernel", 512, 256)
    path = sys.argv[1] if len(sys.argv) > 1 else "standalone__video_timesformer__vision.s"
    open(path, "w").write(out)
    print("wrote", path, len(out))

if __name__ == "__main__":
    main()
```

```python
import sys, os, struct
FL = os.environ.get('GENFLAGS', '').split(',')
T, N, C = 7, 729, 384
X_BYTES = T * N * C * 2
FR_BYTES = N * C * 2
WQKV_BYTES = C * 3 * C * 2
WO_BYTES = C * C * 2
MiB = 1 << 20
WS_FQT, WS_FVT, WS_FQS, WS_FVS = 0, 1 * MiB, 2 * MiB, 3 * MiB
WS_X1, WS_H2, WS_U2 = 4 * MiB, 9 * MiB, 14 * MiB
BIG = 0x7f000000
LOG2E = 1.4426950408889634
QSCALE = (C ** -0.5) * LOG2E
def f2u(f): return struct.unpack('<I', struct.pack('<f', f))[0]

class K:
    def __init__(self):
        self.L = []; self.vm = []; self.lg = []
    def __call__(self, s): self.L.append("    " + s)
    def label(self, l): self.L.append(l + ":")
    def vmem(self, s, tag=None):
        self(s); self.vm.append(tag)
    def vmwait(self, tag):
        idx = max(i for i, t in enumerate(self.vm) if t == tag)
        n = len(self.vm) - 1 - idx
        self(f"s_waitcnt vmcnt({min(n,63)})")
    def vmwait_all(self): self("s_waitcnt vmcnt(0)")
    def ds(self, s, tag=None):
        self(s); self.lg.append(tag)
    def lgwait(self, tag):
        idx = max(i for i, t in enumerate(self.lg) if t == tag)
        n = len(self.lg) - 1 - idx
        self(f"s_waitcnt lgkmcnt({min(n,15)})")
    def lgwait_all(self): self("s_waitcnt lgkmcnt(0)")
    def srd(self, d, lo, off, size):
        if off:
            self(f"s_add_u32 s{d}, s{lo}, {off}")
            self(f"s_addc_u32 s{d+1}, s{lo+1}, 0")
        else:
            self(f"s_mov_b32 s{d}, s{lo}")
            self(f"s_mov_b32 s{d+1}, s{lo+1}")
        self(f"s_mov_b32 s{d+2}, {size}")
        self(f"s_mov_b32 s{d+3}, 0x00020000")
    def srd_s(self, d, lo, soff, size):
        self(f"s_add_u32 s{d}, s{lo}, s{soff}")
        self(f"s_addc_u32 s{d+1}, s{lo+1}, 0")
        self(f"s_mov_b32 s{d+2}, {size}")
        self(f"s_mov_b32 s{d+3}, 0x00020000")
    def stamp(self):
        if 'stamp' not in FL: return
        n = getattr(self, 'nst', 0)
        self("s_memtime s[70:71]")
        self("s_waitcnt lgkmcnt(0)")
        self(f"s_mov_b32 s{72+n}, s70")
        self.nst = n + 1
    def dump_stamps(self, wg=0):
        if 'stamp' not in FL: return
        lab = f"L_nodump_{id(self)}"
        self(f"s_cmp_lg_u32 s2, {wg}")
        self(f"s_cbranch_scc1 {lab}")
        self("s_cmp_lg_u32 s3, 0")
        self(f"s_cbranch_scc1 {lab}")
        self("s_load_dwordx2 s[64:65], s[0:1], 48")
        self("s_waitcnt lgkmcnt(0)")
        self("s_mov_b32 s66, 256")
        self("s_mov_b32 s67, 0x00020000")
        self("v_mov_b32 v65, 0")
        for i in range(self.nst):
            self(f"v_mov_b32 v64, s{72+i}")
            self(f"buffer_store_dword v64, v65, s[64:67], 0 offen offset:{4*i}")
        self.label(lab)
    def text(self): return "\n".join(self.L) + "\n"

def vr(b, n=4): return f"v[{b}:{b+n-1}]"
def ar(b, n=4): return f"a[{b}:{b+n-1}]"
MFMA = "v_mfma_f32_32x32x16_bf16"

def prologue(k, name, ngrid):
    k.label(name)
    k(f"s_cmp_ge_u32 s2, {ngrid}")
    k(f"s_cbranch_scc1 {name}_end")
    k("s_load_dwordx16 s[16:31], s[0:1], 0")
    k("v_and_b32 v1, 63, v0")
    k("v_lshrrev_b32 v4, 6, v0")
    k("v_and_b32 v2, 31, v1")
    k("v_readfirstlane_b32 s3, v4")
    k("v_lshrrev_b32 v3, 5, v1")
    k("s_waitcnt lgkmcnt(0)")

def bf16r(k, dst, src):
    k(f"v_cvt_pk_bf16_f32 v{dst}, v{src}, v{src}")
    k(f"v_lshlrev_b32 v{dst}, 16, v{dst}")

def ln_stats(k, s1, s2, m, rinv, t):
    k(f"v_mul_f32 v{s1}, {hex(f2u(1.0/C))}, v{s1}")
    k(f"v_mul_f32 v{s2}, {hex(f2u(1.0/C))}, v{s2}")
    k(f"v_fma_f32 v{s2}, -v{s1}, v{s1}, v{s2}")
    k(f"v_max_f32 v{s2}, 0, v{s2}")
    bf16r(k, m, s1)
    bf16r(k, t, s2)
    k(f"v_add_f32 v{t}, {hex(f2u(1e-5))}, v{t}")
    bf16r(k, t, t)
    k(f"v_sqrt_f32 v{t}, v{t}")
    k("s_nop 0")
    bf16r(k, t, t)
    k(f"v_rcp_f32 v{rinv}, v{t}")
    k("s_nop 0")

def xhalf(k, op, a, tmp):
    k(f"v_mov_b32 v{tmp}, v{a}")
    k("s_nop 1")
    k(f"v_permlane32_swap_b32 v{a}, v{tmp}")
    k("s_nop 1")
    k(f"{op} v{a}, v{a}, v{tmp}")

PH = 784

def gen_K0():
    k = K(); name = "k0_kernel"
    prologue(k, name, 256)
    k("s_cmp_ge_u32 s2, 144")
    k(f"s_cbranch_scc1 {name}_pf")
    k(f"s_mul_hi_u32 s4, s2, {((1<<32)+35)//36}")
    k("s_mul_i32 s5, s4, 36")
    k("s_sub_u32 s5, s2, s5")
    k("s_mul_hi_u32 s6, s5, 0x2AAAAAAB")
    k("s_mul_i32 s7, s6, 6")
    k("s_sub_u32 s7, s5, s7")
    k("s_cmp_ge_u32 s4, 2")
    k("s_cselect_b32 s8, s22, s18")
    k("s_cselect_b32 s9, s23, s19")
    k("s_cselect_b32 s10, s24, s20")
    k("s_cselect_b32 s11, s25, s21")
    k("s_mov_b32 s32, s8"); k("s_mov_b32 s33, s9"); k(f"s_mov_b32 s34, {WQKV_BYTES}"); k("s_mov_b32 s35, 0x00020000")
    k("s_mov_b32 s36, s10"); k("s_mov_b32 s37, s11"); k(f"s_mov_b32 s38, {WO_BYTES}"); k("s_mov_b32 s39, 0x00020000")
    k("s_lshl_b32 s8, s4, 20")
    k.srd_s(40, 30, 8, WO_BYTES)
    k("s_and_b32 s12, s4, 1")
    AB, BBASE = 0, 64 * PH
    k("v_lshlrev_b32 v5, 4, v1")
    k("s_lshl_b32 s13, s6, 6")
    k("s_lshl_b32 s14, s3, 4")
    k("s_add_u32 s13, s13, s14")
    k("s_mul_i32 s13, s13, 2304")
    k("s_mul_i32 s15, s12, 1536")
    k("s_add_u32 s13, s13, s15")
    k(f"s_mul_i32 s14, s14, {PH}")
    k("v_cmp_gt_u32 vcc, 48, v1")
    k("s_and_saveexec_b64 s[44:45], vcc")
    for r in range(16):
        k(f"s_add_u32 m0, s14, {AB + r*PH}")
        k(f"s_add_u32 s15, s13, {r*2304}")
        k("s_nop 0")
        k.vmem("buffer_load_dwordx4 v5, s[32:35], s15 offen lds")
    k("s_mov_b64 exec, s[44:45]")
    k(f"v_mul_u32_u24 v6, {PH}, v2")
    k("v_lshl_add_u32 v6, v3, 4, v6")
    k("s_lshr_b32 s46, s3, 1")
    k("s_and_b32 s47, s3, 1")
    k(f"s_mul_i32 s15, s46, {32*PH}")
    k("v_add_u32 v7, s15, v6")
    k("s_cmp_eq_u32 s12, 1")
    k(f"s_cbranch_scc1 {name}_vo")
    k("s_lshl_b32 s13, s7, 6")
    k("s_lshl_b32 s14, s3, 4")
    k("s_add_u32 s13, s13, s14")
    k("s_mul_i32 s13, s13, 2304")
    k("s_add_u32 s13, s13, 768")
    k(f"s_mul_i32 s14, s14, {PH}")
    k("s_and_saveexec_b64 s[44:45], vcc")
    for r in range(16):
        k(f"s_add_u32 m0, s14, {BBASE + r*PH}")
        k(f"s_add_u32 s15, s13, {r*2304}")
        k("s_nop 0")
        k.vmem("buffer_load_dwordx4 v5, s[32:35], s15 offen lds")
    k("s_mov_b64 exec, s[44:45]")
    k(f"s_mul_i32 s15, s47, {32*PH}")
    k(f"s_add_u32 s15, s15, {BBASE}")
    k("v_add_u32 v8, s15, v6")
    k.vmwait_all()
    k("s_barrier")
    ACC = 16
    for s in range(24):
        k.ds(f"ds_read_b128 {vr(32+(s%8)*8)}, v7 offset:{32*s}", tag=f"f{s}")
        k.ds(f"ds_read_b128 {vr(36+(s%8)*8)}, v8 offset:{32*s}", tag=f"f{s}")
        if s >= 6:
            s0 = s - 6
            k.lgwait(f"f{s0}")
            k(f"{MFMA} {vr(ACC,16)}, {vr(32+(s0%8)*8)}, {vr(36+(s0%8)*8)}, {vr(ACC,16) if s0 else 0}")
    for s0 in range(18, 24):
        k.lgwait(f"f{s0}")
        k(f"{MFMA} {vr(ACC,16)}, {vr(32+(s0%8)*8)}, {vr(36+(s0%8)*8)}, {vr(ACC,16)}")
    k("s_nop 15")
    for r in range(16):
        k(f"v_mul_f32 v{ACC+r}, {hex(f2u(QSCALE))}, v{ACC+r}")
    for e in range(8):
        k(f"v_cvt_pk_bf16_f32 v{32+e}, v{ACC+2*e}, v{ACC+2*e+1}")
    k("s_nop 1")
    for sp in range(2):
        k(f"v_permlane32_swap_b32 v{32+4*sp}, v{34+4*sp}")
        k(f"v_permlane32_swap_b32 v{33+4*sp}, v{35+4*sp}")
    k(f"s_branch {name}_store")
    k.label(f"{name}_vo")
    k("v_lshrrev_b32 v8, 3, v1")
    k("v_and_b32 v9, 7, v1")
    k("v_mul_u32_u24 v8, 768, v8")
    k("v_lshl_add_u32 v8, v9, 4, v8")
    k("s_lshl_b32 s13, s7, 7")
    k("s_mul_i32 s14, s3, 96*768")
    k("s_add_u32 s13, s13, s14")
    k("s_mul_i32 s14, s3, 96*128")
    for i in range(12):
        k(f"s_add_u32 m0, s14, {BBASE + i*1024}")
        k(f"s_add_u32 s15, s13, {i*8*768}")
        k("s_nop 0")
        k.vmem("buffer_load_dwordx4 v8, s[36:39], s15 offen lds")
    k("v_and_b32 v4, 15, v1")
    k("v_lshrrev_b32 v9, 2, v4")
    k("v_and_b32 v4, 3, v4")
    k("v_lshl_add_u32 v9, v3, 3, v9")
    k("v_lshlrev_b32 v9, 7, v9")
    k("v_lshl_add_u32 v9, v4, 3, v9")
    k("v_bfe_u32 v4, v1, 4, 1")
    k("v_lshl_add_u32 v9, v4, 5, v9")
    k("s_lshl_b32 s15, s47, 6")
    k(f"s_add_u32 s15, s15, {BBASE}")
    k("v_add_u32 v9, s15, v9")
    k.vmwait_all()
    k("s_barrier")
    k.lg = []
    for s in range(24):
        k.ds(f"ds_read_b128 {vr(32+(s%8)*8)}, v7 offset:{32*s}", tag=f"f{s}")
        for q in range(2):
            k.ds(f"ds_read_b64_tr_b16 v[{36+(s%8)*8+2*q}:{37+(s%8)*8+2*q}], v9 offset:{(16*s+4*q)*128}", tag=f"f{s}")
        if s >= 4:
            s0 = s - 4
            k.lgwait(f"f{s0}")
            k(f"{MFMA} {vr(ACC,16)}, {vr(32+(s0%8)*8)}, {vr(36+(s0%8)*8)}, {vr(ACC,16) if s0 else 0}")
    for s0 in range(20, 24):
        k.lgwait(f"f{s0}")
        k(f"{MFMA} {vr(ACC,16)}, {vr(32+(s0%8)*8)}, {vr(36+(s0%8)*8)}, {vr(ACC,16)}")
    k("s_nop 15")
    for e in range(8):
        k(f"v_cvt_pk_bf16_f32 v{32+e}, v{ACC+2*e}, v{ACC+2*e+1}")
    k.label(f"{name}_store")
    k("s_lshl_b32 s13, s7, 1")
    k("s_add_u32 s13, s13, s47")
    k("s_mul_i32 s13, s13, 24")
    k("s_lshl_b32 s14, s6, 1")
    k("s_add_u32 s14, s14, s46")
    k("s_lshl_b32 s14, s14, 1")
    k("s_add_u32 s13, s13, s14")
    k("s_lshl_b32 s13, s13, 10")
    k("s_nop 1")
    k.vmem(f"buffer_store_dwordx4 {vr(32)}, v5, s[40:43], s13 offen")
    k.vmem(f"buffer_store_dwordx4 {vr(36)}, v5, s[40:43], s13 offen offset:1024")
    k("s_endpgm")
    k.label(f"{name}_pf")
    k.srd(32, 16, 0, X_BYTES)
    k("s_sub_u32 s4, s2, 144")
    k("s_and_b32 s5, s4, 7")
    k("s_lshr_b32 s4, s4, 3")
    k("v_lshrrev_b32 v4, 3, v1")
    k("s_lshl_b32 s6, s3, 3")
    k("v_add_u32 v4, s6, v4")
    k("v_and_b32 v5, 7, v1")
    k("v_mul_u32_u24 v6, 9363, v4")
    k("v_lshrrev_b32 v6, 16, v6")
    k("v_mul_u32_u24 v7, 7, v6")
    k("v_sub_u32 v7, v4, v7")
    k("v_mul_u32_u24 v7, 729, v7")
    k("v_add_u32 v7, v7, v6")
    k("v_mul_u32_u24 v7, 768, v7")
    k("v_lshl_add_u32 v7, v5, 4, v7")
    k("v_cmp_gt_u32 vcc, 28, v4")
    k(f"v_mov_b32 v8, {hex(BIG)}")
    k("s_nop 1")
    k("v_cndmask_b32 v8, v8, v7, vcc")
    for m in range(2):
        k(f"s_add_u32 s6, s4, {14*m}")
        k("s_lshl_b32 s6, s6, 3")
        k("s_add_u32 s6, s6, s5")
        k("s_mul_i32 s6, s6, 3072")
        for j in range(6):
            k.vmem(f"buffer_load_dwordx4 {vr(16+24*m+4*j)}, v8, s[32:35], s6 offen offset:{128*j}")
    k.vmwait_all()
    k.label(f"{name}_end")
    k("s_endpgm")
    return k.text()

def gen_K1():
    k = K(); name = "k1_kernel"
    prologue(k, name, 183)
    HB, XB, SX, YX, ST = 0, 25088, 50176, 66560, 91136
    k.stamp()
    UB = SX
    k.srd(32, 16, 0, X_BYTES)
    if 'winput' in FL:
        k.srd(36, 18, 0, WQKV_BYTES)
    else:
        k.srd(36, 30, 0, 4 * MiB)
    k.srd(40, 30, WS_X1, X_BYTES)
    k.srd(44, 30, WS_H2, X_BYTES)
    k.srd(48, 30, WS_U2, X_BYTES)
    k("v_lshrrev_b32 v4, 3, v1")
    k("s_lshl_b32 s4, s3, 3")
    k("v_add_u32 v4, s4, v4")
    k("v_and_b32 v5, 7, v1")
    k("v_mul_u32_u24 v6, 9363, v4")
    k("v_lshrrev_b32 v6, 16, v6")
    k("v_mul_u32_u24 v7, 7, v6")
    k("v_sub_u32 v7, v4, v7")
    k("s_lshl_b32 s5, s2, 2")
    k("v_add_u32 v6, s5, v6")
    k("v_mul_u32_u24 v7, 729, v7")
    k("v_add_u32 v7, v7, v6")
    k("v_mul_u32_u24 v7, 768, v7")
    k("v_lshl_add_u32 v7, v5, 4, v7")
    k(f"v_cmp_gt_u32 vcc, {N}, v6")
    k("s_mov_b64 s[12:13], vcc")
    k("v_cmp_gt_u32 vcc, 28, v4")
    k(f"v_mov_b32 v8, {hex(BIG)}")
    k("s_nop 1")
    k("s_and_b64 vcc, vcc, s[12:13]")
    k("s_nop 1")
    k("v_cndmask_b32 v8, v8, v7, vcc")
    XA, HA = 16, 40
    for j in range(6):
        k.vmem(f"buffer_load_dwordx4 {vr(XA+4*j)}, v8, s[32:35], 0 offen offset:{128*j}", tag="x")
    k(f"v_mul_u32_u24 v9, {PH}, v4")
    k("v_lshl_add_u32 v9, v5, 4, v9")
    R = 60
    k("v_lshlrev_b32 v10, 4, v1")
    k("s_mul_i32 s6, s3, 73728")
    bases = [WS_FQT, WS_FVT, WS_FQS] if 'winput' not in FL else [0, 294912, 589824]
    issued = [0]
    wi = [0]
    def wissue(n=1):
        for _ in range(n):
            i = issued[0]
            if i >= 216 or i >= wi[0] + R: return
            mi, r = i // 72, i % 72
            s, j = r // 3, r % 3
            off = bases[mi] + (j * 24 + s) * 1024
            k(f"s_add_u32 s7, s6, {off & ~4095}")
            k.vmem(f"buffer_load_dwordx4 {ar((i % R)*4)}, v10, s[36:39], s7 offen offset:{off & 4095}", tag=f"w{i}")
            issued[0] += 1
    wissue(10)
    k("s_mov_b32 s10, 0x3f803f80")
    k("s_mov_b32 s11, 0xffff0000")
    for i in range(4): k(f"v_mov_b32 v{64+i}, 0")
    k.vmwait("x")
    k.stamp()
    for i in range(24):
        k(f"v_dot2_f32_bf16 v{64+(i&1)}, v{XA+i}, s10, v{64+(i&1)}")
        k(f"v_dot2_f32_bf16 v{66+(i&1)}, v{XA+i}, v{XA+i}, v{66+(i&1)}")
        if i % 2 == 1: wissue(1)
    for j in range(6):
        k.ds(f"ds_write_b128 v9, {vr(XA+4*j)} offset:{XB+128*j}")
    k("v_add_f32 v64, v64, v65")
    k("v_add_f32 v66, v66, v67")
    def red8(rs):
        for ctl in ("quad_perm:[1,0,3,2]", "quad_perm:[2,3,0,1]", "row_half_mirror"):
            k("s_nop 1")
            for r in rs:
                k(f"v_add_f32_dpp v{r}, v{r}, v{r} {ctl} row_mask:0xf bank_mask:0xf")
    red8([64, 66])
    ln_stats(k, 64, 66, 68, 69, 70)
    k("v_mul_f32 v68, v68, v69")
    for i in range(24):
        k(f"v_lshlrev_b32 v72, 16, v{XA+i}")
        k(f"v_and_b32 v73, s11, v{XA+i}")
        k(f"v_fma_f32 v72, v72, v69, -v68")
        k(f"v_fma_f32 v73, v73, v69, -v68")
        k(f"v_cvt_pk_bf16_f32 v{HA+i}, v72, v73")
        wissue(1)
    for j in range(6):
        k.ds(f"ds_write_b128 v9, {vr(HA+4*j)} offset:{HB+128*j}")
    wissue(8)
    k(f"v_mul_u32_u24 v11, {PH}, v2")
    k("v_lshl_add_u32 v12, v3, 4, v11")
    k("s_mul_i32 s8, s3, 192")
    k("v_lshl_add_u32 v13, v3, 3, v11")
    k("v_add_u32 v13, s8, v13")
    k.lgwait_all()
    k("s_barrier")
    BR, NBR = 64, 8
    ACC = 96
    PK = 144
    def gemm(baddr, boff, bstride):
        k.lg = []
        def rd(s): k.ds(f"ds_read_b128 {vr(BR+(s%NBR)*4)}, v{baddr} offset:{boff+s*bstride}", tag=f"b{s}")
        for s in range(NBR - 1): rd(s)
        for s in range(24):
            if s + NBR - 1 < 24: rd(s + NBR - 1)
            k.lgwait(f"b{s}")
            for j in range(3):
                i = wi[0]
                if 'now' not in FL: k.vmwait(f"w{i}")
                if 'nomf' not in FL: k(f"{MFMA} {vr(ACC+16*j,16)}, {ar((i%R)*4)}, {vr(BR+(s%NBR)*4)}, {vr(ACC+16*j,16) if s else 0}")
                wi[0] += 1
                if 'now' not in FL and (i & 1): wissue(1)
        k("s_nop 15")
    k.stamp()
    gemm(12, HB, 32)
    k.stamp()
    for s in range(6):
        k.ds(f"ds_read2_b64 {vr(BR+4*s)}, v13 offset0:{4*s} offset1:{4*s+2}", tag=f"c{s}")
    for e in range(24):
        k(f"v_cvt_pk_bf16_f32 v{PK+e}, v{ACC+2*e}, v{ACC+2*e+1}")
        if e % 8 == 7: wissue(1)
    SA = 168
    k.lgwait_all()
    k("s_nop 1")
    for s in range(6):
        k(f"{MFMA} {vr(SA,16)}, {vr(BR+4*s)}, {vr(PK+4*s)}, {vr(SA,16) if s else 0}")
    k("s_lshl_b32 s9, s3, 12")
    k(f"s_add_u32 s9, s9, {SX}")
    k("v_add_u32 v14, s9, v10")
    k(f"v_add_u32 v15, {SX}, v10")
    k("s_nop 15")
    for e in range(4):
        k.ds(f"ds_write_b128 v14, {vr(SA+4*e)} offset:{1024*e}")
    k.lgwait_all()
    k("s_barrier")
    SS = 184
    for w in range(4):
        for e in range(4):
            k.ds(f"ds_read_b128 {vr(SS+16*w+4*e)}, v15 offset:{4096*w+1024*e}")
    k("v_mul_u32_u24 v4, 9363, v2")
    k("v_lshrrev_b32 v4, 16, v4")
    k("v_mul_u32_u24 v4, 7, v4")
    k("v_lshlrev_b32 v5, 2, v3")
    k("v_sub_u32 v4, v4, v5")
    k("v_mov_b32 v5, 0xff800000")
    k.lgwait_all()
    for r in range(16):
        k(f"v_add_f32 v{SS+r}, v{SS+r}, v{SS+16+r}")
        k(f"v_add_f32 v{SS+32+r}, v{SS+32+r}, v{SS+48+r}")
        if r % 4 == 3: wissue(1)
    for r in range(16):
        k(f"v_add_f32 v{SA+r}, v{SS+r}, v{SS+32+r}")
        if r % 8 == 7: wissue(1)
    k.stamp()
    for r in range(16):
        cr = 8 * (r >> 2) + (r & 3)
        k(f"v_sub_u32 v6, {cr}, v4")
        k("v_cmp_gt_u32 vcc, 7, v6")
        k("s_nop 1")
        k(f"v_cndmask_b32 v{SA+r}, v5, v{SA+r}, vcc")
        if r % 2 == 1: wissue(1)
    k(f"v_max3_f32 v6, v{SA}, v{SA+1}, v{SA+2}")
    for r in range(3, 15, 2):
        k(f"v_max3_f32 v6, v6, v{SA+r}, v{SA+r+1}")
    k(f"v_max_f32 v6, v6, v{SA+15}")
    xhalf(k, "v_max_f32", 6, 7)
    k("v_max_f32 v6, 0xff7fffff, v6")
    for r in range(16):
        k(f"v_sub_f32 v{SA+r}, v{SA+r}, v6")
        if r % 8 == 7: wissue(1)
    for r in range(16):
        k(f"v_exp_f32 v{SA+r}, v{SA+r}")
        if r % 4 == 3: wissue(1)
    k("s_nop 0")
    k(f"v_add_f32 v6, v{SA}, v{SA+1}")
    for r in range(2, 16):
        k(f"v_add_f32 v6, v6, v{SA+r}")
        if r % 8 == 7: wissue(1)
    xhalf(k, "v_add_f32", 6, 7)
    k("v_rcp_f32 v6, v6")
    k("s_nop 0")
    PF = 248
    for r in range(16):
        k(f"v_mul_f32 v{SA+r}, v{SA+r}, v6")
        if r % 8 == 7: wissue(1)
    for p in range(8):
        k(f"v_cvt_pk_bf16_f32 v{PF+p}, v{SA+2*p}, v{SA+2*p+1}")
    wissue(2)
    k("v_and_b32 v4, 15, v1")
    k("v_lshrrev_b32 v5, 2, v4")
    k("v_and_b32 v4, 3, v4")
    k("v_lshl_add_u32 v5, v3, 2, v5")
    k(f"v_mul_u32_u24 v5, {PH}, v5")
    k("v_lshl_add_u32 v5, v4, 3, v5")
    k("v_bfe_u32 v4, v1, 4, 1")
    k("v_lshl_add_u32 v5, v4, 5, v5")
    k("v_add_u32 v5, s8, v5")
    for j in range(3):
        for sp in range(2):
            for q in range(2):
                b = BR + (j * 2 + sp) * 4 + 2 * q
                k.ds(f"ds_read_b64_tr_b16 v[{b}:{b+1}], v5 offset:{HB+(16*sp+8*q)*PH+64*j}")
    k.lgwait_all()
    for j in range(3):
        for sp in range(2):
            k(f"{MFMA} {vr(ACC+16*j,16)}, {vr(BR+(j*2+sp)*4)}, {vr(PF+4*sp)}, {vr(ACC+16*j,16) if sp else 0}")
    k("s_mul_i32 s9, s3, 6144")
    k(f"s_add_u32 s9, s9, {YX}")
    k("v_add_u32 v14, s9, v10")
    k(f"v_add_u32 v15, {YX}, v10")
    k("s_nop 15")
    for e in range(24):
        k(f"v_cvt_pk_bf16_f32 v{PK+e}, v{ACC+2*e}, v{ACC+2*e+1}")
        if e % 6 == 5: wissue(1)
    for s in range(6):
        k.ds(f"ds_write_b128 v14, {vr(PK+4*s)} offset:{1024*s}")
    wissue(6)
    k.lgwait_all()
    k("s_barrier")
    k.stamp()
    gemm(15, 0, 1024)
    k.stamp()
    XR = 184
    for jq in range(12):
        j, q = jq // 4, jq % 4
        k.ds(f"ds_read_b64 v[{XR+2*jq}:{XR+2*jq+1}], v13 offset:{XB+64*j+16*q}")
    k("v_mov_b32 v6, 0"); k("v_mov_b32 v7, 0")
    k.lgwait_all()
    for jq in range(12):
        for e in range(2):
            a = ACC + jq * 4 + 2 * e
            x = XR + jq * 2 + e
            k(f"v_lshlrev_b32 v65, 16, v{x}")
            k(f"v_and_b32 v66, s11, v{x}")
            k(f"v_add_f32 v{a}, v{a}, v65")
            k(f"v_add_f32 v{a+1}, v{a+1}, v66")
            k(f"v_cvt_pk_bf16_f32 v{x}, v{a}, v{a+1}")
            k(f"v_dot2_f32_bf16 v6, v{x}, s10, v6")
            k(f"v_dot2_f32_bf16 v7, v{x}, v{x}, v7")
        wissue(1)
    for jq in range(12):
        j, q = jq // 4, jq % 4
        k.ds(f"ds_write_b64 v13, v[{XR+2*jq}:{XR+2*jq+1}] offset:{XB+64*j+16*q}")
    k("s_nop 2")
    xhalf(k, "v_add_f32", 6, 64)
    xhalf(k, "v_add_f32", 7, 64)
    k("v_lshlrev_b32 v4, 3, v2")
    k(f"v_add_u32 v4, {ST}, v4")
    k("s_lshl_b32 s9, s3, 8")
    k("v_add_u32 v5, s9, v4")
    k.ds("ds_write_b64 v5, v[6:7]")
    k.lgwait_all()
    k("s_barrier")
    for w in range(4):
        k.ds(f"ds_read_b64 v[{64+2*w}:{65+2*w}], v4 offset:{256*w}")
    k.lgwait_all()
    k("v_add_f32 v64, v64, v66"); k("v_add_f32 v65, v65, v67")
    k("v_add_f32 v68, v68, v70"); k("v_add_f32 v69, v69, v71")
    k("v_add_f32 v64, v64, v68"); k("v_add_f32 v65, v65, v69")
    ln_stats(k, 64, 65, 66, 67, 68)
    k("v_mul_f32 v66, v66, v67")
    for e in range(24):
        x = XR + e
        k(f"v_lshlrev_b32 v72, 16, v{x}")
        k(f"v_and_b32 v73, s11, v{x}")
        k(f"v_fma_f32 v72, v72, v67, -v66")
        k(f"v_fma_f32 v73, v73, v67, -v66")
        k(f"v_cvt_pk_bf16_f32 v{PK+e}, v72, v73")
        if e % 2 == 1: wissue(1)
    for jq in range(12):
        j, q = jq // 4, jq % 4
        k.ds(f"ds_write_b64 v13, v[{PK+2*jq}:{PK+2*jq+1}] offset:{HB+64*j+16*q}")
    wissue(8)
    k.lgwait_all()
    k("s_barrier")
    for j in range(6):
        k.ds(f"ds_read_b128 {vr(XA+4*j)}, v9 offset:{XB+128*j}")
        k.ds(f"ds_read_b128 {vr(HA+4*j)}, v9 offset:{HB+128*j}")
    k.lgwait_all()
    for j in range(6):
        k.vmem(f"buffer_store_dwordx4 {vr(XA+4*j)}, v8, s[40:43], 0 offen offset:{128*j}")
        k.vmem(f"buffer_store_dwordx4 {vr(HA+4*j)}, v8, s[44:47], 0 offen offset:{128*j}")
    k.stamp()
    gemm(12, HB, 32)
    k.stamp()
    for e in range(24):
        k(f"v_cvt_pk_bf16_f32 v{PK+e}, v{ACC+2*e}, v{ACC+2*e+1}")
    k(f"v_add_u32 v13, {UB}, v13")
    k(f"v_add_u32 v9, {UB}, v9")
    for jq in range(12):
        j, q = jq // 4, jq % 4
        k.ds(f"ds_write_b64 v13, v[{PK+2*jq}:{PK+2*jq+1}] offset:{64*j+16*q}")
    k.lgwait_all()
    k("s_barrier")
    for j in range(6):
        k.ds(f"ds_read_b128 {vr(64+4*j)}, v9 offset:{128*j}")
    k.lgwait_all()
    for j in range(6):
        k.vmem(f"buffer_store_dwordx4 {vr(64+4*j)}, v8, s[48:51], 0 offen offset:{128*j}")
    k.vmwait_all()
    k.stamp()
    k.dump_stamps(100)
    k.label(f"{name}_end")
    k("s_endpgm")
    return k.text()

def gen_K2():
    k = K(); name = "k2_kernel"
    prologue(k, name, 161)
    k("s_and_b32 s4, s2, 7")
    k("s_lshr_b32 s5, s2, 3")
    k("s_mul_i32 s6, s4, 20")
    k("s_min_u32 s7, s4, 1")
    k("s_add_u32 s6, s6, s7")
    k("s_add_u32 s6, s6, s5")
    k(f"s_mul_hi_u32 s4, s6, {((1<<32)+22)//23}")
    k("s_mul_i32 s5, s4, 23")
    k("s_sub_u32 s5, s6, s5")
    k(f"s_mul_i32 s6, s4, {FR_BYTES}")
    k(f"s_add_u32 s7, s6, {WS_H2}")
    k.srd_s(32, 30, 7, FR_BYTES)
    k(f"s_add_u32 s7, s6, {WS_U2}")
    k.srd_s(36, 30, 7, FR_BYTES)
    k(f"s_add_u32 s7, s6, {WS_X1}")
    k.srd_s(40, 30, 7, FR_BYTES)
    k.srd_s(44, 26, 6, FR_BYTES)
    k.srd(48, 30, WS_FVS, WO_BYTES)
    HS = 12288
    k.stamp()
    WR = 3 * HS
    for b in range(3):
        k(f"v_add_u32 v7, {64*b}, v1")
        k("v_mul_u32_u24 v8, 1366, v7")
        k("v_lshrrev_b32 v8, 16, v8")
        k("v_mul_u32_u24 v9, 48, v8")
        k("v_sub_u32 v9, v7, v9")
        k("v_lshlrev_b32 v10, 2, v8")
        k("v_xor_b32 v9, v9, v10")
        k("v_mul_u32_u24 v8, 768, v8")
        k(f"v_lshl_add_u32 v{4+b}, v9, 4, v8")
    k(f"s_mul_i32 s8, s3, {WR}")
    tmpi = [0]
    def dma_one(srd, srow, ldsbase_s, ldsoff, tag, i):
        a, b = i // 3, i % 3
        if a:
            t = 7 + (tmpi[0] & 1); tmpi[0] += 1
            k(f"v_xor_b32 v{t}, {16*a}, v{4+b}")
        else:
            t = 4 + b
        k(f"s_add_u32 m0, s{ldsbase_s}, {ldsoff + i*1024}")
        k(f"s_add_u32 s10, s{srow}, {a*3072}")
        k.vmem(f"buffer_load_dwordx4 v{t}, s[{srd}:{srd+3}], s10 offen lds", tag=tag)
    def dma_half(srd, srow, ldsbase_s, ldsoff, tag):
        for i in range(12): dma_one(srd, srow, ldsbase_s, ldsoff, tag, i)
    k("s_lshl_b32 s11, s5, 5")
    k("s_mul_i32 s11, s11, 768")
    k("s_cmp_ge_u32 s3, 2")
    k(f"s_cbranch_scc1 {name}_nou")
    k(f"s_mul_i32 s13, s3, {16*768}")
    k("s_add_u32 s13, s13, s11")
    vm_save = list(k.vm)
    dma_half(36, 13, 8, 2 * HS, "u")
    k.vm = vm_save
    k.label(f"{name}_nou")
    k("s_lshl_b32 s14, s3, 5")
    k("s_mul_i32 s14, s14, 768")
    def hrow(hf): return (128 * (hf // 2) + 16 * (hf & 1)) * 768
    def hload_one(hf, i):
        if i == 0: k(f"s_add_u32 s{56+(hf&1)}, s14, {hrow(hf)}")
        dma_one(32, 56 + (hf & 1), 8, (hf % 3) * HS, f"h{hf}", i)
    def hload(hf):
        for i in range(12): hload_one(hf, i)
    hload(0); hload(1)
    k("v_and_b32 v28, 15, v2")
    k("v_and_b32 v29, 3, v28")
    k("v_lshlrev_b32 v29, 2, v29")
    k("v_lshrrev_b32 v30, 2, v28")
    k("v_or_b32 v29, v29, v30")
    k("v_mul_u32_u24 v28, 768, v28")
    for bi in range(8):
        k(f"v_add_u32 v30, {2*bi}, v3")
        k("v_xor_b32 v30, v30, v29")
        k(f"v_lshl_add_u32 v{9+bi}, v30, 4, v28")
    k("v_lshrrev_b32 v30, 4, v2")
    k(f"v_mul_u32_u24 v31, {WR}, v30")
    k(f"v_add_u32 v31, {2*HS}, v31")
    for bi in range(8):
        k(f"v_add_u32 v{56+bi}, v{9+bi}, v31")
    k(f"v_mul_u32_u24 v31, {HS}, v30")
    k("v_add_u32 v31, s8, v31")
    for bi in range(8):
        k(f"v_add_u32 v{9+bi}, v{9+bi}, v31")
    k("v_cmp_eq_u32 vcc, 0, v30")
    k(f"v_mov_b32 v31, {2*HS}")
    k(f"v_mov_b32 v28, {(-HS) & 0xffffffff}")
    k("s_nop 0")
    k("v_cndmask_b32 v17, v28, v31, vcc")
    k("v_cndmask_b32 v18, v31, v28, vcc")
    k("v_mov_b32 v19, v28")
    k("v_and_b32 v28, 15, v1")
    k("v_lshrrev_b32 v29, 2, v28")
    k("v_and_b32 v28, 3, v28")
    k("v_bfe_u32 v30, v1, 4, 1")
    k("v_lshlrev_b32 v30, 1, v30")
    k("v_lshrrev_b32 v31, 1, v28")
    k("v_add_u32 v30, v30, v31")
    k("v_and_b32 v28, 1, v28")
    k("v_lshlrev_b32 v28, 3, v28")
    k("v_add_u32 v28, s8, v28")
    for q in range(2):
        k(f"v_lshl_add_u32 v31, v3, 2, v29")
        if q: k("v_add_u32 v31, 8, v31")
        k("v_mul_u32_u24 v31, 768, v31")
        k("v_add_u32 v31, v31, v28")
        k(f"v_add_u32 v32, {2*q}, v3")
        k("v_and_b32 v32, 3, v32")
        k("v_lshl_or_b32 v32, v29, 2, v32")
        for c in range(4):
            k(f"v_add_u32 v33, {4*c}, v30")
            k("v_xor_b32 v33, v33, v32")
            k(f"v_lshl_add_u32 v{20+q*4+c}, v33, 4, v31")
    k.vmwait_all()
    k("s_barrier")
    UF = 0
    k.stamp()
    for s in range(24):
        k.ds(f"ds_read_b128 {ar(UF+4*s)}, v{56+(s%8)} offset:{(s//8)*256}")
    k.lgwait_all()
    k("s_barrier")
    k.vm = []
    HT = 96
    KR, NKR = 192, 8
    SA, PF = 32, 48
    OA = 64
    M_, L_ = 28, 29
    THR = 8.0
    wslot = [224 + 4 * i for i in range(8)] + [4 * i for i in range(24)] + [96 + 4 * i for i in range(24)]
    RW = len(wslot)
    k("v_lshlrev_b32 v63, 4, v1")
    k("s_mul_i32 s16, s3, 73728")
    wiss = [0]; wcons = [0]; wlim = [8]
    def wissue(n=1):
        for _ in range(n):
            i = wiss[0]
            if i >= 72: return
            if i < RW:
                if i >= wlim[0]: return
            elif i >= wcons[0] + RW: return
            s, j = i // 3, i % 3
            off = (j * 24 + s) * 1024
            k(f"s_add_u32 s17, s16, {off & ~4095}")
            k.vmem(f"buffer_load_dwordx4 {ar(wslot[i%RW])}, v63, s[48:51], s17 offen offset:{off & 4095}", tag=f"w{i}")
            wiss[0] += 1
    for tau in range(6):
        hB = 2 * tau + 1
        if f"h{hB}" in k.vm:
            k.vmwait(f"h{hB}")
        k.stamp()
        k.lg = []
        trl = []
        for sp in range(2):
            slot = ((2 * tau + sp) % 3) * HS
            for ct in range(12):
                for q in range(2):
                    d = HT + (ct * 2 + sp) * 4 + 2 * q
                    trl.append(f"ds_read_b64_tr_b16 a[{d}:{d+1}], v{20+q*4+(ct%4)} offset:{slot+(ct//4)*256}")
        def krd(s): k.ds(f"ds_read_b128 {ar(KR+(s%NKR)*4)}, v{9+(s%8)} offset:{(s//8)*256}", tag=f"k{s}")
        PRE = 5
        for s in range(PRE): krd(s)
        hr = 2 * tau + 2
        for s in range(24):
            if s + PRE < 24: krd(s + PRE)
            if s >= 2:
                for _ in range(2 if s < 23 else 4):
                    if trl: k.ds(trl.pop(0))
            k.lgwait(f"k{s}")
            k(f"{MFMA} {vr(SA,16)}, {ar(KR+(s%NKR)*4)}, {ar(UF+4*s)}, {vr(SA,16) if s else 0}")
            if hr < 12 and s % 2 == 1: hload_one(hr, s // 2)
            elif hr >= 12 and s % 3 == 2: wissue(1)
        while trl: k.ds(trl.pop(0))
        if tau < 5:
            for bi in range(8):
                k(f"v_add_u32 v{9+bi}, v{9+bi}, v{17+(tau%3)}")
        else:
            k("s_nop 7")
        k.lgwait_all()
        k.stamp()
        hu = 2 * tau + 3
        ui = [0]
        def urgent(n=1):
            for _ in range(n):
                if hu < 12:
                    if ui[0] < 12:
                        hload_one(hu, ui[0]); ui[0] += 1
                else:
                    wissue(1)
        if tau == 5: wlim[0] = 32
        urgent(2)
        if tau == 5:
            k("s_lshl_b32 s18, s3, 5")
            k(f"s_sub_u32 s18, {N - 640}, s18")
            k("v_lshlrev_b32 v30, 2, v3")
            k("v_mov_b32 v31, 0xff800000")
            for r in range(16):
                cr = 8 * (r >> 2) + (r & 3)
                k(f"v_add_u32 v56, {cr}, v30")
                k("v_cmp_gt_i32 vcc, s18, v56")
                k("s_nop 1")
                k(f"v_cndmask_b32 v{SA+r}, v31, v{SA+r}, vcc")
        k(f"v_max3_f32 v30, v{SA}, v{SA+1}, v{SA+2}")
        for r in range(3, 15, 2):
            k(f"v_max3_f32 v30, v30, v{SA+r}, v{SA+r+1}")
        k(f"v_max_f32 v30, v30, v{SA+15}")
        xhalf(k, "v_max_f32", 30, 31)
        urgent(1)
        if tau == 0:
            k(f"v_mov_b32 v{M_}, v30")
            k(f"v_mov_b32 v{L_}, 0")
        else:
            k(f"v_add_f32 v31, {hex(f2u(THR))}, v{M_}")
            k("v_cmp_gt_f32 vcc, v30, v31")
            k(f"s_cbranch_vccz {name}_nors{tau}")
            k(f"v_max_f32 v30, v30, v{M_}")
            k(f"v_sub_f32 v31, v{M_}, v30")
            k("v_exp_f32 v31, v31")
            k(f"v_mov_b32 v{M_}, v30")
            k("s_nop 7")
            k(f"v_mul_f32 v{L_}, v{L_}, v31")
            for r in range(192):
                k(f"v_mul_f32 v{OA+r}, v{OA+r}, v31")
            k("s_nop 1")
            k.label(f"{name}_nors{tau}")
        for r in range(16):
            k(f"v_sub_f32 v{SA+r}, v{SA+r}, v{M_}")
        urgent(1)
        for r in range(16):
            k(f"v_exp_f32 v{SA+r}, v{SA+r}")
            if r % 8 == 7: urgent(1)
        k("s_nop 0")
        for p in range(8):
            k(f"v_cvt_pk_bf16_f32 v{PF+p}, v{SA+2*p}, v{SA+2*p+1}")
        k("s_nop 1")
        sumops = [f"v_add_f32 v30, v{SA}, v{SA+1}", f"v_add_f32 v31, v{SA+2}, v{SA+3}"]
        for r in range(4, 16, 2):
            sumops += [f"v_add_f32 v30, v30, v{SA+r}", f"v_add_f32 v31, v31, v{SA+r+1}"]
        sumops += [f"v_add_f32 v{L_}, v{L_}, v30", f"v_add_f32 v{L_}, v{L_}, v31"]
        n = 0
        for sp in range(2):
            for ct in range(12):
                c = vr(OA + 16 * ct, 16) if (tau or sp) else "0"
                k(f"{MFMA} {vr(OA+16*ct,16)}, {ar(HT+(ct*2+sp)*4)}, {vr(PF+4*sp)}, {c}")
                if sumops: k(sumops.pop(0))
                if n % 2 == 0: urgent(1)
                n += 1
        urgent(12)
    wlim[0] = RW
    k.stamp()
    xhalf(k, "v_add_f32", L_, 30)
    STB = 147456
    k("v_lshlrev_b32 v30, 3, v2")
    k(f"v_add_u32 v30, {STB}, v30")
    k("s_lshl_b32 s18, s3, 8")
    k("v_add_u32 v31, s18, v30")
    k.ds(f"ds_write_b64 v31, v[{M_}:{L_}]")
    k("v_add_u32 v31, s8, v63")
    k("s_nop 4")
    for d in range(4):
        k(f"s_cmp_eq_u32 s3, {d}")
        k(f"s_cbranch_scc1 {name}_rs{d}")
        k(f"s_sub_u32 s18, {d+3}, s3")
        k("s_and_b32 s18, s18, 3")
        k(f"s_mul_i32 s18, s18, {HS}")
        k("v_add_u32 v32, s18, v31")
        for e in range(12):
            k(f"ds_write_b128 v32, {vr(OA+48*d+4*e)} offset:{1024*e}")
        k.label(f"{name}_rs{d}")
    k.stamp()
    wissue(8)
    k.lgwait_all()
    k.stamp()
    k("s_barrier")
    k.stamp()
    for w in range(4):
        k.ds(f"ds_read_b64 v[{32+2*w}:{33+2*w}], v30 offset:{256*w}")
    k.lgwait_all()
    k("v_max3_f32 v40, v32, v34, v36")
    k("v_max_f32 v40, v40, v38")
    for w in range(4):
        k(f"v_sub_f32 v{32+2*w}, v{32+2*w}, v40")
    for w in range(4):
        k(f"v_exp_f32 v{32+2*w}, v{32+2*w}")
    k("s_nop 0")
    k("v_mul_f32 v42, v32, v33")
    k("v_fmac_f32 v42, v34, v35")
    k("v_fmac_f32 v42, v36, v37")
    k("v_fmac_f32 v42, v38, v39")
    k("v_rcp_f32 v42, v42")
    k("s_nop 0")
    for w in range(4):
        k(f"v_mul_f32 v{44+w}, v{32+2*w}, v42")
    OW = 208
    for d in range(4):
        k(f"s_cmp_lg_u32 s3, {d}")
        k(f"s_cbranch_scc1 {name}_cp{d}")
        srcs = [x for x in range(4) if x != d]
        blocks = [bb for bb in (64, 112, 160) if bb != OA + 48 * d]
        if d == 3: blocks = [64, 112, 160]
        else: blocks = blocks + [None]
        for r in range(48):
            k(f"v_mul_f32 v{OW+r}, v{OA+48*d+r}, v{44+d}")
        if d != 3: blocks[2] = OA + 48 * d
        for si, sw in enumerate(srcs):
            off = sw * WR + ((d - sw - 1) & 3) * HS
            k(f"v_add_u32 v32, {off}, v63")
            for e in range(12):
                k(f"ds_read_b128 {vr(blocks[si]+4*e)}, v32 offset:{1024*e}")
        for si, sw in enumerate(srcs):
            k(f"s_waitcnt lgkmcnt({min(15, 12*(2-si))})")
            for r in range(48):
                k(f"v_fmac_f32 v{OW+r}, v{blocks[si]+r}, v{44+sw}")
        k.label(f"{name}_cp{d}")
    k.stamp()
    wissue(16)
    k.stamp()
    k("s_barrier")
    k.stamp()
    for e in range(24):
        k(f"v_cvt_pk_bf16_f32 v{64+e}, v{OW+2*e}, v{OW+2*e+1}")
    k("s_mul_i32 s18, s3, 6144")
    k("v_add_u32 v30, s18, v63")
    for s in range(6):
        k.ds(f"ds_write_b128 v30, {vr(64+4*s)} offset:{1024*s}")
    k("v_lshrrev_b32 v4, 3, v1")
    k("s_lshl_b32 s18, s3, 3")
    k("v_add_u32 v4, s18, v4")
    k("v_and_b32 v5, 7, v1")
    k("s_lshl_b32 s18, s5, 5")
    k("v_add_u32 v6, s18, v4")
    k("v_mul_u32_u24 v6, 768, v6")
    k("v_lshl_add_u32 v6, v5, 4, v6")
    XR = 160
    for j in range(6):
        k.vmem(f"buffer_load_dwordx4 {vr(XR+4*j)}, v6, s[40:43], 0 offen offset:{128*j}", tag="xr")
    k.lgwait_all()
    k("s_barrier")
    YA = 96
    BR, NBR = 64, 8
    k.stamp()
    k.lg = []
    def rd(s): k.ds(f"ds_read_b128 {vr(BR+(s%NBR)*4)}, v63 offset:{1024*s}", tag=f"b{s}")
    for s in range(NBR - 1): rd(s)
    wi = 0
    for s in range(24):
        if s + NBR - 1 < 24: rd(s + NBR - 1)
        k.lgwait(f"b{s}")
        for j in range(3):
            k.vmwait(f"w{wi}")
            k(f"{MFMA} {vr(YA+16*j,16)}, {ar(wslot[wi%RW])}, {vr(BR+(s%NBR)*4)}, {vr(YA+16*j,16) if s else 0}")
            wi += 1
            wcons[0] = wi
            wissue(1)
    k("s_nop 15")
    k.stamp()
    YB = 32768
    k(f"v_mul_u32_u24 v7, {PH}, v2")
    k("s_mul_i32 s18, s3, 192")
    k(f"s_add_u32 s18, s18, {YB}")
    k("v_lshl_add_u32 v7, v3, 3, v7")
    k("v_add_u32 v7, s18, v7")
    for e in range(24):
        k(f"v_cvt_pk_bf16_f32 v{64+e}, v{YA+2*e}, v{YA+2*e+1}")
    for jq in range(12):
        j, q = jq // 4, jq % 4
        k.ds(f"ds_write_b64 v7, v[{64+2*jq}:{65+2*jq}] offset:{64*j+16*q}")
    k(f"v_mul_u32_u24 v8, {PH}, v4")
    k("v_lshl_add_u32 v8, v5, 4, v8")
    k.lgwait_all()
    k("s_barrier")
    for j in range(6):
        k.ds(f"ds_read_b128 {vr(96+4*j)}, v8 offset:{YB+128*j}")
    k("s_mov_b32 s18, 0xffff0000")
    k.vmwait("xr")
    k.lgwait_all()
    for e in range(24):
        k(f"v_lshlrev_b32 v64, 16, v{96+e}")
        k(f"v_and_b32 v65, s18, v{96+e}")
        k(f"v_lshlrev_b32 v66, 16, v{XR+e}")
        k(f"v_and_b32 v67, s18, v{XR+e}")
        k("v_add_f32 v64, v64, v66")
        k("v_add_f32 v65, v65, v67")
        k(f"v_cvt_pk_bf16_f32 v{128+e}, v64, v65")
    for j in range(6):
        k.vmem(f"buffer_store_dwordx4 {vr(128+4*j)}, v6, s[44:47], 0 offen offset:{128*j}")
    k.vmwait_all()
    k.stamp()
    k.dump_stamps(100)
    k.label(f"{name}_end")
    k("s_endpgm")
    return k.text()

HEADER = """; TimeSformer divided space-time attention block, gfx950.  Generated by gen2.py (own generator).
; @launch kernel=k0_kernel grid=(256,1,1) block=(256,1,1) lds=100352
; @launch kernel=k1_kernel grid=(183,1,1) block=(256,1,1) lds=92160
; @launch kernel=k2_kernel grid=(161,1,1) block=(256,1,1) lds=148480
.amdgcn_target "amdgcn-amd-amdhsa--gfx950"
.text
"""
def desc(name, vgpr, accum):
    return f""".amdhsa_kernel {name}
  .amdhsa_next_free_vgpr {vgpr}
  .amdhsa_next_free_sgpr 102
  .amdhsa_accum_offset {accum}
  .amdhsa_group_segment_fixed_size 0
  .amdhsa_kernarg_size 64
  .amdhsa_user_sgpr_count 2
  .amdhsa_user_sgpr_kernarg_segment_ptr 1
  .amdhsa_system_sgpr_workgroup_id_x 1
  .amdhsa_float_denorm_mode_32 3
.end_amdhsa_kernel
"""
def main():
    out = HEADER
    for name, g in (("k0_kernel", gen_K0), ("k1_kernel", gen_K1), ("k2_kernel", gen_K2)):
        out += f".globl {name}\n.p2align 8\n.type {name},@function\n" + g()
    out += '.section .rodata,"a"\n.p2align 6\n'
    out += desc("k0_kernel", 128, 128)
    out += ".p2align 6\n" + desc("k1_kernel", 512, 256)
    out += ".p2align 6\n" + desc("k2_kernel", 512, 256)
    path = sys.argv[1] if len(sys.argv) > 1 else "standalone__video_timesformer__vision.s"
    open(path, "w").write(out)
    print("wrote", path, len(out))
if __name__ == "__main__":
    main()
```

```python
import sys, os, struct
FL = os.environ.get('GENFLAGS', '').split(',')
T, N, C = 7, 729, 384
X_BYTES = T * N * C * 2
FR_BYTES = N * C * 2
WQKV_BYTES = C * 3 * C * 2
WO_BYTES = C * C * 2
MiB = 1 << 20
WS_FQT, WS_FVT, WS_FQS, WS_FVS = 0, 1 * MiB, 2 * MiB, 3 * MiB
WS_X1, WS_H2, WS_U2 = 4 * MiB, 9 * MiB, 14 * MiB
BIG = 0x7f000000
SC = '' if 'nosc' in FL else ' sc1'
SLEEP = int(os.environ.get('SLEEP', '4'))
LOG2E = 1.4426950408889634
QSCALE = (C ** -0.5) * LOG2E
def f2u(f): return struct.unpack('<I', struct.pack('<f', f))[0]

class K:
    def __init__(self):
        self.L = []; self.vm = []; self.lg = []
    def __call__(self, s): self.L.append("    " + s)
    def label(self, l): self.L.append(l + ":")
    def vmem(self, s, tag=None):
        self(s); self.vm.append(tag)
    def vmwait(self, tag):
        idx = max(i for i, t in enumerate(self.vm) if t == tag)
        n = len(self.vm) - 1 - idx
        self(f"s_waitcnt vmcnt({min(n,63)})")
    def vmwait_all(self): self("s_waitcnt vmcnt(0)")
    def ds(self, s, tag=None):
        self(s); self.lg.append(tag)
    def lgwait(self, tag):
        idx = max(i for i, t in enumerate(self.lg) if t == tag)
        n = len(self.lg) - 1 - idx
        self(f"s_waitcnt lgkmcnt({min(n,15)})")
    def lgwait_all(self): self("s_waitcnt lgkmcnt(0)")
    def srd(self, d, lo, off, size):
        if off:
            self(f"s_add_u32 s{d}, s{lo}, {off}")
            self(f"s_addc_u32 s{d+1}, s{lo+1}, 0")
        else:
            self(f"s_mov_b32 s{d}, s{lo}")
            self(f"s_mov_b32 s{d+1}, s{lo+1}")
        self(f"s_mov_b32 s{d+2}, {size}")
        self(f"s_mov_b32 s{d+3}, 0x00020000")
    def srd_s(self, d, lo, soff, size):
        self(f"s_add_u32 s{d}, s{lo}, s{soff}")
        self(f"s_addc_u32 s{d+1}, s{lo+1}, 0")
        self(f"s_mov_b32 s{d+2}, {size}")
        self(f"s_mov_b32 s{d+3}, 0x00020000")
    ph = 0
    off = False
    def stamp(self):
        if 'stamp' not in FL or self.off: return
        if f"st{self.ph}" not in FL: return
        n = getattr(self, 'nst', 0)
        if n >= 18: return
        self("s_memtime s[70:71]")
        self("s_waitcnt lgkmcnt(0)")
        self(f"s_mov_b32 s{84+n}, s70")
        self.nst = n + 1
    def rt(self, idx):
        if 'rt' not in FL: return
        self("s_memrealtime s[70:71]")
        self("s_waitcnt lgkmcnt(0)")
        self(f"s_mov_b32 s{90+idx}, s70")
    def dump_rt(self):
        if 'rt' not in FL: return
        lab = f"L_nort_{len(self.L)}"
        self("s_cmp_lg_u32 s3, 0")
        self(f"s_cbranch_scc1 {lab}")
        self.srd(84, 30, 32 * MiB, 65536)
        self("s_lshl_b32 s70, s2, 5")
        self("v_mov_b32 v65, s70")
        for i in range(8):
            self(f"v_mov_b32 v64, s{90+i}")
            self(f"buffer_store_dword v64, v65, s[84:87], 0 offen offset:{4*i}")
        self.label(lab)
    def dump_stamps(self, wg=0):
        if 'stamp' not in FL: return
        lab = f"L_nodump_{id(self)}"
        self(f"s_cmp_lg_u32 s2, {wg}")
        self(f"s_cbranch_scc1 {lab}")
        self("s_cmp_lg_u32 s3, 0")
        self(f"s_cbranch_scc1 {lab}")
        self("s_load_dwordx2 s[64:65], s[0:1], 48")
        self("s_waitcnt lgkmcnt(0)")
        self("s_mov_b32 s66, 256")
        self("s_mov_b32 s67, 0x00020000")
        self("v_mov_b32 v65, 0")
        for i in range(self.nst):
            self(f"v_mov_b32 v64, s{84+i}")
            self(f"buffer_store_dword v64, v65, s[64:67], 0 offen offset:{4*i+4}")
        self.label(lab)
    def ool_begin(self):
        self._save = self.L; self.L = []
    def ool_end(self):
        if not hasattr(self, 'OOL'): self.OOL = []
        self.OOL += self.L; self.L = self._save
    def text(self): return "\n".join(self.L + getattr(self, 'OOL', [])) + "\n"

def vr(b, n=4): return f"v[{b}:{b+n-1}]"
def ar(b, n=4): return f"a[{b}:{b+n-1}]"
MFMA = "v_mfma_f32_32x32x16_bf16"

def prologue(k, name, ngrid):
    k.label(name)
    k(f"s_cmp_ge_u32 s2, {ngrid}")
    k(f"s_cbranch_scc1 {name}_end")
    k("s_load_dwordx16 s[16:31], s[0:1], 0")
    k("v_and_b32 v1, 63, v0")
    k("v_lshrrev_b32 v4, 6, v0")
    k("v_and_b32 v2, 31, v1")
    k("v_readfirstlane_b32 s3, v4")
    k("v_lshrrev_b32 v3, 5, v1")
    k("s_waitcnt lgkmcnt(0)")

def bf16r(k, dst, src):
    k(f"v_cvt_pk_bf16_f32 v{dst}, v{src}, v{src}")
    k(f"v_lshlrev_b32 v{dst}, 16, v{dst}")

def ln_stats(k, s1, s2, m, rinv, t):
    k(f"v_mul_f32 v{s1}, {hex(f2u(1.0/C))}, v{s1}")
    k(f"v_mul_f32 v{s2}, {hex(f2u(1.0/C))}, v{s2}")
    k(f"v_fma_f32 v{s2}, -v{s1}, v{s1}, v{s2}")
    k(f"v_max_f32 v{s2}, 0, v{s2}")
    bf16r(k, m, s1)
    bf16r(k, t, s2)
    k(f"v_add_f32 v{t}, {hex(f2u(1e-5))}, v{t}")
    bf16r(k, t, t)
    k(f"v_sqrt_f32 v{t}, v{t}")
    k("s_nop 0")
    bf16r(k, t, t)
    k(f"v_rcp_f32 v{rinv}, v{t}")
    k("s_nop 0")

def xhalf(k, op, a, tmp):
    k(f"v_mov_b32 v{tmp}, v{a}")
    k("s_nop 1")
    k(f"v_permlane32_swap_b32 v{a}, v{tmp}")
    k("s_nop 1")
    k(f"{op} v{a}, v{a}, v{tmp}")

PH = 784

def fold(k, name):
    k.vm = []; k.lg = []
    k("s_mul_hi_u32 s6, s5, 0x2AAAAAAB")
    k("s_mul_i32 s7, s6, 6")
    k("s_sub_u32 s7, s5, s7")
    k("s_cmp_ge_u32 s4, 2")
    k("s_cselect_b32 s8, s22, s18")
    k("s_cselect_b32 s9, s23, s19")
    k("s_cselect_b32 s10, s24, s20")
    k("s_cselect_b32 s11, s25, s21")
    k("s_mov_b32 s32, s8"); k("s_mov_b32 s33, s9"); k(f"s_mov_b32 s34, {WQKV_BYTES}"); k("s_mov_b32 s35, 0x00020000")
    k("s_mov_b32 s36, s10"); k("s_mov_b32 s37, s11"); k(f"s_mov_b32 s38, {WO_BYTES}"); k("s_mov_b32 s39, 0x00020000")
    k("s_lshl_b32 s8, s4, 20")
    k.srd_s(40, 30, 8, WO_BYTES)
    k("s_and_b32 s12, s4, 1")
    AB, BBASE = 0, 64 * PH
    k("v_lshlrev_b32 v5, 4, v1")
    k("s_lshl_b32 s13, s6, 6")
    k("s_lshl_b32 s14, s3, 4")
    k("s_add_u32 s13, s13, s14")
    k("s_mul_i32 s13, s13, 2304")
    k("s_mul_i32 s15, s12, 1536")
    k("s_add_u32 s13, s13, s15")
    k(f"s_mul_i32 s14, s14, {PH}")
    k("v_cmp_gt_u32 vcc, 48, v1")
    k("s_and_saveexec_b64 s[44:45], vcc")
    for r in range(16):
        k(f"s_add_u32 m0, s14, {AB + r*PH}")
        k(f"s_add_u32 s15, s13, {r*2304}")
        k("s_nop 0")
        k.vmem("buffer_load_dwordx4 v5, s[32:35], s15 offen lds")
    k("s_mov_b64 exec, s[44:45]")
    k(f"v_mul_u32_u24 v6, {PH}, v2")
    k("v_lshl_add_u32 v6, v3, 4, v6")
    k("s_lshr_b32 s46, s3, 1")
    k("s_and_b32 s47, s3, 1")
    k(f"s_mul_i32 s15, s46, {32*PH}")
    k("v_add_u32 v7, s15, v6")
    k("s_cmp_eq_u32 s12, 1")
    k(f"s_cbranch_scc1 {name}_vo")
    k("s_lshl_b32 s13, s7, 6")
    k("s_lshl_b32 s14, s3, 4")
    k("s_add_u32 s13, s13, s14")
    k("s_mul_i32 s13, s13, 2304")
    k("s_add_u32 s13, s13, 768")
    k(f"s_mul_i32 s14, s14, {PH}")
    k("s_and_saveexec_b64 s[44:45], vcc")
    for r in range(16):
        k(f"s_add_u32 m0, s14, {BBASE + r*PH}")
        k(f"s_add_u32 s15, s13, {r*2304}")
        k("s_nop 0")
        k.vmem("buffer_load_dwordx4 v5, s[32:35], s15 offen lds")
    k("s_mov_b64 exec, s[44:45]")
    k(f"s_mul_i32 s15, s47, {32*PH}")
    k(f"s_add_u32 s15, s15, {BBASE}")
    k("v_add_u32 v8, s15, v6")
    k.vmwait_all()
    k("s_barrier")
    ACC = 16
    for s in range(24):
        k.ds(f"ds_read_b128 {vr(32+(s%8)*8)}, v7 offset:{32*s}", tag=f"f{s}")
        k.ds(f"ds_read_b128 {vr(36+(s%8)*8)}, v8 offset:{32*s}", tag=f"f{s}")
        if s >= 6:
            s0 = s - 6
            k.lgwait(f"f{s0}")
            k(f"{MFMA} {vr(ACC,16)}, {vr(32+(s0%8)*8)}, {vr(36+(s0%8)*8)}, {vr(ACC,16) if s0 else 0}")
    for s0 in range(18, 24):
        k.lgwait(f"f{s0}")
        k(f"{MFMA} {vr(ACC,16)}, {vr(32+(s0%8)*8)}, {vr(36+(s0%8)*8)}, {vr(ACC,16)}")
    k("s_nop 15")
    for r in range(16):
        k(f"v_mul_f32 v{ACC+r}, {hex(f2u(QSCALE))}, v{ACC+r}")
    for e in range(8):
        k(f"v_cvt_pk_bf16_f32 v{32+e}, v{ACC+2*e}, v{ACC+2*e+1}")
    k("s_nop 1")
    for sp in range(2):
        k(f"v_permlane32_swap_b32 v{32+4*sp}, v{34+4*sp}")
        k(f"v_permlane32_swap_b32 v{33+4*sp}, v{35+4*sp}")
    k(f"s_branch {name}_store")
    k.label(f"{name}_vo")
    k("v_lshrrev_b32 v8, 3, v1")
    k("v_and_b32 v9, 7, v1")
    k("v_mul_u32_u24 v8, 768, v8")
    k("v_lshl_add_u32 v8, v9, 4, v8")
    k("s_lshl_b32 s13, s7, 7")
    k("s_mul_i32 s14, s3, 96*768")
    k("s_add_u32 s13, s13, s14")
    k("s_mul_i32 s14, s3, 96*128")
    for i in range(12):
        k(f"s_add_u32 m0, s14, {BBASE + i*1024}")
        k(f"s_add_u32 s15, s13, {i*8*768}")
        k("s_nop 0")
        k.vmem("buffer_load_dwordx4 v8, s[36:39], s15 offen lds")
    k("v_and_b32 v4, 15, v1")
    k("v_lshrrev_b32 v9, 2, v4")
    k("v_and_b32 v4, 3, v4")
    k("v_lshl_add_u32 v9, v3, 3, v9")
    k("v_lshlrev_b32 v9, 7, v9")
    k("v_lshl_add_u32 v9, v4, 3, v9")
    k("v_bfe_u32 v4, v1, 4, 1")
    k("v_lshl_add_u32 v9, v4, 5, v9")
    k("s_lshl_b32 s15, s47, 6")
    k(f"s_add_u32 s15, s15, {BBASE}")
    k("v_add_u32 v9, s15, v9")
    k.vmwait_all()
    k("s_barrier")
    k.lg = []
    for s in range(24):
        k.ds(f"ds_read_b128 {vr(32+(s%8)*8)}, v7 offset:{32*s}", tag=f"f{s}")
        for q in range(2):
            k.ds(f"ds_read_b64_tr_b16 v[{36+(s%8)*8+2*q}:{37+(s%8)*8+2*q}], v9 offset:{(16*s+4*q)*128}", tag=f"f{s}")
        if s >= 4:
            s0 = s - 4
            k.lgwait(f"f{s0}")
            k(f"{MFMA} {vr(ACC,16)}, {vr(32+(s0%8)*8)}, {vr(36+(s0%8)*8)}, {vr(ACC,16) if s0 else 0}")
    for s0 in range(20, 24):
        k.lgwait(f"f{s0}")
        k(f"{MFMA} {vr(ACC,16)}, {vr(32+(s0%8)*8)}, {vr(36+(s0%8)*8)}, {vr(ACC,16)}")
    k("s_nop 15")
    for e in range(8):
        k(f"v_cvt_pk_bf16_f32 v{32+e}, v{ACC+2*e}, v{ACC+2*e+1}")
    k.label(f"{name}_store")
    k("s_lshl_b32 s13, s7, 1")
    k("s_add_u32 s13, s13, s47")
    k("s_mul_i32 s13, s13, 24")
    k("s_lshl_b32 s14, s6, 1")
    k("s_add_u32 s14, s14, s46")
    k("s_lshl_b32 s14, s14, 1")
    k("s_add_u32 s13, s13, s14")
    k("s_lshl_b32 s13, s13, 10")
    k("s_nop 1")
    k.vmem(f"buffer_store_dwordx4 {vr(32)}, v5, s[40:43], s13 offen sc1")
    k.vmem(f"buffer_store_dwordx4 {vr(36)}, v5, s[40:43], s13 offen offset:1024 sc1")

def phase1(k, name):
    k.vm = []; k.lg = []
    HB, XB, SX, YX, ST = 0, 25088, 50176, 66560, 91136
    k.stamp()
    UB = SX
    k.srd(32, 16, 0, X_BYTES)
    if 'winput' in FL:
        k.srd(36, 18, 0, WQKV_BYTES)
    else:
        k.srd(36, 30, 0, 4 * MiB)
    k.srd(40, 30, WS_X1, X_BYTES)
    k.srd(44, 30, WS_H2, X_BYTES)
    k.srd(48, 30, WS_U2, X_BYTES)
    k("v_lshrrev_b32 v4, 3, v1")
    k("s_lshl_b32 s4, s3, 3")
    k("v_add_u32 v4, s4, v4")
    k("v_and_b32 v5, 7, v1")
    k("v_mul_u32_u24 v6, 9363, v4")
    k("v_lshrrev_b32 v6, 16, v6")
    k("v_mul_u32_u24 v7, 7, v6")
    k("v_sub_u32 v7, v4, v7")
    k("s_lshl_b32 s5, s62, 2")
    k("v_add_u32 v6, s5, v6")
    k("v_mul_u32_u24 v7, 729, v7")
    k("v_add_u32 v7, v7, v6")
    k("v_mul_u32_u24 v7, 768, v7")
    k("v_lshl_add_u32 v7, v5, 4, v7")
    k(f"v_cmp_gt_u32 vcc, {N}, v6")
    k("s_mov_b64 s[12:13], vcc")
    k("v_cmp_gt_u32 vcc, 28, v4")
    k(f"v_mov_b32 v8, {hex(BIG)}")
    k("s_nop 1")
    k("s_and_b64 vcc, vcc, s[12:13]")
    k("s_nop 1")
    k("v_cndmask_b32 v8, v8, v7, vcc")
    XA, HA = 16, 40
    for j in range(6):
        k.vmem(f"buffer_load_dwordx4 {vr(XA+4*j)}, v8, s[32:35], 0 offen offset:{128*j}", tag="x")
    k(f"v_mul_u32_u24 v9, {PH}, v4")
    k("v_lshl_add_u32 v9, v5, 4, v9")
    R = 60
    k("v_lshlrev_b32 v10, 4, v1")
    k("s_mul_i32 s6, s3, 73728")
    bases = [WS_FQT, WS_FVT, WS_FQS] if 'winput' not in FL else [0, 294912, 589824]
    issued = [0]
    wgate = [0]
    wi = [0]
    def wissue(n=1):
        for _ in range(n):
            i = issued[0]
            if i >= 216 or i >= wi[0] + R or i >= wgate[0]: return
            mi, r = i // 72, i % 72
            s, j = r // 3, r % 3
            off = bases[mi] + (j * 24 + s) * 1024
            k(f"s_add_u32 s7, s6, {off & ~4095}")
            k.vmem(f"buffer_load_dwordx4 {ar((i % R)*4)}, v10, s[36:39], s7 offen offset:{off & 4095}{SC}", tag=f"w{i}")
            issued[0] += 1
    wissue(10)
    k("s_mov_b32 s10, 0x3f803f80")
    k("s_mov_b32 s11, 0xffff0000")
    for i in range(4): k(f"v_mov_b32 v{64+i}, 0")
    k.vmwait("x")
    k.stamp()
    for i in range(24):
        k(f"v_dot2_f32_bf16 v{64+(i&1)}, v{XA+i}, s10, v{64+(i&1)}")
        k(f"v_dot2_f32_bf16 v{66+(i&1)}, v{XA+i}, v{XA+i}, v{66+(i&1)}")
        if i % 2 == 1: wissue(1)
    for j in range(6):
        k.ds(f"ds_write_b128 v9, {vr(XA+4*j)} offset:{XB+128*j}")
    k("v_add_f32 v64, v64, v65")
    k("v_add_f32 v66, v66, v67")
    def red8(rs):
        for ctl in ("quad_perm:[1,0,3,2]", "quad_perm:[2,3,0,1]", "row_half_mirror"):
            k("s_nop 1")
            for r in rs:
                k(f"v_add_f32_dpp v{r}, v{r}, v{r} {ctl} row_mask:0xf bank_mask:0xf")
    red8([64, 66])
    ln_stats(k, 64, 66, 68, 69, 70)
    k("v_mul_f32 v68, v68, v69")
    for i in range(24):
        k(f"v_lshlrev_b32 v72, 16, v{XA+i}")
        k(f"v_and_b32 v73, s11, v{XA+i}")
        k(f"v_fma_f32 v72, v72, v69, -v68")
        k(f"v_fma_f32 v73, v73, v69, -v68")
        k(f"v_cvt_pk_bf16_f32 v{HA+i}, v72, v73")
        wissue(1)
    for j in range(6):
        k.ds(f"ds_write_b128 v9, {vr(HA+4*j)} offset:{HB+128*j}")
    wissue(8)
    k(f"v_mul_u32_u24 v11, {PH}, v2")
    k("v_lshl_add_u32 v12, v3, 4, v11")
    k("s_mul_i32 s8, s3, 192")
    k("v_lshl_add_u32 v13, v3, 3, v11")
    k("v_add_u32 v13, s8, v13")
    k.lgwait_all()
    k("s_cmp_lg_u32 s3, 0")
    k(f"s_cbranch_scc1 {name}_np0")
    poll(k, f"{name}_p0", 0, 72)
    k.label(f"{name}_np0")
    k("s_barrier")
    k.rt(1)
    k.stamp()
    k.vm = []
    wgate[0] = 144
    wissue(8)
    k("s_lshr_b32 s9, s62, 3")
    k("s_lshl_b32 s9, s9, 2")
    k("s_add_u32 s9, s9, s3")
    k("s_lshl_b32 s52, s9, 10")
    for j in range(7):
        k(f"s_add_u32 s9, s52, {92*1024*j}")
        k(f"s_cmp_ge_u32 s9, {288*1024}")
        k(f"s_cselect_b32 s7, {MiB - 288*1024}, 0")
        k("s_add_u32 s9, s9, s7")
        k.vmem(f"buffer_load_dwordx4 {ar(240+4*(j&3))}, v10, s[36:39], s9 offen sc1")
    wissue(12)
    BR, NBR = 64, 8
    ACC = 96
    PK = 144
    def gemm(baddr, boff, bstride):
        k.lg = []
        def rd(s): k.ds(f"ds_read_b128 {vr(BR+(s%NBR)*4)}, v{baddr} offset:{boff+s*bstride}", tag=f"b{s}")
        for s in range(NBR - 1): rd(s)
        for s in range(24):
            if s + NBR - 1 < 24: rd(s + NBR - 1)
            k.lgwait(f"b{s}")
            for j in range(3):
                i = wi[0]
                if 'now' not in FL: k.vmwait(f"w{i}")
                if 'nomf' not in FL: k(f"{MFMA} {vr(ACC+16*j,16)}, {ar((i%R)*4)}, {vr(BR+(s%NBR)*4)}, {vr(ACC+16*j,16) if s else 0}")
                wi[0] += 1
                if (i & 1) or issued[0] < wi[0] + 40: wissue(1)
        k("s_nop 15")
    k.stamp()
    gemm(12, HB, 32)
    k.stamp()
    k(f"s_and_b32 s9, s2, {NREP-1}")
    k(f"s_mul_i32 s9, s9, {NSH*128}")
    k(f"s_add_u32 s9, s9, {CSZ}")
    k(f"v_and_b32 v63, {NSH-1}, v1")
    k("v_lshlrev_b32 v63, 7, v63")
    k("v_add_u32 v63, s9, v63")
    k.vmem("buffer_load_dword v62, v63, s[80:83], 0 offen sc1", tag="c1")
    for s in range(6):
        k.ds(f"ds_read2_b64 {vr(BR+4*s)}, v13 offset0:{4*s} offset1:{4*s+2}", tag=f"c{s}")
    for e in range(24):
        k(f"v_cvt_pk_bf16_f32 v{PK+e}, v{ACC+2*e}, v{ACC+2*e+1}")
        if e % 8 == 7: wissue(1)
    SA = 168
    k.lgwait_all()
    k("s_nop 1")
    for s in range(6):
        k(f"{MFMA} {vr(SA,16)}, {vr(BR+4*s)}, {vr(PK+4*s)}, {vr(SA,16) if s else 0}")
    k("s_lshl_b32 s9, s3, 12")
    k(f"s_add_u32 s9, s9, {SX}")
    k("v_add_u32 v14, s9, v10")
    k(f"v_add_u32 v15, {SX}, v10")
    k("s_nop 15")
    for e in range(4):
        k.ds(f"ds_write_b128 v14, {vr(SA+4*e)} offset:{1024*e}")
    k.lgwait_all()
    k("s_barrier")
    SS = 184
    for w in range(4):
        for e in range(4):
            k.ds(f"ds_read_b128 {vr(SS+16*w+4*e)}, v15 offset:{4096*w+1024*e}")
    k("v_mul_u32_u24 v4, 9363, v2")
    k("v_lshrrev_b32 v4, 16, v4")
    k("v_mul_u32_u24 v4, 7, v4")
    k("v_lshlrev_b32 v5, 2, v3")
    k("v_sub_u32 v4, v4, v5")
    k("v_mov_b32 v5, 0xff800000")
    k.lgwait_all()
    for r in range(16):
        k(f"v_add_f32 v{SS+r}, v{SS+r}, v{SS+16+r}")
        k(f"v_add_f32 v{SS+32+r}, v{SS+32+r}, v{SS+48+r}")
        if r % 4 == 3: wissue(1)
    for r in range(16):
        k(f"v_add_f32 v{SA+r}, v{SS+r}, v{SS+32+r}")
        if r % 8 == 7: wissue(1)
    k.stamp()
    for r in range(16):
        cr = 8 * (r >> 2) + (r & 3)
        k(f"v_sub_u32 v6, {cr}, v4")
        k("v_cmp_gt_u32 vcc, 7, v6")
        k("s_nop 1")
        k(f"v_cndmask_b32 v{SA+r}, v5, v{SA+r}, vcc")
        if r % 2 == 1: wissue(1)
    k(f"v_max3_f32 v6, v{SA}, v{SA+1}, v{SA+2}")
    for r in range(3, 15, 2):
        k(f"v_max3_f32 v6, v6, v{SA+r}, v{SA+r+1}")
    k(f"v_max_f32 v6, v6, v{SA+15}")
    xhalf(k, "v_max_f32", 6, 7)
    k("v_max_f32 v6, 0xff7fffff, v6")
    for r in range(16):
        k(f"v_sub_f32 v{SA+r}, v{SA+r}, v6")
        if r % 8 == 7: wissue(1)
    for r in range(16):
        k(f"v_exp_f32 v{SA+r}, v{SA+r}")
        if r % 4 == 3: wissue(1)
    k("s_nop 0")
    k(f"v_add_f32 v6, v{SA}, v{SA+1}")
    for r in range(2, 16):
        k(f"v_add_f32 v6, v6, v{SA+r}")
        if r % 8 == 7: wissue(1)
    xhalf(k, "v_add_f32", 6, 7)
    k("v_rcp_f32 v6, v6")
    k("s_nop 0")
    PF = 248
    for r in range(16):
        k(f"v_mul_f32 v{SA+r}, v{SA+r}, v6")
        if r % 8 == 7: wissue(1)
    for p in range(8):
        k(f"v_cvt_pk_bf16_f32 v{PF+p}, v{SA+2*p}, v{SA+2*p+1}")
    wissue(2)
    k("v_and_b32 v4, 15, v1")
    k("v_lshrrev_b32 v5, 2, v4")
    k("v_and_b32 v4, 3, v4")
    k("v_lshl_add_u32 v5, v3, 2, v5")
    k(f"v_mul_u32_u24 v5, {PH}, v5")
    k("v_lshl_add_u32 v5, v4, 3, v5")
    k("v_bfe_u32 v4, v1, 4, 1")
    k("v_lshl_add_u32 v5, v4, 5, v5")
    k("v_add_u32 v5, s8, v5")
    for j in range(3):
        for sp in range(2):
            for q in range(2):
                b = BR + (j * 2 + sp) * 4 + 2 * q
                k.ds(f"ds_read_b64_tr_b16 v[{b}:{b+1}], v5 offset:{HB+(16*sp+8*q)*PH+64*j}")
    k.lgwait_all()
    for j in range(3):
        for sp in range(2):
            k(f"{MFMA} {vr(ACC+16*j,16)}, {vr(BR+(j*2+sp)*4)}, {vr(PF+4*sp)}, {vr(ACC+16*j,16) if sp else 0}")
    k("s_mul_i32 s9, s3, 6144")
    k(f"s_add_u32 s9, s9, {YX}")
    k("v_add_u32 v14, s9, v10")
    k(f"v_add_u32 v15, {YX}, v10")
    k("s_nop 15")
    for e in range(24):
        k(f"v_cvt_pk_bf16_f32 v{PK+e}, v{ACC+2*e}, v{ACC+2*e+1}")
        if e % 6 == 5: wissue(1)
    for s in range(6):
        k.ds(f"ds_write_b128 v14, {vr(PK+4*s)} offset:{1024*s}")
    wissue(6)
    k.lgwait_all()
    k("s_barrier")
    k.vmwait("c1")
    k("v_readlane_b32 s9, v62, 0")
    for i in range(1, NSH):
        k(f"v_readlane_b32 s7, v62, {i}")
        k("s_nop 3")
        k("s_add_u32 s9, s9, s7")
    k("s_cmp_ge_u32 s9, 72")
    k(f"s_cbranch_scc1 {name}_c1ok")
    poll(k, f"{name}_p1", 1, 72)
    k.label(f"{name}_c1ok")
    wgate[0] = 204
    k.stamp()
    gemm(15, 0, 1024)
    k.stamp()
    XR = 184
    for jq in range(12):
        j, q = jq // 4, jq % 4
        k.ds(f"ds_read_b64 v[{XR+2*jq}:{XR+2*jq+1}], v13 offset:{XB+64*j+16*q}")
    k("v_mov_b32 v6, 0"); k("v_mov_b32 v7, 0")
    k.lgwait_all()
    for jq in range(12):
        for e in range(2):
            a = ACC + jq * 4 + 2 * e
            x = XR + jq * 2 + e
            k(f"v_lshlrev_b32 v65, 16, v{x}")
            k(f"v_and_b32 v66, s11, v{x}")
            k(f"v_add_f32 v{a}, v{a}, v65")
            k(f"v_add_f32 v{a+1}, v{a+1}, v66")
            k(f"v_cvt_pk_bf16_f32 v{x}, v{a}, v{a+1}")
            k(f"v_dot2_f32_bf16 v6, v{x}, s10, v6")
            k(f"v_dot2_f32_bf16 v7, v{x}, v{x}, v7")
        wissue(1)
    for jq in range(12):
        j, q = jq // 4, jq % 4
        k.ds(f"ds_write_b64 v13, v[{XR+2*jq}:{XR+2*jq+1}] offset:{XB+64*j+16*q}")
    k("s_nop 2")
    xhalf(k, "v_add_f32", 6, 64)
    xhalf(k, "v_add_f32", 7, 64)
    k("v_lshlrev_b32 v4, 3, v2")
    k(f"v_add_u32 v4, {ST}, v4")
    k("s_lshl_b32 s9, s3, 8")
    k("v_add_u32 v5, s9, v4")
    k.ds("ds_write_b64 v5, v[6:7]")
    k.lgwait_all()
    k("s_barrier")
    for w in range(4):
        k.ds(f"ds_read_b64 v[{64+2*w}:{65+2*w}], v4 offset:{256*w}")
    k.lgwait_all()
    k("v_add_f32 v64, v64, v66"); k("v_add_f32 v65, v65, v67")
    k("v_add_f32 v68, v68, v70"); k("v_add_f32 v69, v69, v71")
    k("v_add_f32 v64, v64, v68"); k("v_add_f32 v65, v65, v69")
    ln_stats(k, 64, 65, 66, 67, 68)
    k("v_mul_f32 v66, v66, v67")
    for e in range(24):
        x = XR + e
        k(f"v_lshlrev_b32 v72, 16, v{x}")
        k(f"v_and_b32 v73, s11, v{x}")
        k(f"v_fma_f32 v72, v72, v67, -v66")
        k(f"v_fma_f32 v73, v73, v67, -v66")
        k(f"v_cvt_pk_bf16_f32 v{PK+e}, v72, v73")
        if e % 2 == 1: wissue(1)
    for jq in range(12):
        j, q = jq // 4, jq % 4
        k.ds(f"ds_write_b64 v13, v[{PK+2*jq}:{PK+2*jq+1}] offset:{HB+64*j+16*q}")
    wissue(8)
    k.lgwait_all()
    k("s_barrier")
    wissue(60)
    for j in range(6):
        k.ds(f"ds_read_b128 {vr(XA+4*j)}, v9 offset:{XB+128*j}")
        k.ds(f"ds_read_b128 {vr(HA+4*j)}, v9 offset:{HB+128*j}")
    k.lgwait_all()
    for j in range(6):
        k.vmem(f"buffer_store_dwordx4 {vr(XA+4*j)}, v8, s[40:43], 0 offen offset:{128*j} sc1")
        k.vmem(f"buffer_store_dwordx4 {vr(HA+4*j)}, v8, s[44:47], 0 offen offset:{128*j} sc1")

def phase2(k, name):
    k.vm = []; k.lg = []
    k(f"s_mul_hi_u32 s4, s6, {((1<<32)+22)//23}")
    k("s_mul_i32 s5, s4, 23")
    k("s_sub_u32 s5, s6, s5")
    k(f"s_mul_i32 s6, s4, {FR_BYTES}")
    k(f"s_add_u32 s7, s6, {WS_H2}")
    k.srd_s(32, 30, 7, FR_BYTES)
    k.srd(36, 30, WS_FQS, WO_BYTES)
    k(f"s_add_u32 s7, s6, {WS_X1}")
    k.srd_s(40, 30, 7, FR_BYTES)
    k.srd_s(44, 26, 6, FR_BYTES)
    k.srd(48, 30, WS_FVS, WO_BYTES)
    HS = 12288
    k.stamp()
    WR = 3 * HS
    for b in range(3):
        k(f"v_add_u32 v7, {64*b}, v1")
        k("v_mul_u32_u24 v8, 1366, v7")
        k("v_lshrrev_b32 v8, 16, v8")
        k("v_mul_u32_u24 v9, 48, v8")
        k("v_sub_u32 v9, v7, v9")
        k("v_lshlrev_b32 v10, 2, v8")
        k("v_xor_b32 v9, v9, v10")
        k("v_mul_u32_u24 v8, 768, v8")
        k(f"v_lshl_add_u32 v{4+b}, v9, 4, v8")
    k(f"s_mul_i32 s8, s3, {WR}")
    tmpi = [0]
    def dma_one(srd, srow, ldsbase_s, ldsoff, tag, i):
        a, b = i // 3, i % 3
        if a:
            t = 7 + (tmpi[0] & 1); tmpi[0] += 1
            k(f"v_xor_b32 v{t}, {16*a}, v{4+b}")
        else:
            t = 4 + b
        k(f"s_add_u32 m0, s{ldsbase_s}, {ldsoff + i*1024}")
        k(f"s_add_u32 s10, s{srow}, {a*3072}")
        k.vmem(f"buffer_load_dwordx4 v{t}, s[{srd}:{srd+3}], s10 offen{SC} lds", tag=tag)
    def dma_half(srd, srow, ldsbase_s, ldsoff, tag):
        for i in range(12): dma_one(srd, srow, ldsbase_s, ldsoff, tag, i)
    k("s_lshl_b32 s11, s5, 5")
    k("s_mul_i32 s11, s11, 768")
    k("s_lshl_b32 s14, s3, 5")
    k("s_mul_i32 s14, s14, 768")
    k("s_mul_hi_u32 s15, s5, 0x2AAAAAAB")
    k("s_mul_i32 s15, s15, 6")
    k("s_sub_u32 s15, s5, s15")
    def hload_one(hf, i):
        if i == 0:
            d = 56 + (hf & 1)
            k(f"s_add_u32 s{d}, s15, {hf // 2}")
            k(f"s_cmp_ge_u32 s{d}, 6")
            k(f"s_cselect_b32 s12, 6, 0")
            k(f"s_sub_u32 s{d}, s{d}, s12")
            k(f"s_mul_i32 s{d}, s{d}, {128*768}")
            k(f"s_add_u32 s{d}, s{d}, s14")
            if hf & 1: k(f"s_add_u32 s{d}, s{d}, {16*768}")
        dma_one(32, 56 + (hf & 1), 8, (hf % 3) * HS, f"h{hf}", i)
    def hload(hf):
        for i in range(12): hload_one(hf, i)
    k("v_and_b32 v28, 15, v2")
    k("v_and_b32 v29, 3, v28")
    k("v_lshlrev_b32 v29, 2, v29")
    k("v_lshrrev_b32 v30, 2, v28")
    k("v_or_b32 v29, v29, v30")
    k("v_mul_u32_u24 v28, 768, v28")
    for bi in range(8):
        k(f"v_add_u32 v30, {2*bi}, v3")
        k("v_xor_b32 v30, v30, v29")
        k(f"v_lshl_add_u32 v{9+bi}, v30, 4, v28")
    k("v_lshrrev_b32 v30, 4, v2")
    k(f"v_mul_u32_u24 v31, {WR}, v30")
    k(f"v_add_u32 v31, {2*HS}, v31")
    for bi in range(8):
        k(f"v_add_u32 v{56+bi}, v{9+bi}, v31")
    k(f"v_mul_u32_u24 v31, {HS}, v30")
    k("v_add_u32 v31, s8, v31")
    for bi in range(8):
        k(f"v_add_u32 v{9+bi}, v{9+bi}, v31")
    k("v_cmp_eq_u32 vcc, 0, v30")
    k(f"v_mov_b32 v31, {2*HS}")
    k(f"v_mov_b32 v28, {(-HS) & 0xffffffff}")
    k("s_nop 0")
    k("v_cndmask_b32 v17, v28, v31, vcc")
    k("v_cndmask_b32 v18, v31, v28, vcc")
    k("v_mov_b32 v19, v28")
    k("v_and_b32 v28, 15, v1")
    k("v_lshrrev_b32 v29, 2, v28")
    k("v_and_b32 v28, 3, v28")
    k("v_bfe_u32 v30, v1, 4, 1")
    k("v_lshlrev_b32 v30, 1, v30")
    k("v_lshrrev_b32 v31, 1, v28")
    k("v_add_u32 v30, v30, v31")
    k("v_and_b32 v28, 1, v28")
    k("v_lshlrev_b32 v28, 3, v28")
    k("v_add_u32 v28, s8, v28")
    for q in range(2):
        k(f"v_lshl_add_u32 v31, v3, 2, v29")
        if q: k("v_add_u32 v31, 8, v31")
        k("v_mul_u32_u24 v31, 768, v31")
        k("v_add_u32 v31, v31, v28")
        k(f"v_add_u32 v32, {2*q}, v3")
        k("v_and_b32 v32, 3, v32")
        k("v_lshl_or_b32 v32, v29, 2, v32")
        for c in range(4):
            k(f"s_add_u32 s12, s3, {c}")
            k("s_and_b32 s12, s12, 3")
            k("s_lshl_b32 s12, s12, 2")
            k("v_add_u32 v33, s12, v30")
            k("v_xor_b32 v33, v33, v32")
            k(f"v_lshl_add_u32 v{20+q*4+c}, v33, 4, v31")
    k("v_lshlrev_b32 v34, 4, v1")
    k("s_mul_i32 s58, s3, 73728")
    RQ = 60
    qi = [60]; qc = [0]
    def qslot(i): return ((144 + i) % RQ) * 4
    def qissue(n=1):
        for _ in range(n):
            i = qi[0]
            if i >= 72 or i >= qc[0] + RQ: return
            s_, j = i // 3, i % 3
            off = (j * 24 + s_) * 1024
            k(f"s_add_u32 s59, s58, {off & ~4095}")
            k.vmem(f"buffer_load_dwordx4 {ar(qslot(i))}, v34, s[36:39], s59 offen offset:{off & 4095}{SC}", tag=f"q{i}")
            qi[0] += 1
    k("s_cmp_lg_u32 s3, 0")
    k(f"s_cbranch_scc1 {name}_np2")
    poll(k, f"{name}_p2", 2, 183)
    k.label(f"{name}_np2")
    k("s_barrier")
    k.rt(4)
    k.stamp()
    k("s_lshr_b32 s12, s3, 1")
    k(f"s_mul_i32 s13, s12, {16*768}")
    k("s_add_u32 s13, s13, s11")
    k(f"s_mul_i32 s12, s12, {WR}")
    k("s_and_b32 s9, s3, 1")
    k("s_cmp_eq_u32 s9, 0")
    k(f"s_cbranch_scc1 {name}_q0")
    vm_save = list(k.vm)
    for i in range(6, 12): dma_one(32, 13, 12, 2 * HS, "u", i)
    k(f"s_branch {name}_q1")
    k.label(f"{name}_q0")
    k.vm = vm_save
    for i in range(0, 6): dma_one(32, 13, 12, 2 * HS, "u", i)
    k.label(f"{name}_q1")
    hload(0); hload(1)
    k.vmwait("u")
    k("s_barrier")
    k.stamp()
    QA, QB, NQB = 64, 112, 8
    k.lg = []
    def qrd(s_): k.ds(f"ds_read_b128 {vr(QB+(s_%NQB)*4)}, v{56+(s_%8)} offset:{(s_//8)*256}", tag=f"b{s_}")
    for s_ in range(NQB - 1): qrd(s_)
    for s_ in range(24):
        if s_ + NQB - 1 < 24: qrd(s_ + NQB - 1)
        k.lgwait(f"b{s_}")
        for j in range(3):
            i = qc[0]
            if i >= 60: k.vmwait(f"q{i}")
            k(f"{MFMA} {vr(QA+16*j,16)}, {ar(qslot(i))}, {vr(QB+(s_%NQB)*4)}, {vr(QA+16*j,16) if s_ else 0}")
            qc[0] += 1
            qissue(1)
    k("s_nop 15")
    for e in range(24):
        k(f"v_cvt_pk_bf16_f32 v{QB+e}, v{QA+2*e}, v{QA+2*e+1}")
    k("s_nop 1")
    for f_ in range(6):
        k(f"v_permlane32_swap_b32 v{QB+4*f_}, v{QB+4*f_+2}")
        k(f"v_permlane32_swap_b32 v{QB+4*f_+1}, v{QB+4*f_+3}")
    k("s_lshr_b32 s12, s3, 1")
    k(f"s_mul_i32 s12, s12, {WR}")
    k("s_and_b32 s9, s3, 1")
    k("s_mul_i32 s9, s9, 6144")
    k("s_add_u32 s12, s12, s9")
    k(f"s_add_u32 s12, s12, {2*WR + 2*HS}")
    k("v_add_u32 v35, s12, v34")
    k("s_nop 1")
    for f_ in range(6):
        k.ds(f"ds_write_b128 v35, {vr(QB+4*f_)} offset:{1024*f_}")
    k(f"v_add_u32 v35, {2*WR + 2*HS}, v34")
    k(f"v_add_u32 v36, {3*WR + 2*HS}, v34")
    k.lgwait_all()
    k("s_barrier")
    UF = 0
    for s_ in range(24):
        k.ds(f"ds_read_b128 {ar(UF+4*s_)}, v{35 + s_//12} offset:{(s_%12)*1024}")
    k.lgwait_all()
    k("s_barrier")
    k.stamp()
    vm_keep = [t for t in k.vm]
    HT = 96
    KR, NKR = 192, 8
    SA, PF = 32, 48
    OA = 64
    M_, L_ = 28, 29
    THR = 8.0
    wslot = [224 + 4 * i for i in range(8)] + [4 * i for i in range(24)] + [96 + 4 * i for i in range(24)]
    RW = len(wslot)
    k("v_lshlrev_b32 v63, 4, v1")
    k("s_mul_i32 s58, s3, 73728")
    wiss = [0]; wcons = [0]; wlim = [8]
    def wissue(n=1):
        for _ in range(n):
            i = wiss[0]
            if i >= 72: return
            if i < RW:
                if i >= wlim[0]: return
            elif i >= wcons[0] + RW: return
            s, j = i // 3, i % 3
            off = (j * 24 + s) * 1024
            k(f"s_add_u32 s59, s58, {off & ~4095}")
            k.vmem(f"buffer_load_dwordx4 {ar(wslot[i%RW])}, v63, s[48:51], s59 offen offset:{off & 4095}{SC}", tag=f"w{i}")
            wiss[0] += 1
    for tau in range(6):
        hB = 2 * tau + 1
        FINE = 'fine' in FL and tau in (2, 3, 4)
        if 'fine' in FL: k.off = not FINE
        if FINE: k.stamp()
        if f"h{hB}" in k.vm:
            k.vmwait(f"h{hB}")
        if ('coarse' not in FL or tau in (0, 3)) and ('fine' not in FL or FINE): k.stamp()
        k.lg = []
        trl = []
        for sp in range(2):
            slot = ((2 * tau + sp) % 3) * HS
            for ct in range(12):
                for q in range(2):
                    d = HT + (ct * 2 + sp) * 4 + 2 * q
                    trl.append(f"ds_read_b64_tr_b16 a[{d}:{d+1}], v{20+q*4+(ct%4)} offset:{slot+(ct//4)*256}")
        def krd(s): k.ds(f"ds_read_b128 {ar(KR+(s%NKR)*4)}, v{9+(s%8)} offset:{(s//8)*256}", tag=f"k{s}")
        PRE = 5
        for s in range(PRE): krd(s)
        hr = 2 * tau + 2
        for s in range(24):
            if s + PRE < 24: krd(s + PRE)
            if s >= 2:
                for _ in range(2 if s < 23 else 4):
                    if trl: k.ds(trl.pop(0))
            k.lgwait(f"k{s}")
            k(f"{MFMA} {vr(SA,16)}, {ar(KR+(s%NKR)*4)}, {ar(UF+4*s)}, {vr(SA,16) if s else 0}")
            if hr < 12 and s % 2 == 1: hload_one(hr, s // 2)
            elif hr >= 12 and s % 3 == 2: wissue(1)
        while trl: k.ds(trl.pop(0))
        if FINE: k.stamp()
        if tau < 5:
            for bi in range(8):
                k(f"v_add_u32 v{9+bi}, v{9+bi}, v{17+(tau%3)}")
        else:
            k("s_nop 7")
        k.lgwait_all()
        if 'coarse' not in FL and ('fine' not in FL or FINE): k.stamp()
        hu = 2 * tau + 3
        ui = [0]
        def urgent(n=1):
            for _ in range(n):
                if hu < 12:
                    if ui[0] < 12:
                        hload_one(hu, ui[0]); ui[0] += 1
                else:
                    wissue(1)
        if tau == 5: wlim[0] = 32
        urgent(2)
        if True:
            k(f"s_add_u32 s60, s15, {tau}")
            k("s_cmp_eq_u32 s60, 5")
            k("s_cselect_b32 s12, 1, 0")
            k("s_cmp_eq_u32 s60, 11")
            k("s_cselect_b32 s12, 1, s12")
            k("s_cmp_lg_u32 s12, 0")
            k(f"s_cbranch_scc1 {name}_mask{tau}")
            k.label(f"{name}_nomask{tau}")
            k.ool_begin()
            k.label(f"{name}_mask{tau}")
            k("s_lshl_b32 s60, s3, 5")
            k(f"s_sub_u32 s60, {N - 640}, s60")
            k("v_lshlrev_b32 v30, 2, v3")
            k("v_mov_b32 v31, 0xff800000")
            for r in range(16):
                cr = 8 * (r >> 2) + (r & 3)
                k(f"v_add_u32 v56, {cr}, v30")
                k("v_cmp_gt_i32 vcc, s60, v56")
                k("s_nop 1")
                k(f"v_cndmask_b32 v{SA+r}, v31, v{SA+r}, vcc")
            k(f"s_branch {name}_nomask{tau}")
            k.ool_end()
        k(f"v_max3_f32 v30, v{SA}, v{SA+1}, v{SA+2}")
        for r in range(3, 15, 2):
            k(f"v_max3_f32 v30, v30, v{SA+r}, v{SA+r+1}")
        k(f"v_max_f32 v30, v30, v{SA+15}")
        xhalf(k, "v_max_f32", 30, 31)
        urgent(1)
        if tau == 0:
            k(f"v_max_f32 v{M_}, 0xf149f2ca, v30")
            k(f"v_mov_b32 v{L_}, 0")
        else:
            k(f"v_add_f32 v31, {hex(f2u(THR))}, v{M_}")
            k("v_cmp_gt_f32 vcc, v30, v31")
            k(f"s_cbranch_vccnz {name}_rs{tau}")
            k.label(f"{name}_nors{tau}")
            k.ool_begin()
            k.label(f"{name}_rs{tau}")
            k(f"v_max_f32 v30, v30, v{M_}")
            k(f"v_sub_f32 v31, v{M_}, v30")
            k("v_exp_f32 v31, v31")
            k(f"v_mov_b32 v{M_}, v30")
            k("s_nop 7")
            k(f"v_mul_f32 v{L_}, v{L_}, v31")
            for r in range(192):
                k(f"v_mul_f32 v{OA+r}, v{OA+r}, v31")
            k("s_nop 1")
            k(f"s_branch {name}_nors{tau}")
            k.ool_end()
        for r in range(16):
            k(f"v_sub_f32 v{SA+r}, v{SA+r}, v{M_}")
        urgent(1)
        for r in range(16):
            k(f"v_exp_f32 v{SA+r}, v{SA+r}")
            if r % 8 == 7: urgent(1)
        k("s_nop 0")
        for p in range(8):
            k(f"v_cvt_pk_bf16_f32 v{PF+p}, v{SA+2*p}, v{SA+2*p+1}")
        k("s_nop 1")
        if FINE: k.stamp()
        sumops = [f"v_add_f32 v30, v{SA}, v{SA+1}", f"v_add_f32 v31, v{SA+2}, v{SA+3}"]
        for r in range(4, 16, 2):
            sumops += [f"v_add_f32 v30, v30, v{SA+r}", f"v_add_f32 v31, v31, v{SA+r+1}"]
        sumops += [f"v_add_f32 v{L_}, v{L_}, v30", f"v_add_f32 v{L_}, v{L_}, v31"]
        n = 0
        for sp in range(2):
            for ct in range(12):
                c = vr(OA + 16 * ct, 16) if (tau or sp) else "0"
                k(f"{MFMA} {vr(OA+16*ct,16)}, {ar(HT+(ct*2+sp)*4)}, {vr(PF+4*sp)}, {c}")
                if sumops: k(sumops.pop(0))
                if n % 2 == 0: urgent(1)
                n += 1
        urgent(12)
    wlim[0] = RW
    if 'fine' in FL: k.off = True
    k.stamp()
    xhalf(k, "v_add_f32", L_, 30)
    STB = 147456
    k("v_lshlrev_b32 v30, 3, v2")
    k(f"v_add_u32 v30, {STB}, v30")
    k("s_lshl_b32 s60, s3, 8")
    k("v_add_u32 v31, s60, v30")
    k.ds(f"ds_write_b64 v31, v[{M_}:{L_}]")
    k("v_add_u32 v31, s8, v63")
    k("s_nop 4")
    for cp in range(1, 4):
        for a_ in range(3):
            for e in range(4):
                k.ds(f"ds_write_b128 v31, {vr(OA+16*(4*a_+cp)+4*e)} offset:{(cp-1)*HS+a_*4096+e*1024}")
        wissue(3)
    for cp in range(4):
        k(f"s_sub_u32 s60, s3, {cp}")
        k("s_and_b32 s60, s60, 3")
        k("s_lshl_b32 s12, s60, 8")
        k(f"v_add_u32 v{56+cp}, s12, v30")
        if cp:
            k(f"s_mul_i32 s12, s60, {WR}")
            k(f"s_add_u32 s12, s12, {(cp-1)*HS}")
            k(f"v_add_u32 v{59+cp}, s12, v63")
    k.lgwait_all()
    k("s_barrier")
    for cp in range(4):
        k.ds(f"ds_read_b64 v[{32+2*cp}:{33+2*cp}], v{56+cp}", tag="st")
    for cp in range(1, 4):
        for a_ in range(3):
            for e in range(4):
                k.ds(f"ds_read_b128 {vr(OA+16*(4*a_+cp)+4*e)}, v{59+cp} offset:{a_*4096+e*1024}", tag=f"pr{cp}")
    k.lgwait("st")
    k("v_max3_f32 v40, v32, v34, v36")
    k("v_max_f32 v40, v40, v38")
    for cp in range(4):
        k(f"v_sub_f32 v{32+2*cp}, v{32+2*cp}, v40")
    for cp in range(4):
        k(f"v_exp_f32 v{32+2*cp}, v{32+2*cp}")
    k("s_nop 0")
    k("v_mul_f32 v42, v32, v33")
    k("v_fmac_f32 v42, v34, v35")
    k("v_fmac_f32 v42, v36, v37")
    k("v_fmac_f32 v42, v38, v39")
    k("v_rcp_f32 v42, v42")
    k("s_nop 0")
    for cp in range(4):
        k(f"v_mul_f32 v{44+cp}, v{32+2*cp}, v42")
    for a_ in range(3):
        for r in range(16):
            k(f"v_mul_f32 v{OA+64*a_+r}, v{OA+64*a_+r}, v44")
    wissue(4)
    for cp in range(1, 4):
        k.lgwait(f"pr{cp}")
        for a_ in range(3):
            for r in range(16):
                k(f"v_fmac_f32 v{OA+64*a_+r}, v{OA+16*(4*a_+cp)+r}, v{44+cp}")
        wissue(4)
    k("s_barrier")
    for a_ in range(3):
        for e in range(8):
            k(f"v_cvt_pk_bf16_f32 v{32+a_*8+e}, v{OA+64*a_+2*e}, v{OA+64*a_+2*e+1}")
    k("s_lshl_b32 s60, s3, 11")
    k("v_add_u32 v30, s60, v63")
    for a_ in range(3):
        for sp in range(2):
            k.ds(f"ds_write_b128 v30, {vr(32+a_*8+sp*4)} offset:{a_*8192+sp*1024}")
    k("v_lshrrev_b32 v4, 3, v1")
    k("s_lshl_b32 s60, s3, 3")
    k("v_add_u32 v4, s60, v4")
    k("v_and_b32 v5, 7, v1")
    k("s_lshl_b32 s60, s5, 5")
    k("v_add_u32 v6, s60, v4")
    k("v_mul_u32_u24 v6, 768, v6")
    k("v_lshl_add_u32 v6, v5, 4, v6")
    XR = 160
    for j in range(6):
        k.vmem(f"buffer_load_dwordx4 {vr(XR+4*j)}, v6, s[40:43], 0 offen offset:{128*j} sc1", tag="xr")
    k.lgwait_all()
    k("s_barrier")
    YA = 96
    BR, NBR = 64, 8
    k.stamp()
    k.lg = []
    def rd(s): k.ds(f"ds_read_b128 {vr(BR+(s%NBR)*4)}, v63 offset:{1024*s}", tag=f"b{s}")
    for s in range(NBR - 1): rd(s)
    wi = 0
    for s in range(24):
        if s + NBR - 1 < 24: rd(s + NBR - 1)
        k.lgwait(f"b{s}")
        for j in range(3):
            k.vmwait(f"w{wi}")
            k(f"{MFMA} {vr(YA+16*j,16)}, {ar(wslot[wi%RW])}, {vr(BR+(s%NBR)*4)}, {vr(YA+16*j,16) if s else 0}")
            wi += 1
            wcons[0] = wi
            wissue(1)
    k("s_nop 15")
    k.stamp()
    YB = 32768
    k(f"v_mul_u32_u24 v7, {PH}, v2")
    k("s_mul_i32 s60, s3, 192")
    k(f"s_add_u32 s60, s60, {YB}")
    k("v_lshl_add_u32 v7, v3, 3, v7")
    k("v_add_u32 v7, s60, v7")
    for e in range(24):
        k(f"v_cvt_pk_bf16_f32 v{64+e}, v{YA+2*e}, v{YA+2*e+1}")
    for jq in range(12):
        j, q = jq // 4, jq % 4
        k.ds(f"ds_write_b64 v7, v[{64+2*jq}:{65+2*jq}] offset:{64*j+16*q}")
    k(f"v_mul_u32_u24 v8, {PH}, v4")
    k("v_lshl_add_u32 v8, v5, 4, v8")
    k.lgwait_all()
    k("s_barrier")
    for j in range(6):
        k.ds(f"ds_read_b128 {vr(96+4*j)}, v8 offset:{YB+128*j}")
    k("s_mov_b32 s60, 0xffff0000")
    k.vmwait("xr")
    k.lgwait_all()
    for e in range(24):
        k(f"v_lshlrev_b32 v64, 16, v{96+e}")
        k(f"v_and_b32 v65, s60, v{96+e}")
        k(f"v_lshlrev_b32 v66, 16, v{XR+e}")
        k(f"v_and_b32 v67, s60, v{XR+e}")
        k("v_add_f32 v64, v64, v66")
        k("v_add_f32 v65, v65, v67")
        k(f"v_cvt_pk_bf16_f32 v{128+e}, v64, v65")
    for j in range(6):
        k.vmem(f"buffer_store_dwordx4 {vr(128+4*j)}, v6, s[44:47], 0 offen offset:{128*j}")


NREP = 8
NSH = 8
WS_SYNC = 24 * MiB
CSZ = NREP * NSH * 128
def spin(k, lab, srd, voff_reg, target, nsh):
    k("s_mov_b32 s61, 0")
    k.label(lab)
    k(f"buffer_load_dword v244, v{voff_reg}, s[{srd}:{srd+3}], 0 offen sc1")
    k("s_waitcnt vmcnt(0)")
    if nsh == 1:
        k("v_readfirstlane_b32 s63, v244")
        k("s_nop 3")
    else:
        k("v_readlane_b32 s63, v244, 0")
        for i in range(1, nsh):
            k(f"v_readlane_b32 s52, v244, {i}")
            k("s_nop 3")
            k("s_add_u32 s63, s63, s52")
    k(f"s_cmp_ge_u32 s63, {target}")
    k(f"s_cbranch_scc1 {lab}_done")
    k(f"s_sleep {SLEEP}")
    k("s_add_u32 s61, s61, 1")
    k("s_cmp_lt_u32 s61, 0x200000")
    k(f"s_cbranch_scc1 {lab}")
    k.label(f"{lab}_done")

def zcheck(k, lab):
    k("s_cmp_lg_u32 s53, 0")
    k(f"s_cbranch_scc1 {lab}_skip")
    k("v_mov_b32 v245, 0")
    spin(k, lab, 64, 245, 1, 1)
    k("s_mov_b32 s53, 1")
    k.label(f"{lab}_skip")

def poll(k, lab, cidx, target):
    zcheck(k, lab + "z")
    k(f"s_and_b32 s63, s2, {NREP-1}")
    k(f"s_mul_i32 s63, s63, {NSH*128}")
    k(f"s_add_u32 s63, s63, {cidx*CSZ}")
    k(f"v_and_b32 v245, {NSH-1}, v1")
    k("v_lshlrev_b32 v245, 7, v245")
    k("v_add_u32 v245, s63, v245")
    spin(k, lab, 80, 245, target, NSH)

def signal(k, lab, cidx):
    k("s_waitcnt vmcnt(0)")
    k("s_barrier")
    k("s_cmp_lg_u32 s3, 0")
    k(f"s_cbranch_scc1 {lab}")
    zcheck(k, lab + "z")
    k("v_mov_b32 v244, 1")
    k("s_lshr_b32 s63, s2, 3")
    k(f"s_and_b32 s63, s63, {NSH-1}")
    k("s_lshl_b32 s63, s63, 7")
    k(f"s_add_u32 s63, s63, {cidx*CSZ}")
    k(f"v_mul_u32_u24 v245, {NSH*128}, v1")
    k("v_add_u32 v245, s63, v245")
    k("s_mov_b64 s[68:69], exec")
    k(f"s_mov_b64 exec, {(1<<NREP)-1}")
    k("buffer_atomic_add v244, v245, s[80:83], 0 offen sc1")
    k("s_mov_b64 exec, s[68:69]")
    k.label(lab)

def gen_main():
    k = K(); name = "standalone__video_timesformer__vision_kernel"
    prologue(k, name, 255)
    k.srd(64, 28, 0, 256)
    k.srd(80, 30, WS_SYNC, 3 * CSZ)
    k("s_mov_b32 s53, 0")
    k("s_cmp_lg_u32 s2, 254")
    k("s_cbranch_scc1 L_noz")
    k("s_cmp_lg_u32 s3, 0")
    k("s_cbranch_scc1 L_noz")
    k("v_mov_b32 v244, 0")
    k("v_lshlrev_b32 v245, 7, v1")
    for c in range(3):
        k(f"s_mov_b32 s63, {c*CSZ}")
        k("buffer_store_dword v244, v245, s[80:83], s63 offen sc1")
    k("s_waitcnt vmcnt(0)")
    k("v_mov_b32 v244, 1")
    k("v_mov_b32 v245, 0")
    k("buffer_store_dword v244, v245, s[64:67], 0 offen sc1")
    k("s_mov_b32 s53, 1")
    k.label("L_noz")
    for i in range(8):
        if 'rt' in FL: k(f"s_mov_b32 s{90+i}, 0")
    k.rt(0)
    k("s_cmp_lt_u32 s2, 72")
    k(f"s_cbranch_scc1 L_prod")
    k("s_sub_u32 s62, s2, 72")
    k.ph = 1
    phase1(k, "L1")
    k.stamp()
    k.rt(2)
    signal(k, "L1_sig", 2)
    k.rt(3)
    k.stamp()
    k("s_branch L_ph2")
    k.label("L_prod")
    k(f"s_mul_hi_u32 s4, s2, {((1<<32)+35)//36}")
    k("s_mul_i32 s5, s4, 36")
    k("s_sub_u32 s5, s2, s5")
    k("s_mov_b32 s54, s4")
    k("s_mov_b32 s55, s5")
    fold(k, "LF0")
    k.rt(1)
    signal(k, "LF0_sig", 0)
    k.rt(2)
    k("s_add_u32 s4, s54, 2")
    k("s_mov_b32 s5, s55")
    fold(k, "LF1")
    signal(k, "LF1_sig", 1)
    k.rt(3)
    k("s_cmp_lg_u32 s3, 0")
    k("s_cbranch_scc1 LF_np1")
    poll(k, "LF_p1", 1, 72)
    k.label("LF_np1")
    k("s_barrier")
    k.srd(36, 30, WS_FQS, WO_BYTES)
    k("v_lshlrev_b32 v10, 4, v1")
    k("s_mul_i32 s6, s3, 73728")
    for i in range(60):
        s_, j = i // 3, i % 3
        off = (j * 24 + s_) * 1024
        k(f"s_add_u32 s7, s6, {off & ~4095}")
        k(f"buffer_load_dwordx4 {ar(((144+i)%60)*4)}, v10, s[36:39], s7 offen offset:{off & 4095}{SC}")
    k("s_waitcnt vmcnt(0)")
    k.label("L_ph2")
    k("s_and_b32 s4, s2, 7")
    k("s_lshr_b32 s5, s2, 3")
    k("s_cmp_eq_u32 s4, 0")
    k("s_cselect_b32 s7, 21, 20")
    k("s_cmp_ge_u32 s5, s7")
    k(f"s_cbranch_scc1 L_fin")
    k("s_mul_i32 s6, s4, 20")
    k("s_min_u32 s7, s4, 1")
    k("s_add_u32 s6, s6, s7")
    k("s_add_u32 s6, s6, s5")
    k.ph = 2
    if 'fine' in FL: k.off = True
    phase2(k, "L2")
    if 'stamp' in FL:
        k.vmwait_all()
        k.stamp()
        k.dump_stamps(100)
    k.rt(5)
    k.label("L_fin")
    k.dump_rt()
    k.label(f"{name}_end")
    k("s_endpgm")
    return k.text()

HEADER = """; TimeSformer divided space-time attention block, gfx950.  Generated by gen3.py (own generator).
; One persistent launch: workgroups 0..71 fold Wq Wk^T / Wv Wo into MFMA fragment order; workgroups 72..254 do
; @launch grid=(255,1,1) block=(256,1,1) lds=148480
.amdgcn_target "amdgcn-amd-amdhsa--gfx950"
.text
"""
def desc(name, vgpr, accum):
    return f""".amdhsa_kernel {name}
  .amdhsa_next_free_vgpr {vgpr}
  .amdhsa_next_free_sgpr 102
  .amdhsa_accum_offset {accum}
  .amdhsa_group_segment_fixed_size 0
  .amdhsa_kernarg_size 64
  .amdhsa_user_sgpr_count 2
  .amdhsa_user_sgpr_kernarg_segment_ptr 1
  .amdhsa_system_sgpr_workgroup_id_x 1
  .amdhsa_float_denorm_mode_32 3
.end_amdhsa_kernel
"""
def main():
    name = "standalone__video_timesformer__vision_kernel"
    out = HEADER + f".globl {name}\n.p2align 8\n.type {name},@function\n" + gen_main()
    out += '.section .rodata,"a"\n.p2align 6\n' + desc(name, 512, 256)
    path = sys.argv[1] if len(sys.argv) > 1 else "standalone__video_timesformer__vision.s"
    open(path, "w").write(out)
    print("wrote", path, len(out))
if __name__ == "__main__":
    main()
```

```python
import sys, os, struct
FL = os.environ.get('GENFLAGS', '').split(',')
T, N, C = 7, 729, 384
X_BYTES = T * N * C * 2
FR_BYTES = N * C * 2
WQKV_BYTES = C * 3 * C * 2
WO_BYTES = C * C * 2
MiB = 1 << 20
WS_FQT, WS_FVT, WS_FQS, WS_FVS = 0, 1 * MiB, 2 * MiB, 3 * MiB
WS_X1, WS_H2, WS_U2 = 4 * MiB, 9 * MiB, 14 * MiB
BIG = 0x7f000000
OUTF = os.environ.get('OUTF', '')
SC = '' if 'nosc' in FL else ' sc1'
SLEEP = int(os.environ.get('SLEEP', '4'))
LOG2E = 1.4426950408889634
QSCALE = (C ** -0.5) * LOG2E
def f2u(f): return struct.unpack('<I', struct.pack('<f', f))[0]

class K:
    def __init__(self):
        self.L = []; self.vm = []; self.lg = []
    def __call__(self, s): self.L.append("    " + s)
    def label(self, l): self.L.append(l + ":")
    def vmem(self, s, tag=None):
        self(s); self.vm.append(tag)
    def vmwait(self, tag):
        idx = max(i for i, t in enumerate(self.vm) if t == tag)
        n = len(self.vm) - 1 - idx
        self(f"s_waitcnt vmcnt({min(n,63)})")
    def vmwait_all(self): self("s_waitcnt vmcnt(0)")
    def ds(self, s, tag=None):
        self(s); self.lg.append(tag)
    def lgwait(self, tag):
        idx = max(i for i, t in enumerate(self.lg) if t == tag)
        n = len(self.lg) - 1 - idx
        self(f"s_waitcnt lgkmcnt({min(n,15)})")
    def lgwait_all(self): self("s_waitcnt lgkmcnt(0)")
    def srd(self, d, lo, off, size):
        if off:
            self(f"s_add_u32 s{d}, s{lo}, {off}")
            self(f"s_addc_u32 s{d+1}, s{lo+1}, 0")
        else:
            self(f"s_mov_b32 s{d}, s{lo}")
            self(f"s_mov_b32 s{d+1}, s{lo+1}")
        self(f"s_mov_b32 s{d+2}, {size}")
        self(f"s_mov_b32 s{d+3}, 0x00020000")
    def srd_s(self, d, lo, soff, size):
        self(f"s_add_u32 s{d}, s{lo}, s{soff}")
        self(f"s_addc_u32 s{d+1}, s{lo+1}, 0")
        self(f"s_mov_b32 s{d+2}, {size}")
        self(f"s_mov_b32 s{d+3}, 0x00020000")
    ph = 0
    off = False
    def stamp(self):
        if 'stamp' not in FL or self.off: return
        if f"st{self.ph}" not in FL: return
        n = getattr(self, 'nst', 0)
        if n >= 18: return
        self("s_memtime s[70:71]")
        self("s_waitcnt lgkmcnt(0)")
        self(f"s_mov_b32 s{84+n}, s70")
        self.nst = n + 1
    def rt(self, idx):
        if 'rt' not in FL: return
        self("s_memrealtime s[70:71]")
        self("s_waitcnt lgkmcnt(0)")
        self(f"s_mov_b32 s{90+idx}, s70")
    def dump_rt(self):
        if 'rt' not in FL: return
        lab = f"L_nort_{len(self.L)}"
        self("s_cmp_lg_u32 s3, 0")
        self(f"s_cbranch_scc1 {lab}")
        self.srd(84, 30, 32 * MiB, 65536)
        self("s_lshl_b32 s70, s2, 5")
        self("v_mov_b32 v65, s70")
        for i in range(8):
            self(f"v_mov_b32 v64, s{90+i}")
            self(f"buffer_store_dword v64, v65, s[84:87], 0 offen offset:{4*i}")
        self.label(lab)
    def dump_stamps(self, wg=0):
        if 'stamp' not in FL: return
        lab = f"L_nodump_{id(self)}"
        self(f"s_cmp_lg_u32 s2, {wg}")
        self(f"s_cbranch_scc1 {lab}")
        self("s_cmp_lg_u32 s3, 0")
        self(f"s_cbranch_scc1 {lab}")
        self("s_load_dwordx2 s[64:65], s[0:1], 48")
        self("s_waitcnt lgkmcnt(0)")
        self("s_mov_b32 s66, 256")
        self("s_mov_b32 s67, 0x00020000")
        self("v_mov_b32 v65, 0")
        for i in range(self.nst):
            self(f"v_mov_b32 v64, s{84+i}")
            self(f"buffer_store_dword v64, v65, s[64:67], 0 offen offset:{4*i+4}")
        self.label(lab)
    def ool_begin(self):
        self._save = self.L; self.L = []
    def ool_end(self):
        if not hasattr(self, 'OOL'): self.OOL = []
        self.OOL += self.L; self.L = self._save
    def text(self): return "\n".join(self.L + getattr(self, 'OOL', [])) + "\n"

def vr(b, n=4): return f"v[{b}:{b+n-1}]"
def ar(b, n=4): return f"a[{b}:{b+n-1}]"
MFMA = "v_mfma_f32_32x32x16_bf16"

def prologue(k, name, ngrid):
    k.label(name)
    k(f"s_cmp_ge_u32 s2, {ngrid}")
    k(f"s_cbranch_scc1 {name}_end")
    k("s_load_dwordx16 s[16:31], s[0:1], 0")
    k("v_and_b32 v1, 63, v0")
    k("v_lshrrev_b32 v4, 6, v0")
    k("v_and_b32 v2, 31, v1")
    k("v_readfirstlane_b32 s3, v4")
    k("v_lshrrev_b32 v3, 5, v1")
    k("s_waitcnt lgkmcnt(0)")

def bf16r(k, dst, src):
    k(f"v_cvt_pk_bf16_f32 v{dst}, v{src}, v{src}")
    k(f"v_lshlrev_b32 v{dst}, 16, v{dst}")

def ln_stats(k, s1, s2, m, rinv, t):
    k(f"v_mul_f32 v{s1}, {hex(f2u(1.0/C))}, v{s1}")
    k(f"v_mul_f32 v{s2}, {hex(f2u(1.0/C))}, v{s2}")
    k(f"v_fma_f32 v{s2}, -v{s1}, v{s1}, v{s2}")
    k(f"v_max_f32 v{s2}, 0, v{s2}")
    bf16r(k, m, s1)
    bf16r(k, t, s2)
    k(f"v_add_f32 v{t}, {hex(f2u(1e-5))}, v{t}")
    bf16r(k, t, t)
    k(f"v_sqrt_f32 v{t}, v{t}")
    k("s_nop 0")
    bf16r(k, t, t)
    k(f"v_rcp_f32 v{rinv}, v{t}")
    k("s_nop 0")

def xhalf(k, op, a, tmp):
    k(f"v_mov_b32 v{tmp}, v{a}")
    k("s_nop 1")
    k(f"v_permlane32_swap_b32 v{a}, v{tmp}")
    k("s_nop 1")
    k(f"{op} v{a}, v{a}, v{tmp}")

PH = 784

def fold(k, name):
    k.vm = []; k.lg = []
    k("s_mul_hi_u32 s6, s5, 0x2AAAAAAB")
    k("s_mul_i32 s7, s6, 6")
    k("s_sub_u32 s7, s5, s7")
    k("s_cmp_ge_u32 s4, 2")
    k("s_cselect_b32 s8, s22, s18")
    k("s_cselect_b32 s9, s23, s19")
    k("s_cselect_b32 s10, s24, s20")
    k("s_cselect_b32 s11, s25, s21")
    k("s_mov_b32 s32, s8"); k("s_mov_b32 s33, s9"); k(f"s_mov_b32 s34, {WQKV_BYTES}"); k("s_mov_b32 s35, 0x00020000")
    k("s_mov_b32 s36, s10"); k("s_mov_b32 s37, s11"); k(f"s_mov_b32 s38, {WO_BYTES}"); k("s_mov_b32 s39, 0x00020000")
    k("s_lshl_b32 s8, s4, 20")
    k.srd_s(40, 30, 8, WO_BYTES)
    k("s_and_b32 s12, s4, 1")
    AB, BBASE = 0, 64 * PH
    k("v_lshlrev_b32 v5, 4, v1")
    k("s_lshl_b32 s13, s6, 6")
    k("s_lshl_b32 s14, s3, 4")
    k("s_add_u32 s13, s13, s14")
    k("s_mul_i32 s13, s13, 2304")
    k("s_mul_i32 s15, s12, 1536")
    k("s_add_u32 s13, s13, s15")
    k(f"s_mul_i32 s14, s14, {PH}")
    k("v_cmp_gt_u32 vcc, 48, v1")
    k("s_and_saveexec_b64 s[44:45], vcc")
    for r in range(16):
        k(f"s_add_u32 m0, s14, {AB + r*PH}")
        k(f"s_add_u32 s15, s13, {r*2304}")
        k("s_nop 0")
        k.vmem("buffer_load_dwordx4 v5, s[32:35], s15 offen lds")
    k("s_mov_b64 exec, s[44:45]")
    k(f"v_mul_u32_u24 v6, {PH}, v2")
    k("v_lshl_add_u32 v6, v3, 4, v6")
    k("s_lshr_b32 s46, s3, 1")
    k("s_and_b32 s47, s3, 1")
    k(f"s_mul_i32 s15, s46, {32*PH}")
    k("v_add_u32 v7, s15, v6")
    k("s_cmp_eq_u32 s12, 1")
    k(f"s_cbranch_scc1 {name}_vo")
    k("s_lshl_b32 s13, s7, 6")
    k("s_lshl_b32 s14, s3, 4")
    k("s_add_u32 s13, s13, s14")
    k("s_mul_i32 s13, s13, 2304")
    k("s_add_u32 s13, s13, 768")
    k(f"s_mul_i32 s14, s14, {PH}")
    k("s_and_saveexec_b64 s[44:45], vcc")
    for r in range(16):
        k(f"s_add_u32 m0, s14, {BBASE + r*PH}")
        k(f"s_add_u32 s15, s13, {r*2304}")
        k("s_nop 0")
        k.vmem("buffer_load_dwordx4 v5, s[32:35], s15 offen lds")
    k("s_mov_b64 exec, s[44:45]")
    k(f"s_mul_i32 s15, s47, {32*PH}")
    k(f"s_add_u32 s15, s15, {BBASE}")
    k("v_add_u32 v8, s15, v6")
    k.vmwait_all()
    k("s_barrier")
    ACC = 16
    for s in range(24):
        k.ds(f"ds_read_b128 {vr(32+(s%8)*8)}, v7 offset:{32*s}", tag=f"f{s}")
        k.ds(f"ds_read_b128 {vr(36+(s%8)*8)}, v8 offset:{32*s}", tag=f"f{s}")
        if s >= 6:
            s0 = s - 6
            k.lgwait(f"f{s0}")
            k(f"{MFMA} {vr(ACC,16)}, {vr(32+(s0%8)*8)}, {vr(36+(s0%8)*8)}, {vr(ACC,16) if s0 else 0}")
    for s0 in range(18, 24):
        k.lgwait(f"f{s0}")
        k(f"{MFMA} {vr(ACC,16)}, {vr(32+(s0%8)*8)}, {vr(36+(s0%8)*8)}, {vr(ACC,16)}")
    k("s_nop 15")
    for r in range(16):
        k(f"v_mul_f32 v{ACC+r}, {hex(f2u(QSCALE))}, v{ACC+r}")
    for e in range(8):
        k(f"v_cvt_pk_bf16_f32 v{32+e}, v{ACC+2*e}, v{ACC+2*e+1}")
    k("s_nop 1")
    for sp in range(2):
        k(f"v_permlane32_swap_b32 v{32+4*sp}, v{34+4*sp}")
        k(f"v_permlane32_swap_b32 v{33+4*sp}, v{35+4*sp}")
    k(f"s_branch {name}_store")
    k.label(f"{name}_vo")
    k("v_lshrrev_b32 v8, 3, v1")
    k("v_and_b32 v9, 7, v1")
    k("v_mul_u32_u24 v8, 768, v8")
    k("v_lshl_add_u32 v8, v9, 4, v8")
    k("s_lshl_b32 s13, s7, 7")
    k("s_mul_i32 s14, s3, 96*768")
    k("s_add_u32 s13, s13, s14")
    k("s_mul_i32 s14, s3, 96*128")
    for i in range(12):
        k(f"s_add_u32 m0, s14, {BBASE + i*1024}")
        k(f"s_add_u32 s15, s13, {i*8*768}")
        k("s_nop 0")
        k.vmem("buffer_load_dwordx4 v8, s[36:39], s15 offen lds")
    k("v_and_b32 v4, 15, v1")
    k("v_lshrrev_b32 v9, 2, v4")
    k("v_and_b32 v4, 3, v4")
    k("v_lshl_add_u32 v9, v3, 3, v9")
    k("v_lshlrev_b32 v9, 7, v9")
    k("v_lshl_add_u32 v9, v4, 3, v9")
    k("v_bfe_u32 v4, v1, 4, 1")
    k("v_lshl_add_u32 v9, v4, 5, v9")
    k("s_lshl_b32 s15, s47, 6")
    k(f"s_add_u32 s15, s15, {BBASE}")
    k("v_add_u32 v9, s15, v9")
    k.vmwait_all()
    k("s_barrier")
    k.lg = []
    for s in range(24):
        k.ds(f"ds_read_b128 {vr(32+(s%8)*8)}, v7 offset:{32*s}", tag=f"f{s}")
        for q in range(2):
            k.ds(f"ds_read_b64_tr_b16 v[{36+(s%8)*8+2*q}:{37+(s%8)*8+2*q}], v9 offset:{(16*s+4*q)*128}", tag=f"f{s}")
        if s >= 4:
            s0 = s - 4
            k.lgwait(f"f{s0}")
            k(f"{MFMA} {vr(ACC,16)}, {vr(32+(s0%8)*8)}, {vr(36+(s0%8)*8)}, {vr(ACC,16) if s0 else 0}")
    for s0 in range(20, 24):
        k.lgwait(f"f{s0}")
        k(f"{MFMA} {vr(ACC,16)}, {vr(32+(s0%8)*8)}, {vr(36+(s0%8)*8)}, {vr(ACC,16)}")
    k("s_nop 15")
    for e in range(8):
        k(f"v_cvt_pk_bf16_f32 v{32+e}, v{ACC+2*e}, v{ACC+2*e+1}")
    k.label(f"{name}_store")
    k("s_lshl_b32 s13, s7, 1")
    k("s_add_u32 s13, s13, s47")
    k("s_mul_i32 s13, s13, 24")
    k("s_lshl_b32 s14, s6, 1")
    k("s_add_u32 s14, s14, s46")
    k("s_lshl_b32 s14, s14, 1")
    k("s_add_u32 s13, s13, s14")
    k("s_lshl_b32 s13, s13, 10")
    k("s_nop 1")
    k.vmem(f"buffer_store_dwordx4 {vr(32)}, v5, s[40:43], s13 offen sc1")
    k.vmem(f"buffer_store_dwordx4 {vr(36)}, v5, s[40:43], s13 offen offset:1024 sc1")

def phase1(k, name):
    k.vm = []; k.lg = []
    HB, XB, SX, YX, ST = 0, 25088, 50176, 66560, 91136
    k.stamp()
    UB = SX
    k.srd(32, 16, 0, X_BYTES)
    if 'winput' in FL:
        k.srd(36, 18, 0, WQKV_BYTES)
    else:
        k.srd(36, 30, 0, 4 * MiB)
    k.srd(40, 30, WS_X1, X_BYTES)
    k.srd(44, 30, WS_H2, X_BYTES)
    k.srd(48, 30, WS_U2, X_BYTES)
    k("v_lshrrev_b32 v4, 3, v1")
    k("s_lshl_b32 s4, s3, 3")
    k("v_add_u32 v4, s4, v4")
    k("v_and_b32 v5, 7, v1")
    k("v_mul_u32_u24 v6, 9363, v4")
    k("v_lshrrev_b32 v6, 16, v6")
    k("v_mul_u32_u24 v7, 7, v6")
    k("v_sub_u32 v7, v4, v7")
    k("s_lshl_b32 s5, s62, 2")
    k("v_add_u32 v6, s5, v6")
    k("v_mul_u32_u24 v7, 729, v7")
    k("v_add_u32 v7, v7, v6")
    k("v_mul_u32_u24 v7, 768, v7")
    k("v_lshl_add_u32 v7, v5, 4, v7")
    k(f"v_cmp_gt_u32 vcc, {N}, v6")
    k("s_mov_b64 s[12:13], vcc")
    k("v_cmp_gt_u32 vcc, 28, v4")
    k(f"v_mov_b32 v8, {hex(BIG)}")
    k("s_nop 1")
    k("s_and_b64 vcc, vcc, s[12:13]")
    k("s_nop 1")
    k("v_cndmask_b32 v8, v8, v7, vcc")
    XA, HA = 16, 40
    for j in range(6):
        k.vmem(f"buffer_load_dwordx4 {vr(XA+4*j)}, v8, s[32:35], 0 offen offset:{128*j}", tag="x")
    k(f"v_mul_u32_u24 v9, {PH}, v4")
    k("v_lshl_add_u32 v9, v5, 4, v9")
    R = 60
    k("v_lshlrev_b32 v10, 4, v1")
    k("s_mul_i32 s6, s3, 73728")
    bases = [WS_FQT, WS_FVT, WS_FQS] if 'winput' not in FL else [0, 294912, 589824]
    issued = [0]
    wgate = [0]
    wi = [0]
    def wissue(n=1):
        for _ in range(n):
            i = issued[0]
            if i >= 216 or i >= wi[0] + R or i >= wgate[0]: return
            mi, r = i // 72, i % 72
            s, j = r // 3, r % 3
            off = bases[mi] + (j * 24 + s) * 1024
            k(f"s_add_u32 s7, s6, {off & ~4095}")
            k.vmem(f"buffer_load_dwordx4 {ar((i % R)*4)}, v10, s[36:39], s7 offen offset:{off & 4095}{SC}", tag=f"w{i}")
            issued[0] += 1
    wissue(10)
    k("s_mov_b32 s10, 0x3f803f80")
    k("s_mov_b32 s11, 0xffff0000")
    for i in range(4): k(f"v_mov_b32 v{64+i}, 0")
    k.vmwait("x")
    k.stamp()
    for i in range(24):
        k(f"v_dot2_f32_bf16 v{64+(i&1)}, v{XA+i}, s10, v{64+(i&1)}")
        k(f"v_dot2_f32_bf16 v{66+(i&1)}, v{XA+i}, v{XA+i}, v{66+(i&1)}")
        if i % 2 == 1: wissue(1)
    for j in range(6):
        k.ds(f"ds_write_b128 v9, {vr(XA+4*j)} offset:{XB+128*j}")
    k("v_add_f32 v64, v64, v65")
    k("v_add_f32 v66, v66, v67")
    def red8(rs):
        for ctl in ("quad_perm:[1,0,3,2]", "quad_perm:[2,3,0,1]", "row_half_mirror"):
            k("s_nop 1")
            for r in rs:
                k(f"v_add_f32_dpp v{r}, v{r}, v{r} {ctl} row_mask:0xf bank_mask:0xf")
    red8([64, 66])
    ln_stats(k, 64, 66, 68, 69, 70)
    k("v_mul_f32 v68, v68, v69")
    for i in range(24):
        k(f"v_lshlrev_b32 v72, 16, v{XA+i}")
        k(f"v_and_b32 v73, s11, v{XA+i}")
        k(f"v_fma_f32 v72, v72, v69, -v68")
        k(f"v_fma_f32 v73, v73, v69, -v68")
        k(f"v_cvt_pk_bf16_f32 v{HA+i}, v72, v73")
        wissue(1)
    for j in range(6):
        k.ds(f"ds_write_b128 v9, {vr(HA+4*j)} offset:{HB+128*j}")
    wissue(8)
    k(f"v_mul_u32_u24 v11, {PH}, v2")
    k("v_lshl_add_u32 v12, v3, 4, v11")
    k("s_mul_i32 s8, s3, 192")
    k("v_lshl_add_u32 v13, v3, 3, v11")
    k("v_add_u32 v13, s8, v13")
    k.lgwait_all()
    k("s_cmp_lg_u32 s3, 0")
    k(f"s_cbranch_scc1 {name}_np0")
    poll(k, f"{name}_p0", 0, 72)
    k.label(f"{name}_np0")
    k("s_barrier")
    k.rt(1)
    k.stamp()
    k.vm = []
    wgate[0] = 144
    wissue(8)
    k("s_lshr_b32 s9, s62, 3")
    k("s_lshl_b32 s9, s9, 2")
    k("s_add_u32 s9, s9, s3")
    k("s_lshl_b32 s52, s9, 10")
    for j in range(7):
        k(f"s_add_u32 s9, s52, {92*1024*j}")
        k(f"s_cmp_ge_u32 s9, {288*1024}")
        k(f"s_cselect_b32 s7, {MiB - 288*1024}, 0")
        k("s_add_u32 s9, s9, s7")
        k.vmem(f"buffer_load_dwordx4 {ar(240+4*(j&3))}, v10, s[36:39], s9 offen sc1")
    wissue(12)
    BR, NBR = 64, 8
    ACC = 96
    PK = 144
    def gemm(baddr, boff, bstride):
        k.lg = []
        def rd(s): k.ds(f"ds_read_b128 {vr(BR+(s%NBR)*4)}, v{baddr} offset:{boff+s*bstride}", tag=f"b{s}")
        for s in range(NBR - 1): rd(s)
        for s in range(24):
            if s + NBR - 1 < 24: rd(s + NBR - 1)
            k.lgwait(f"b{s}")
            for j in range(3):
                i = wi[0]
                if 'now' not in FL: k.vmwait(f"w{i}")
                if 'nomf' not in FL: k(f"{MFMA} {vr(ACC+16*j,16)}, {ar((i%R)*4)}, {vr(BR+(s%NBR)*4)}, {vr(ACC+16*j,16) if s else 0}")
                wi[0] += 1
                if (i & 1) or issued[0] < wi[0] + 40: wissue(1)
        k("s_nop 15")
    k.stamp()
    gemm(12, HB, 32)
    k.stamp()
    for s in range(6):
        k.ds(f"ds_read2_b64 {vr(BR+4*s)}, v13 offset0:{4*s} offset1:{4*s+2}", tag=f"c{s}")
    for e in range(24):
        k(f"v_cvt_pk_bf16_f32 v{PK+e}, v{ACC+2*e}, v{ACC+2*e+1}")
        if e % 8 == 7: wissue(1)
    SA = 168
    k.lgwait_all()
    k("s_nop 1")
    for s in range(6):
        k(f"{MFMA} {vr(SA,16)}, {vr(BR+4*s)}, {vr(PK+4*s)}, {vr(SA,16) if s else 0}")
    k("s_lshl_b32 s9, s3, 12")
    k(f"s_add_u32 s9, s9, {SX}")
    k("v_add_u32 v14, s9, v10")
    k(f"v_add_u32 v15, {SX}, v10")
    k("s_nop 15")
    for e in range(4):
        k.ds(f"ds_write_b128 v14, {vr(SA+4*e)} offset:{1024*e}")
    k.lgwait_all()
    k("s_barrier")
    SS = 184
    for w in range(4):
        for e in range(4):
            k.ds(f"ds_read_b128 {vr(SS+16*w+4*e)}, v15 offset:{4096*w+1024*e}")
    k("v_mul_u32_u24 v4, 9363, v2")
    k("v_lshrrev_b32 v4, 16, v4")
    k("v_mul_u32_u24 v4, 7, v4")
    k("v_lshlrev_b32 v5, 2, v3")
    k("v_sub_u32 v4, v4, v5")
    k("v_mov_b32 v5, 0xff800000")
    k.lgwait_all()
    for r in range(16):
        k(f"v_add_f32 v{SS+r}, v{SS+r}, v{SS+16+r}")
        k(f"v_add_f32 v{SS+32+r}, v{SS+32+r}, v{SS+48+r}")
        if r % 4 == 3: wissue(1)
    for r in range(16):
        k(f"v_add_f32 v{SA+r}, v{SS+r}, v{SS+32+r}")
        if r % 8 == 7: wissue(1)
    k.stamp()
    for r in range(16):
        cr = 8 * (r >> 2) + (r & 3)
        k(f"v_sub_u32 v6, {cr}, v4")
        k("v_cmp_gt_u32 vcc, 7, v6")
        k("s_nop 1")
        k(f"v_cndmask_b32 v{SA+r}, v5, v{SA+r}, vcc")
        if r % 2 == 1: wissue(1)
    k(f"v_max3_f32 v6, v{SA}, v{SA+1}, v{SA+2}")
    for r in range(3, 15, 2):
        k(f"v_max3_f32 v6, v6, v{SA+r}, v{SA+r+1}")
    k(f"v_max_f32 v6, v6, v{SA+15}")
    xhalf(k, "v_max_f32", 6, 7)
    k("v_max_f32 v6, 0xff7fffff, v6")
    for r in range(16):
        k(f"v_sub_f32 v{SA+r}, v{SA+r}, v6")
        if r % 8 == 7: wissue(1)
    for r in range(16):
        k(f"v_exp_f32 v{SA+r}, v{SA+r}")
        if r % 4 == 3: wissue(1)
    k("s_nop 0")
    k(f"v_add_f32 v6, v{SA}, v{SA+1}")
    for r in range(2, 16):
        k(f"v_add_f32 v6, v6, v{SA+r}")
        if r % 8 == 7: wissue(1)
    xhalf(k, "v_add_f32", 6, 7)
    k("v_rcp_f32 v6, v6")
    k("s_nop 0")
    PF = 248
    for r in range(16):
        k(f"v_mul_f32 v{SA+r}, v{SA+r}, v6")
        if r % 8 == 7: wissue(1)
    for p in range(8):
        k(f"v_cvt_pk_bf16_f32 v{PF+p}, v{SA+2*p}, v{SA+2*p+1}")
    wissue(2)
    k("v_and_b32 v4, 15, v1")
    k("v_lshrrev_b32 v5, 2, v4")
    k("v_and_b32 v4, 3, v4")
    k("v_lshl_add_u32 v5, v3, 2, v5")
    k(f"v_mul_u32_u24 v5, {PH}, v5")
    k("v_lshl_add_u32 v5, v4, 3, v5")
    k("v_bfe_u32 v4, v1, 4, 1")
    k("v_lshl_add_u32 v5, v4, 5, v5")
    k("v_add_u32 v5, s8, v5")
    for j in range(3):
        for sp in range(2):
            for q in range(2):
                b = BR + (j * 2 + sp) * 4 + 2 * q
                k.ds(f"ds_read_b64_tr_b16 v[{b}:{b+1}], v5 offset:{HB+(16*sp+8*q)*PH+64*j}")
    k.lgwait_all()
    for j in range(3):
        for sp in range(2):
            k(f"{MFMA} {vr(ACC+16*j,16)}, {vr(BR+(j*2+sp)*4)}, {vr(PF+4*sp)}, {vr(ACC+16*j,16) if sp else 0}")
    k("s_mul_i32 s9, s3, 6144")
    k(f"s_add_u32 s9, s9, {YX}")
    k("v_add_u32 v14, s9, v10")
    k(f"v_add_u32 v15, {YX}, v10")
    k("s_nop 15")
    for e in range(24):
        k(f"v_cvt_pk_bf16_f32 v{PK+e}, v{ACC+2*e}, v{ACC+2*e+1}")
        if e % 6 == 5: wissue(1)
    for s in range(6):
        k.ds(f"ds_write_b128 v14, {vr(PK+4*s)} offset:{1024*s}")
    wissue(6)
    k.lgwait_all()
    k("s_barrier")
    k.stamp()
    gemm(15, 0, 1024)
    k.stamp()
    XR = 184
    for jq in range(12):
        j, q = jq // 4, jq % 4
        k.ds(f"ds_read_b64 v[{XR+2*jq}:{XR+2*jq+1}], v13 offset:{XB+64*j+16*q}")
    k("v_mov_b32 v6, 0"); k("v_mov_b32 v7, 0")
    k.lgwait_all()
    for jq in range(12):
        for e in range(2):
            a = ACC + jq * 4 + 2 * e
            x = XR + jq * 2 + e
            k(f"v_lshlrev_b32 v65, 16, v{x}")
            k(f"v_and_b32 v66, s11, v{x}")
            k(f"v_add_f32 v{a}, v{a}, v65")
            k(f"v_add_f32 v{a+1}, v{a+1}, v66")
            k(f"v_cvt_pk_bf16_f32 v{x}, v{a}, v{a+1}")
            k(f"v_dot2_f32_bf16 v6, v{x}, s10, v6")
            k(f"v_dot2_f32_bf16 v7, v{x}, v{x}, v7")
        wissue(1)
    for jq in range(12):
        j, q = jq // 4, jq % 4
        k.ds(f"ds_write_b64 v13, v[{XR+2*jq}:{XR+2*jq+1}] offset:{XB+64*j+16*q}")
    k("s_nop 2")
    xhalf(k, "v_add_f32", 6, 64)
    xhalf(k, "v_add_f32", 7, 64)
    k("v_lshlrev_b32 v4, 3, v2")
    k(f"v_add_u32 v4, {ST}, v4")
    k("s_lshl_b32 s9, s3, 8")
    k("v_add_u32 v5, s9, v4")
    k.ds("ds_write_b64 v5, v[6:7]")
    k.lgwait_all()
    k("s_barrier")
    for w in range(4):
        k.ds(f"ds_read_b64 v[{64+2*w}:{65+2*w}], v4 offset:{256*w}")
    k.lgwait_all()
    k("v_add_f32 v64, v64, v66"); k("v_add_f32 v65, v65, v67")
    k("v_add_f32 v68, v68, v70"); k("v_add_f32 v69, v69, v71")
    k("v_add_f32 v64, v64, v68"); k("v_add_f32 v65, v65, v69")
    ln_stats(k, 64, 65, 66, 67, 68)
    k("v_mul_f32 v66, v66, v67")
    for e in range(24):
        x = XR + e
        k(f"v_lshlrev_b32 v72, 16, v{x}")
        k(f"v_and_b32 v73, s11, v{x}")
        k(f"v_fma_f32 v72, v72, v67, -v66")
        k(f"v_fma_f32 v73, v73, v67, -v66")
        k(f"v_cvt_pk_bf16_f32 v{PK+e}, v72, v73")
        if e % 2 == 1: wissue(1)
    for jq in range(12):
        j, q = jq // 4, jq % 4
        k.ds(f"ds_write_b64 v13, v[{PK+2*jq}:{PK+2*jq+1}] offset:{HB+64*j+16*q}")
    wissue(8)
    k.lgwait_all()
    k("s_barrier")
    for j in range(6):
        k.ds(f"ds_read_b128 {vr(XA+4*j)}, v9 offset:{XB+128*j}")
        k.ds(f"ds_read_b128 {vr(HA+4*j)}, v9 offset:{HB+128*j}")
    k.lgwait_all()
    for j in range(6):
        k.vmem(f"buffer_store_dwordx4 {vr(XA+4*j)}, v8, s[40:43], 0 offen offset:{128*j} sc1")
        k.vmem(f"buffer_store_dwordx4 {vr(HA+4*j)}, v8, s[44:47], 0 offen offset:{128*j} sc1")

def phase2(k, name):
    k.vm = []; k.lg = []
    k(f"s_mul_hi_u32 s4, s6, {((1<<32)+22)//23}")
    k("s_mul_i32 s5, s4, 23")
    k("s_sub_u32 s5, s6, s5")
    k(f"s_mul_i32 s6, s4, {FR_BYTES}")
    k(f"s_add_u32 s7, s6, {WS_H2}")
    k.srd_s(32, 30, 7, FR_BYTES)
    k.srd(36, 30, WS_FQS, WO_BYTES)
    k(f"s_add_u32 s7, s6, {WS_X1}")
    k.srd_s(40, 30, 7, FR_BYTES)
    k.srd_s(44, 26, 6, FR_BYTES)
    k.srd(48, 30, WS_FVS, WO_BYTES)
    HS = 12288
    k.stamp()
    WR = 3 * HS
    for b in range(3):
        k(f"v_add_u32 v7, {64*b}, v1")
        k("v_mul_u32_u24 v8, 1366, v7")
        k("v_lshrrev_b32 v8, 16, v8")
        k("v_mul_u32_u24 v9, 48, v8")
        k("v_sub_u32 v9, v7, v9")
        k("v_lshlrev_b32 v10, 2, v8")
        k("v_xor_b32 v9, v9, v10")
        k("v_mul_u32_u24 v8, 768, v8")
        k(f"v_lshl_add_u32 v{4+b}, v9, 4, v8")
    k(f"s_mul_i32 s8, s3, {WR}")
    tmpi = [0]
    def dma_one(srd, srow, ldsbase_s, ldsoff, tag, i):
        a, b = i // 3, i % 3
        if a:
            t = 7 + (tmpi[0] & 1); tmpi[0] += 1
            k(f"v_xor_b32 v{t}, {16*a}, v{4+b}")
        else:
            t = 4 + b
        k(f"s_add_u32 m0, s{ldsbase_s}, {ldsoff + i*1024}")
        k(f"s_add_u32 s10, s{srow}, {a*3072}")
        k.vmem(f"buffer_load_dwordx4 v{t}, s[{srd}:{srd+3}], s10 offen{SC} lds", tag=tag)
    def dma_half(srd, srow, ldsbase_s, ldsoff, tag):
        for i in range(12): dma_one(srd, srow, ldsbase_s, ldsoff, tag, i)
    k("s_lshl_b32 s11, s5, 5")
    k("s_mul_i32 s11, s11, 768")
    k("s_lshl_b32 s14, s3, 5")
    k("s_mul_i32 s14, s14, 768")
    k("s_mul_hi_u32 s15, s5, 0x2AAAAAAB")
    k("s_mul_i32 s15, s15, 6")
    k("s_sub_u32 s15, s5, s15")
    def hload_one(hf, i):
        if i == 0:
            d = 56 + (hf & 1)
            k(f"s_add_u32 s{d}, s15, {hf // 2}")
            k(f"s_cmp_ge_u32 s{d}, 6")
            k(f"s_cselect_b32 s12, 6, 0")
            k(f"s_sub_u32 s{d}, s{d}, s12")
            k(f"s_mul_i32 s{d}, s{d}, {128*768}")
            k(f"s_add_u32 s{d}, s{d}, s14")
            if hf & 1: k(f"s_add_u32 s{d}, s{d}, {16*768}")
        dma_one(32, 56 + (hf & 1), 8, (hf % 3) * HS, f"h{hf}", i)
    def hload(hf):
        for i in range(12): hload_one(hf, i)
    k("v_and_b32 v28, 15, v2")
    k("v_and_b32 v29, 3, v28")
    k("v_lshlrev_b32 v29, 2, v29")
    k("v_lshrrev_b32 v30, 2, v28")
    k("v_or_b32 v29, v29, v30")
    k("v_mul_u32_u24 v28, 768, v28")
    for bi in range(8):
        k(f"v_add_u32 v30, {2*bi}, v3")
        k("v_xor_b32 v30, v30, v29")
        k(f"v_lshl_add_u32 v{9+bi}, v30, 4, v28")
    k("v_lshrrev_b32 v30, 4, v2")
    k(f"v_mul_u32_u24 v31, {WR}, v30")
    k(f"v_add_u32 v31, {2*HS}, v31")
    for bi in range(8):
        k(f"v_add_u32 v{56+bi}, v{9+bi}, v31")
    k(f"v_mul_u32_u24 v31, {HS}, v30")
    k("v_add_u32 v31, s8, v31")
    for bi in range(8):
        k(f"v_add_u32 v{9+bi}, v{9+bi}, v31")
    k("v_cmp_eq_u32 vcc, 0, v30")
    k(f"v_mov_b32 v31, {2*HS}")
    k(f"v_mov_b32 v28, {(-HS) & 0xffffffff}")
    k("s_nop 0")
    k("v_cndmask_b32 v17, v28, v31, vcc")
    k("v_cndmask_b32 v18, v31, v28, vcc")
    k("v_mov_b32 v19, v28")
    k("v_and_b32 v28, 15, v1")
    k("v_lshrrev_b32 v29, 2, v28")
    k("v_and_b32 v28, 3, v28")
    k("v_bfe_u32 v30, v1, 4, 1")
    k("v_lshlrev_b32 v30, 1, v30")
    k("v_lshrrev_b32 v31, 1, v28")
    k("v_add_u32 v30, v30, v31")
    k("v_and_b32 v28, 1, v28")
    k("v_lshlrev_b32 v28, 3, v28")
    k("v_add_u32 v28, s8, v28")
    for q in range(2):
        k(f"v_lshl_add_u32 v31, v3, 2, v29")
        if q: k("v_add_u32 v31, 8, v31")
        k("v_mul_u32_u24 v31, 768, v31")
        k("v_add_u32 v31, v31, v28")
        k(f"v_add_u32 v32, {2*q}, v3")
        k("v_and_b32 v32, 3, v32")
        k("v_lshl_or_b32 v32, v29, 2, v32")
        for c in range(4):
            k(f"s_add_u32 s12, s3, {c}")
            k("s_and_b32 s12, s12, 3")
            k("s_lshl_b32 s12, s12, 2")
            k("v_add_u32 v33, s12, v30")
            k("v_xor_b32 v33, v33, v32")
            k(f"v_lshl_add_u32 v{20+q*4+c}, v33, 4, v31")
    k("v_lshlrev_b32 v34, 4, v1")
    k("s_mul_i32 s58, s3, 73728")
    RQ = 60
    qi = [0]; qc = [0]
    def qslot(i): return (i % RQ) * 4
    def qissue(n=1):
        for _ in range(n):
            i = qi[0]
            if i >= 72 or i >= qc[0] + RQ: return
            s_, j = i // 3, i % 3
            off = (j * 24 + s_) * 1024
            k(f"s_add_u32 s59, s58, {off & ~4095}")
            k.vmem(f"buffer_load_dwordx4 {ar(qslot(i))}, v34, s[36:39], s59 offen offset:{off & 4095}{SC}", tag=f"q{i}")
            qi[0] += 1
    k("s_cmp_lg_u32 s3, 0")
    k(f"s_cbranch_scc1 {name}_np1")
    poll(k, f"{name}_p1", 1, 72)
    k.label(f"{name}_np1")
    k("s_barrier")
    k("s_cmp_eq_u32 s3, 0")
    k(f"s_cbranch_scc1 {name}_w0")
    qissue(RQ)
    k.vm = []; qi[0] = 0
    k(f"s_branch {name}_np2")
    k.label(f"{name}_w0")
    poll(k, f"{name}_p2", 2, 183)
    k.label(f"{name}_np2")
    k("s_barrier")
    k.rt(4)
    k.stamp()
    k("s_add_u32 s13, s11, {}".format(16*768))
    k("s_mov_b32 s12, 0")
    k(f"s_mov_b32 s9, {WR}")
    k("s_cmp_lg_u32 s3, 0")
    k(f"s_cbranch_scc1 {name}_qa")
    qissue(RQ)
    vm_q = list(k.vm)
    k(f"s_branch {name}_qd")
    k.label(f"{name}_qa")
    for w_ in range(1, 4):
        if w_ < 3:
            k(f"s_cmp_lg_u32 s3, {w_}")
            k(f"s_cbranch_scc1 {name}_qn{w_}")
        k.vm = list(vm_q)
        for p_ in range(8 * (w_ - 1), 8 * w_):
            hh, i = p_ // 12, p_ % 12
            dma_one(32, 13 if hh else 11, 9 if hh else 12, 2 * HS, "u", i)
        if w_ < 3:
            k(f"s_branch {name}_qd")
            k.label(f"{name}_qn{w_}")
    k.label(f"{name}_qd")
    hload(0); hload(1)
    k.vmwait("u")
    k("s_barrier")
    k.stamp()
    QA, QB, NQB = 64, 112, 8
    k.lg = []
    def qrd(s_): k.ds(f"ds_read_b128 {vr(QB+(s_%NQB)*4)}, v{56+(s_%8)} offset:{(s_//8)*256}", tag=f"b{s_}")
    for s_ in range(NQB - 1): qrd(s_)
    for s_ in range(24):
        if s_ + NQB - 1 < 24: qrd(s_ + NQB - 1)
        k.lgwait(f"b{s_}")
        for j in range(3):
            i = qc[0]
            k.vmwait(f"q{i}")
            k(f"{MFMA} {vr(QA+16*j,16)}, {ar(qslot(i))}, {vr(QB+(s_%NQB)*4)}, {vr(QA+16*j,16) if s_ else 0}")
            qc[0] += 1
            qissue(1)
    k("s_nop 15")
    for e in range(24):
        k(f"v_cvt_pk_bf16_f32 v{QB+e}, v{QA+2*e}, v{QA+2*e+1}")
    k("s_nop 1")
    for f_ in range(6):
        k(f"v_permlane32_swap_b32 v{QB+4*f_}, v{QB+4*f_+2}")
        k(f"v_permlane32_swap_b32 v{QB+4*f_+1}, v{QB+4*f_+3}")
    k("s_lshr_b32 s12, s3, 1")
    k(f"s_mul_i32 s12, s12, {WR}")
    k("s_and_b32 s9, s3, 1")
    k("s_mul_i32 s9, s9, 6144")
    k("s_add_u32 s12, s12, s9")
    k(f"s_add_u32 s12, s12, {2*WR + 2*HS}")
    k("v_add_u32 v35, s12, v34")
    k("s_nop 1")
    for f_ in range(6):
        k.ds(f"ds_write_b128 v35, {vr(QB+4*f_)} offset:{1024*f_}")
    k(f"v_add_u32 v35, {2*WR + 2*HS}, v34")
    k(f"v_add_u32 v36, {3*WR + 2*HS}, v34")
    k.lgwait_all()
    k("s_barrier")
    UF = 0
    for s_ in range(24):
        k.ds(f"ds_read_b128 {ar(UF+4*s_)}, v{35 + s_//12} offset:{(s_%12)*1024}")
    k.lgwait_all()
    k("s_barrier")
    k.stamp()
    vm_keep = [t for t in k.vm]
    HT = 96
    KR, NKR = 192, 8
    SA, PF = 32, 48
    OA = 64
    M_, L_ = 28, 29
    THR = 8.0
    wslot = [224 + 4 * i for i in range(8)] + [4 * i for i in range(24)] + [96 + 4 * i for i in range(24)]
    RW = len(wslot)
    k("v_lshlrev_b32 v63, 4, v1")
    k("s_mul_i32 s58, s3, 73728")
    wiss = [0]; wcons = [0]; wlim = [8]
    def wissue(n=1):
        for _ in range(n):
            i = wiss[0]
            if i >= 72: return
            if i < RW:
                if i >= wlim[0]: return
            elif i >= wcons[0] + RW: return
            s, j = i // 3, i % 3
            off = (j * 24 + s) * 1024
            k(f"s_add_u32 s59, s58, {off & ~4095}")
            k.vmem(f"buffer_load_dwordx4 {ar(wslot[i%RW])}, v63, s[48:51], s59 offen offset:{off & 4095}{SC}", tag=f"w{i}")
            wiss[0] += 1
    for tau in range(6):
        hB = 2 * tau + 1
        FINE = 'fine' in FL and tau in (2, 3, 4)
        if 'fine' in FL: k.off = not FINE
        if FINE: k.stamp()
        if tau == 0:
            k.vmwait(f"h{hB}")
        if ('coarse' not in FL or tau in (0, 3)) and ('fine' not in FL or FINE): k.stamp()
        if tau == 0: k.lg = []
        trl = []
        for sp in range(2):
            slot = ((2 * tau + sp) % 3) * HS
            for ct in range(12):
                for q in range(2):
                    d = HT + (ct * 2 + sp) * 4 + 2 * q
                    trl.append(f"ds_read_b64_tr_b16 a[{d}:{d+1}], v{20+q*4+(ct%4)} offset:{slot+(ct//4)*256}")
        def krd(s): k.ds(f"ds_read_b128 {ar(KR+(s%NKR)*4)}, v{9+(s%8)} offset:{(s//8)*256}", tag=f"k{s}")
        PRE = 5
        if tau == 0:
            for s in range(PRE): krd(s)
        hr = 2 * tau + 2
        for s in range(24):
            if s + PRE < 24: krd(s + PRE)
            if s >= 2:
                for _ in range(2 if s < 23 else 4):
                    if trl: k.ds(trl.pop(0))
            k.lgwait(f"k{s}")
            k(f"{MFMA} {vr(SA,16)}, {ar(KR+(s%NKR)*4)}, {ar(UF+4*s)}, {vr(SA,16) if s else 0}")
            if hr < 12 and s % 2 == 1: hload_one(hr, s // 2)
            elif hr >= 12 and s % 3 == 2: wissue(1)
        while trl: k.ds(trl.pop(0))
        if FINE: k.stamp()
        if tau < 5:
            for bi in range(8):
                k(f"v_add_u32 v{9+bi}, v{9+bi}, v{17+(tau%3)}")
        else:
            k("s_nop 7")
        k.lgwait_all()
        if 'coarse' not in FL and ('fine' not in FL or FINE): k.stamp()
        hu = 2 * tau + 3
        ui = [0]
        def urgent(n=1):
            for _ in range(n):
                if hu < 12:
                    if ui[0] < 12:
                        hload_one(hu, ui[0]); ui[0] += 1
                else:
                    wissue(1)
        if tau == 5: wlim[0] = 32
        urgent(2)
        if True:
            k(f"s_add_u32 s60, s15, {tau}")
            k("s_cmp_eq_u32 s60, 5")
            k("s_cselect_b32 s12, 1, 0")
            k("s_cmp_eq_u32 s60, 11")
            k("s_cselect_b32 s12, 1, s12")
            k("s_cmp_lg_u32 s12, 0")
            k(f"s_cbranch_scc1 {name}_mask{tau}")
            k.label(f"{name}_nomask{tau}")
            k.ool_begin()
            k.label(f"{name}_mask{tau}")
            k("s_lshl_b32 s60, s3, 5")
            k(f"s_sub_u32 s60, {N - 640}, s60")
            k("v_lshlrev_b32 v30, 2, v3")
            k("v_mov_b32 v31, 0xff800000")
            for r in range(16):
                cr = 8 * (r >> 2) + (r & 3)
                k(f"v_add_u32 v56, {cr}, v30")
                k("v_cmp_gt_i32 vcc, s60, v56")
                k("s_nop 1")
                k(f"v_cndmask_b32 v{SA+r}, v31, v{SA+r}, vcc")
            k(f"s_branch {name}_nomask{tau}")
            k.ool_end()
        k(f"v_max3_f32 v30, v{SA}, v{SA+1}, v{SA+2}")
        for r in range(3, 15, 2):
            k(f"v_max3_f32 v30, v30, v{SA+r}, v{SA+r+1}")
        k(f"v_max_f32 v30, v30, v{SA+15}")
        xhalf(k, "v_max_f32", 30, 31)
        urgent(1)
        if tau == 0:
            k(f"v_max_f32 v{M_}, 0xf149f2ca, v30")
            k(f"v_mov_b32 v{L_}, 0")
        else:
            k(f"v_add_f32 v31, {hex(f2u(THR))}, v{M_}")
            k("v_cmp_gt_f32 vcc, v30, v31")
            k(f"s_cbranch_vccnz {name}_rs{tau}")
            k.label(f"{name}_nors{tau}")
            k.ool_begin()
            k.label(f"{name}_rs{tau}")
            k(f"v_max_f32 v30, v30, v{M_}")
            k(f"v_sub_f32 v31, v{M_}, v30")
            k("v_exp_f32 v31, v31")
            k(f"v_mov_b32 v{M_}, v30")
            k("s_nop 7")
            k(f"v_mul_f32 v{L_}, v{L_}, v31")
            for r in range(192):
                k(f"v_mul_f32 v{OA+r}, v{OA+r}, v31")
            k("s_nop 1")
            k(f"s_branch {name}_nors{tau}")
            k.ool_end()
        for r in range(8):
            k(f"v_sub_f32 v{SA+r}, v{SA+r}, v{M_}")
        for r in range(8):
            k(f"v_exp_f32 v{SA+r}, v{SA+r}")
        urgent(1)
        for p in range(4):
            k(f"v_cvt_pk_bf16_f32 v{PF+p}, v{SA+2*p}, v{SA+2*p+1}")
        k("s_nop 1")
        if FINE: k.stamp()
        fill = [f"v_sub_f32 v{SA+r}, v{SA+r}, v{M_}" for r in range(8, 16)]
        fill += [f"v_exp_f32 v{SA+r}, v{SA+r}" for r in range(8, 16)]
        fill += [f"v_add_f32 v30, v{SA}, v{SA+1}"]
        fill += [f"v_cvt_pk_bf16_f32 v{PF+p}, v{SA+2*p}, v{SA+2*p+1}" for p in range(4, 8)]
        fill += [f"v_add_f32 v31, v{SA+2}, v{SA+3}"]
        for r in range(4, 16, 2):
            fill += [f"v_add_f32 v30, v30, v{SA+r}", f"v_add_f32 v31, v31, v{SA+r+1}"]
        fill += [f"v_add_f32 v{L_}, v{L_}, v30", f"v_add_f32 v{L_}, v{L_}, v31"]
        n = 0
        for sp in range(2):
            for ct in range(12):
                c = vr(OA + 16 * ct, 16) if (tau or sp) else "0"
                k(f"{MFMA} {vr(OA+16*ct,16)}, {ar(HT+(ct*2+sp)*4)}, {vr(PF+4*sp)}, {c}")
                for _ in range(3 if n < 8 else 2):
                    if fill: k(fill.pop(0))
                if n % 2 == 1 or n >= 10: urgent(1)
                n += 1
                if n == 18 and tau < 5:
                    urgent(12)
                    k.vmwait(f"h{2*tau+3}")
                    k.lg = []
                    for s in range(PRE): krd(s)
        assert not fill
        urgent(12)
    wlim[0] = RW
    if 'fine' in FL: k.off = True
    k.stamp()
    xhalf(k, "v_add_f32", L_, 30)
    STB = 147456
    k("v_lshlrev_b32 v30, 3, v2")
    k(f"v_add_u32 v30, {STB}, v30")
    k("s_lshl_b32 s60, s3, 8")
    k("v_add_u32 v31, s60, v30")
    k.ds(f"ds_write_b64 v31, v[{M_}:{L_}]")
    k("v_add_u32 v31, s8, v63")
    k("s_nop 4")
    for cp in range(1, 4):
        for a_ in range(3):
            for e in range(4):
                k.ds(f"ds_write_b128 v31, {vr(OA+16*(4*a_+cp)+4*e)} offset:{(cp-1)*HS+a_*4096+e*1024}")
        wissue(3)
    for cp in range(4):
        k(f"s_sub_u32 s60, s3, {cp}")
        k("s_and_b32 s60, s60, 3")
        k("s_lshl_b32 s12, s60, 8")
        k(f"v_add_u32 v{56+cp}, s12, v30")
        if cp:
            k(f"s_mul_i32 s12, s60, {WR}")
            k(f"s_add_u32 s12, s12, {(cp-1)*HS}")
            k(f"v_add_u32 v{59+cp}, s12, v63")
    k.lgwait_all()
    k("s_barrier")
    for cp in range(4):
        k.ds(f"ds_read_b64 v[{32+2*cp}:{33+2*cp}], v{56+cp}", tag="st")
    for cp in range(1, 4):
        for a_ in range(3):
            for e in range(4):
                k.ds(f"ds_read_b128 {vr(OA+16*(4*a_+cp)+4*e)}, v{59+cp} offset:{a_*4096+e*1024}", tag=f"pr{cp}")
    k.lgwait("st")
    k("v_max3_f32 v40, v32, v34, v36")
    k("v_max_f32 v40, v40, v38")
    for cp in range(4):
        k(f"v_sub_f32 v{32+2*cp}, v{32+2*cp}, v40")
    for cp in range(4):
        k(f"v_exp_f32 v{32+2*cp}, v{32+2*cp}")
    k("s_nop 0")
    k("v_mul_f32 v42, v32, v33")
    k("v_fmac_f32 v42, v34, v35")
    k("v_fmac_f32 v42, v36, v37")
    k("v_fmac_f32 v42, v38, v39")
    k("v_rcp_f32 v42, v42")
    k("s_nop 0")
    for cp in range(4):
        k(f"v_mul_f32 v{44+cp}, v{32+2*cp}, v42")
    for a_ in range(3):
        for r in range(16):
            k(f"v_mul_f32 v{OA+64*a_+r}, v{OA+64*a_+r}, v44")
    wissue(4)
    for cp in range(1, 4):
        k.lgwait(f"pr{cp}")
        for a_ in range(3):
            for r in range(16):
                k(f"v_fmac_f32 v{OA+64*a_+r}, v{OA+16*(4*a_+cp)+r}, v{44+cp}")
        wissue(4)
    for a_ in range(3):
        for e in range(8):
            k(f"v_cvt_pk_bf16_f32 v{32+a_*8+e}, v{OA+64*a_+2*e}, v{OA+64*a_+2*e+1}")
    for a_ in range(3):
        for sp in range(2):
            k.ds(f"ds_write_b128 v60, {vr(32+a_*8+sp*4)} offset:{(a_*2+sp)*1024}")
    for wp in range(4):
        k(f"v_add_u32 v{56+wp}, {((wp-1)&3)*WR}, v63")
    k("v_lshrrev_b32 v4, 3, v1")
    k("s_lshl_b32 s60, s3, 3")
    k("v_add_u32 v4, s60, v4")
    k("v_and_b32 v5, 7, v1")
    k("s_lshl_b32 s60, s5, 5")
    k("v_add_u32 v6, s60, v4")
    k("v_mul_u32_u24 v6, 768, v6")
    k("v_lshl_add_u32 v6, v5, 4, v6")
    XR = 160
    for j in range(6):
        k.vmem(f"buffer_load_dwordx4 {vr(XR+4*j)}, v6, s[40:43], 0 offen offset:{128*j} sc1", tag="xr")
    k.lgwait_all()
    k("s_barrier")
    YA = 96
    BR, NBR = 64, 8
    k.stamp()
    k.lg = []
    def rd(s):
        ct, sp = s // 2, s % 2
        a_, wp = ct // 4, ct % 4
        k.ds(f"ds_read_b128 {vr(BR+(s%NBR)*4)}, v{56+wp} offset:{(a_*2+sp)*1024}", tag=f"b{s}")
    for s in range(NBR - 1): rd(s)
    wi = 0
    for s in range(24):
        if s + NBR - 1 < 24: rd(s + NBR - 1)
        k.lgwait(f"b{s}")
        for j in range(3):
            k.vmwait(f"w{wi}")
            k(f"{MFMA} {vr(YA+16*j,16)}, {ar(wslot[wi%RW])}, {vr(BR+(s%NBR)*4)}, {vr(YA+16*j,16) if s else 0}")
            wi += 1
            wcons[0] = wi
            wissue(1)
    k("s_nop 15")
    k.stamp()
    YB = 8192
    k(f"v_mul_u32_u24 v7, {PH}, v2")
    k("s_mul_i32 s60, s3, 192")
    k(f"s_add_u32 s60, s60, {YB}")
    k("v_lshl_add_u32 v7, v3, 3, v7")
    k("v_add_u32 v7, s60, v7")
    for e in range(24):
        k(f"v_cvt_pk_bf16_f32 v{64+e}, v{YA+2*e}, v{YA+2*e+1}")
    for jq in range(12):
        j, q = jq // 4, jq % 4
        k.ds(f"ds_write_b64 v7, v[{64+2*jq}:{65+2*jq}] offset:{64*j+16*q}")
    k(f"v_mul_u32_u24 v8, {PH}, v4")
    k("v_lshl_add_u32 v8, v5, 4, v8")
    k.lgwait_all()
    k("s_barrier")
    for j in range(6):
        k.ds(f"ds_read_b128 {vr(96+4*j)}, v8 offset:{YB+128*j}")
    k("s_mov_b32 s60, 0xffff0000")
    k.vmwait("xr")
    k.lgwait_all()
    for e in range(24):
        k(f"v_lshlrev_b32 v64, 16, v{96+e}")
        k(f"v_and_b32 v65, s60, v{96+e}")
        k(f"v_lshlrev_b32 v66, 16, v{XR+e}")
        k(f"v_and_b32 v67, s60, v{XR+e}")
        k("v_add_f32 v64, v64, v66")
        k("v_add_f32 v65, v65, v67")
        k(f"v_cvt_pk_bf16_f32 v{128+e}, v64, v65")
    for j in range(6):
        k.vmem(f"buffer_store_dwordx4 {vr(128+4*j)}, v6, s[44:47], 0 offen offset:{128*j}{OUTF}")


NREP = 8
NSH = 8
WS_SYNC = 24 * MiB
CSZ = NREP * NSH * 128
def spin(k, lab, srd, voff_reg, target, nsh):
    k("s_mov_b32 s61, 0")
    k.label(lab)
    k(f"buffer_load_dword v244, v{voff_reg}, s[{srd}:{srd+3}], 0 offen sc1")
    k("s_waitcnt vmcnt(0)")
    if nsh == 1:
        k("v_readfirstlane_b32 s63, v244")
        k("s_nop 3")
    else:
        k("v_readlane_b32 s63, v244, 0")
        for i in range(1, nsh):
            k(f"v_readlane_b32 s52, v244, {i}")
            k("s_nop 3")
            k("s_add_u32 s63, s63, s52")
    k(f"s_cmp_ge_u32 s63, {target}")
    k(f"s_cbranch_scc1 {lab}_done")
    k(f"s_sleep {SLEEP}")
    k("s_add_u32 s61, s61, 1")
    k("s_cmp_lt_u32 s61, 0x200000")
    k(f"s_cbranch_scc1 {lab}")
    k.label(f"{lab}_done")

def zcheck(k, lab):
    k("s_cmp_lg_u32 s53, 0")
    k(f"s_cbranch_scc1 {lab}_skip")
    k("v_mov_b32 v245, 0")
    spin(k, lab, 64, 245, 1, 1)
    k("s_mov_b32 s53, 1")
    k.label(f"{lab}_skip")

def poll(k, lab, cidx, target):
    zcheck(k, lab + "z")
    k(f"s_and_b32 s63, s2, {NREP-1}")
    k(f"s_mul_i32 s63, s63, {NSH*128}")
    k(f"s_add_u32 s63, s63, {cidx*CSZ}")
    k(f"v_and_b32 v245, {NSH-1}, v1")
    k("v_lshlrev_b32 v245, 7, v245")
    k("v_add_u32 v245, s63, v245")
    spin(k, lab, 80, 245, target, NSH)

def signal(k, lab, cidx):
    k("s_waitcnt vmcnt(0)")
    k("s_barrier")
    k("s_cmp_lg_u32 s3, 0")
    k(f"s_cbranch_scc1 {lab}")
    zcheck(k, lab + "z")
    k("v_mov_b32 v244, 1")
    k("s_lshr_b32 s63, s2, 3")
    k(f"s_and_b32 s63, s63, {NSH-1}")
    k("s_lshl_b32 s63, s63, 7")
    if cidx is None:
        k(f"s_mul_i32 s52, s56, {CSZ}")
        k("s_add_u32 s63, s63, s52")
    else:
        k(f"s_add_u32 s63, s63, {cidx*CSZ}")
    k(f"v_mul_u32_u24 v245, {NSH*128}, v1")
    k("v_add_u32 v245, s63, v245")
    k("s_mov_b64 s[68:69], exec")
    k(f"s_mov_b64 exec, {(1<<NREP)-1}")
    k("buffer_atomic_add v244, v245, s[80:83], 0 offen sc1")
    k("s_mov_b64 exec, s[68:69]")
    k.label(lab)

def gen_main():
    k = K(); name = "standalone__video_timesformer__vision_kernel"
    prologue(k, name, 255)
    k.srd(64, 28, 0, 256)
    k.srd(80, 30, WS_SYNC, 3 * CSZ)
    k("s_mov_b32 s53, 0")
    k("s_cmp_lg_u32 s2, 254")
    k("s_cbranch_scc1 L_noz")
    k("s_cmp_lg_u32 s3, 0")
    k("s_cbranch_scc1 L_noz")
    k("v_mov_b32 v244, 0")
    k("v_lshlrev_b32 v245, 7, v1")
    for c in range(3):
        k(f"s_mov_b32 s63, {c*CSZ}")
        k("buffer_store_dword v244, v245, s[80:83], s63 offen sc1")
    k("s_waitcnt vmcnt(0)")
    k("v_mov_b32 v244, 1")
    k("v_mov_b32 v245, 0")
    k("buffer_store_dword v244, v245, s[64:67], 0 offen sc1")
    k("s_mov_b32 s53, 1")
    k.label("L_noz")
    for i in range(8):
        if 'rt' in FL: k(f"s_mov_b32 s{90+i}, 0")
    k.rt(0)
    k("s_cmp_ge_u32 s2, 72")
    k(f"s_cbranch_scc1 L_cons")
    k(f"s_mul_hi_u32 s54, s2, {((1<<32)+35)//36}")
    k("s_mul_i32 s55, s54, 36")
    k("s_sub_u32 s55, s2, s55")
    k("s_mov_b32 s56, 0")
    k.label("LF_loop")
    k("s_mov_b32 s4, s54")
    k("s_mov_b32 s5, s55")
    fold(k, "LF0")
    k.rt(1)
    signal(k, "LF0_sig", None)
    k.rt(2)
    k("s_add_u32 s54, s54, 2")
    k("s_add_u32 s56, s56, 1")
    k("s_cmp_lt_u32 s56, 2")
    k("s_cbranch_scc1 LF_loop")
    k.rt(3)
    k("s_branch L_ph2")
    k.label("L_cons")
    k("s_sub_u32 s62, s2, 72")
    k.ph = 1
    phase1(k, "L1")
    k.stamp()
    k.rt(2)
    signal(k, "L1_sig", 2)
    k.rt(3)
    k.stamp()
    k.label("L_ph2")
    k("s_and_b32 s4, s2, 7")
    k("s_lshr_b32 s5, s2, 3")
    k("s_cmp_eq_u32 s4, 0")
    k("s_cselect_b32 s7, 21, 20")
    k("s_cmp_ge_u32 s5, s7")
    k(f"s_cbranch_scc1 L_fin")
    k("s_mul_i32 s6, s4, 20")
    k("s_min_u32 s7, s4, 1")
    k("s_add_u32 s6, s6, s7")
    k("s_add_u32 s6, s6, s5")
    k.ph = 2
    if 'fine' in FL: k.off = True
    phase2(k, "L2")
    if 'stamp' in FL:
        k.vmwait_all()
        k.stamp()
        k.dump_stamps(100)
    k.rt(5)
    k.label("L_fin")
    k.dump_rt()
    k.label(f"{name}_end")
    k("s_endpgm")
    return k.text()

HEADER = """; TimeSformer divided space-time attention block, gfx950.  Generated by gen3.py (own generator).
; One persistent launch: workgroups 0..71 fold Wq Wk^T / Wv Wo into MFMA fragment order; workgroups 72..254 do
; @launch grid=(255,1,1) block=(256,1,1) lds=148480
.amdgcn_target "amdgcn-amd-amdhsa--gfx950"
.text
"""
def desc(name, vgpr, accum):
    return f""".amdhsa_kernel {name}
  .amdhsa_next_free_vgpr {vgpr}
  .amdhsa_next_free_sgpr 102
  .amdhsa_accum_offset {accum}
  .amdhsa_group_segment_fixed_size 0
  .amdhsa_kernarg_size 64
  .amdhsa_user_sgpr_count 2
  .amdhsa_user_sgpr_kernarg_segment_ptr 1
  .amdhsa_system_sgpr_workgroup_id_x 1
  .amdhsa_float_denorm_mode_32 3
.end_amdhsa_kernel
"""
def main():
    name = "standalone__video_timesformer__vision_kernel"
    out = HEADER + f".globl {name}\n.p2align 8\n.type {name},@function\n" + gen_main()
    out += '.section .rodata,"a"\n.p2align 6\n' + desc(name, 512, 256)
    path = sys.argv[1] if len(sys.argv) > 1 else "standalone__video_timesformer__vision.s"
    open(path, "w").write(out)
    print("wrote", path, len(out))
if __name__ == "__main__":
    main()
```

```python
import sys, os, struct
FL = os.environ.get('GENFLAGS', '').split(',')
T, N, C = 7, 729, 384
X_BYTES = T * N * C * 2
FR_BYTES = N * C * 2
WQKV_BYTES = C * 3 * C * 2
WO_BYTES = C * C * 2
MiB = 1 << 20
WS_FQT, WS_FVT, WS_FQS, WS_FVS = 0, 1 * MiB, 2 * MiB, 3 * MiB
WS_X1, WS_H2, WS_U2 = 4 * MiB, 9 * MiB, 14 * MiB
BIG = 0x7f000000
OUTF = os.environ.get('OUTF', '')
SC = '' if 'nosc' in FL else ' sc1'
ZWG = int(os.environ.get("ZWG", "72"))
SLEEP = int(os.environ.get('SLEEP', '4'))
LOG2E = 1.4426950408889634
QSCALE = (C ** -0.5) * LOG2E
def f2u(f): return struct.unpack('<I', struct.pack('<f', f))[0]

class K:
    def __init__(self):
        self.L = []; self.vm = []; self.lg = []
    def __call__(self, s): self.L.append("    " + s)
    def label(self, l): self.L.append(l + ":")
    def vmem(self, s, tag=None):
        self(s); self.vm.append(tag)
    def vmwait(self, tag):
        idx = max(i for i, t in enumerate(self.vm) if t == tag)
        n = len(self.vm) - 1 - idx
        self(f"s_waitcnt vmcnt({min(n,63)})")
    def vmwait_all(self): self("s_waitcnt vmcnt(0)")
    def ds(self, s, tag=None):
        self(s); self.lg.append(tag)
    def lgwait(self, tag):
        idx = max(i for i, t in enumerate(self.lg) if t == tag)
        n = len(self.lg) - 1 - idx
        self(f"s_waitcnt lgkmcnt({min(n,15)})")
    def lgwait_all(self): self("s_waitcnt lgkmcnt(0)")
    def srd(self, d, lo, off, size):
        if off:
            self(f"s_add_u32 s{d}, s{lo}, {off}")
            self(f"s_addc_u32 s{d+1}, s{lo+1}, 0")
        else:
            self(f"s_mov_b32 s{d}, s{lo}")
            self(f"s_mov_b32 s{d+1}, s{lo+1}")
        self(f"s_mov_b32 s{d+2}, {size}")
        self(f"s_mov_b32 s{d+3}, 0x00020000")
    def srd_s(self, d, lo, soff, size):
        self(f"s_add_u32 s{d}, s{lo}, s{soff}")
        self(f"s_addc_u32 s{d+1}, s{lo+1}, 0")
        self(f"s_mov_b32 s{d+2}, {size}")
        self(f"s_mov_b32 s{d+3}, 0x00020000")
    ph = 0
    off = False
    def stamp(self):
        if 'stamp' not in FL or self.off: return
        if f"st{self.ph}" not in FL: return
        n = getattr(self, 'nst', 0)
        if n >= 18: return
        self("s_memtime s[70:71]")
        self("s_waitcnt lgkmcnt(0)")
        self(f"s_mov_b32 s{84+n}, s70")
        self.nst = n + 1
    def rt(self, idx):
        if 'rt' not in FL: return
        self("s_memrealtime s[70:71]")
        self("s_waitcnt lgkmcnt(0)")
        self(f"s_mov_b32 s{90+idx}, s70")
    def dump_rt(self):
        if 'rt' not in FL: return
        lab = f"L_nort_{len(self.L)}"
        self("s_cmp_lg_u32 s3, 0")
        self(f"s_cbranch_scc1 {lab}")
        self.srd(84, 30, 32 * MiB, 65536)
        self("s_lshl_b32 s70, s2, 5")
        self("v_mov_b32 v65, s70")
        for i in range(8):
            self(f"v_mov_b32 v64, s{90+i}")
            self(f"buffer_store_dword v64, v65, s[84:87], 0 offen offset:{4*i}")
        self.label(lab)
    def dump_stamps(self, wg=0):
        if 'stamp' not in FL: return
        lab = f"L_nodump_{id(self)}"
        self(f"s_cmp_lg_u32 s2, {wg}")
        self(f"s_cbranch_scc1 {lab}")
        self("s_cmp_lg_u32 s3, 0")
        self(f"s_cbranch_scc1 {lab}")
        self("s_load_dwordx2 s[64:65], s[0:1], 48")
        self("s_waitcnt lgkmcnt(0)")
        self("s_mov_b32 s66, 256")
        self("s_mov_b32 s67, 0x00020000")
        self("v_mov_b32 v65, 0")
        for i in range(self.nst):
            self(f"v_mov_b32 v64, s{84+i}")
            self(f"buffer_store_dword v64, v65, s[64:67], 0 offen offset:{4*i+4}")
        self.label(lab)
    def ool_begin(self):
        self._save = self.L; self.L = []
    def ool_end(self):
        if not hasattr(self, 'OOL'): self.OOL = []
        self.OOL += self.L; self.L = self._save
    def text(self): return "\n".join(self.L + getattr(self, 'OOL', [])) + "\n"

def vr(b, n=4): return f"v[{b}:{b+n-1}]"
def ar(b, n=4): return f"a[{b}:{b+n-1}]"
MFMA = "v_mfma_f32_32x32x16_bf16"

def prologue(k, name, ngrid):
    k.label(name)
    k(f"s_cmp_ge_u32 s2, {ngrid}")
    k(f"s_cbranch_scc1 {name}_end")
    k("s_load_dwordx16 s[16:31], s[0:1], 0")
    k("v_and_b32 v1, 63, v0")
    k("v_lshrrev_b32 v4, 6, v0")
    k("v_and_b32 v2, 31, v1")
    k("v_readfirstlane_b32 s3, v4")
    k("v_lshrrev_b32 v3, 5, v1")
    k("s_waitcnt lgkmcnt(0)")

def bf16r(k, dst, src):
    k(f"v_cvt_pk_bf16_f32 v{dst}, v{src}, v{src}")
    k(f"v_lshlrev_b32 v{dst}, 16, v{dst}")

def ln_stats(k, s1, s2, m, rinv, t):
    k(f"v_mul_f32 v{s1}, {hex(f2u(1.0/C))}, v{s1}")
    k(f"v_mul_f32 v{s2}, {hex(f2u(1.0/C))}, v{s2}")
    k(f"v_fma_f32 v{s2}, -v{s1}, v{s1}, v{s2}")
    k(f"v_max_f32 v{s2}, 0, v{s2}")
    bf16r(k, m, s1)
    bf16r(k, t, s2)
    k(f"v_add_f32 v{t}, {hex(f2u(1e-5))}, v{t}")
    bf16r(k, t, t)
    k(f"v_sqrt_f32 v{t}, v{t}")
    k("s_nop 0")
    bf16r(k, t, t)
    k(f"v_rcp_f32 v{rinv}, v{t}")
    k("s_nop 0")

def xhalf(k, op, a, tmp):
    k(f"v_mov_b32 v{tmp}, v{a}")
    k("s_nop 1")
    k(f"v_permlane32_swap_b32 v{a}, v{tmp}")
    k("s_nop 1")
    k(f"{op} v{a}, v{a}, v{tmp}")

PH = 784

def fold(k, name):
    k.vm = []; k.lg = []
    k("s_mul_hi_u32 s6, s5, 0x2AAAAAAB")
    k("s_mul_i32 s7, s6, 6")
    k("s_sub_u32 s7, s5, s7")
    k("s_cmp_ge_u32 s4, 2")
    k("s_cselect_b32 s8, s22, s18")
    k("s_cselect_b32 s9, s23, s19")
    k("s_cselect_b32 s10, s24, s20")
    k("s_cselect_b32 s11, s25, s21")
    k("s_mov_b32 s32, s8"); k("s_mov_b32 s33, s9"); k(f"s_mov_b32 s34, {WQKV_BYTES}"); k("s_mov_b32 s35, 0x00020000")
    k("s_mov_b32 s36, s10"); k("s_mov_b32 s37, s11"); k(f"s_mov_b32 s38, {WO_BYTES}"); k("s_mov_b32 s39, 0x00020000")
    k("s_lshl_b32 s8, s4, 20")
    k.srd_s(40, 30, 8, WO_BYTES)
    k("s_and_b32 s12, s4, 1")
    AB, BBASE = 0, 64 * PH
    k("v_lshlrev_b32 v5, 4, v1")
    k("s_lshl_b32 s13, s6, 6")
    k("s_lshl_b32 s14, s3, 4")
    k("s_add_u32 s13, s13, s14")
    k("s_mul_i32 s13, s13, 2304")
    k("s_mul_i32 s15, s12, 1536")
    k("s_add_u32 s13, s13, s15")
    k(f"s_mul_i32 s14, s14, {PH}")
    k("v_cmp_gt_u32 vcc, 48, v1")
    k("s_and_saveexec_b64 s[44:45], vcc")
    for r in range(16):
        k(f"s_add_u32 m0, s14, {AB + r*PH}")
        k(f"s_add_u32 s15, s13, {r*2304}")
        k("s_nop 0")
        k.vmem("buffer_load_dwordx4 v5, s[32:35], s15 offen lds")
    k("s_mov_b64 exec, s[44:45]")
    k(f"v_mul_u32_u24 v6, {PH}, v2")
    k("v_lshl_add_u32 v6, v3, 4, v6")
    k("s_lshr_b32 s46, s3, 1")
    k("s_and_b32 s47, s3, 1")
    k(f"s_mul_i32 s15, s46, {32*PH}")
    k("v_add_u32 v7, s15, v6")
    k("s_cmp_eq_u32 s12, 1")
    k(f"s_cbranch_scc1 {name}_vo")
    k("s_lshl_b32 s13, s7, 6")
    k("s_lshl_b32 s14, s3, 4")
    k("s_add_u32 s13, s13, s14")
    k("s_mul_i32 s13, s13, 2304")
    k("s_add_u32 s13, s13, 768")
    k(f"s_mul_i32 s14, s14, {PH}")
    k("s_and_saveexec_b64 s[44:45], vcc")
    for r in range(16):
        k(f"s_add_u32 m0, s14, {BBASE + r*PH}")
        k(f"s_add_u32 s15, s13, {r*2304}")
        k("s_nop 0")
        k.vmem("buffer_load_dwordx4 v5, s[32:35], s15 offen lds")
    k("s_mov_b64 exec, s[44:45]")
    k(f"s_mul_i32 s15, s47, {32*PH}")
    k(f"s_add_u32 s15, s15, {BBASE}")
    k("v_add_u32 v8, s15, v6")
    k.vmwait_all()
    k("s_barrier")
    ACC = 16
    for s in range(24):
        k.ds(f"ds_read_b128 {vr(32+(s%8)*8)}, v7 offset:{32*s}", tag=f"f{s}")
        k.ds(f"ds_read_b128 {vr(36+(s%8)*8)}, v8 offset:{32*s}", tag=f"f{s}")
        if s >= 6:
            s0 = s - 6
            k.lgwait(f"f{s0}")
            k(f"{MFMA} {vr(ACC,16)}, {vr(32+(s0%8)*8)}, {vr(36+(s0%8)*8)}, {vr(ACC,16) if s0 else 0}")
    for s0 in range(18, 24):
        k.lgwait(f"f{s0}")
        k(f"{MFMA} {vr(ACC,16)}, {vr(32+(s0%8)*8)}, {vr(36+(s0%8)*8)}, {vr(ACC,16)}")
    k("s_nop 15")
    for r in range(16):
        k(f"v_mul_f32 v{ACC+r}, {hex(f2u(QSCALE))}, v{ACC+r}")
    for e in range(8):
        k(f"v_cvt_pk_bf16_f32 v{32+e}, v{ACC+2*e}, v{ACC+2*e+1}")
    k("s_nop 1")
    for sp in range(2):
        k(f"v_permlane32_swap_b32 v{32+4*sp}, v{34+4*sp}")
        k(f"v_permlane32_swap_b32 v{33+4*sp}, v{35+4*sp}")
    k(f"s_branch {name}_store")
    k.label(f"{name}_vo")
    k("v_lshrrev_b32 v8, 3, v1")
    k("v_and_b32 v9, 7, v1")
    k("v_mul_u32_u24 v8, 768, v8")
    k("v_lshl_add_u32 v8, v9, 4, v8")
    k("s_lshl_b32 s13, s7, 7")
    k("s_mul_i32 s14, s3, 96*768")
    k("s_add_u32 s13, s13, s14")
    k("s_mul_i32 s14, s3, 96*128")
    for i in range(12):
        k(f"s_add_u32 m0, s14, {BBASE + i*1024}")
        k(f"s_add_u32 s15, s13, {i*8*768}")
        k("s_nop 0")
        k.vmem("buffer_load_dwordx4 v8, s[36:39], s15 offen lds")
    k("v_and_b32 v4, 15, v1")
    k("v_lshrrev_b32 v9, 2, v4")
    k("v_and_b32 v4, 3, v4")
    k("v_lshl_add_u32 v9, v3, 3, v9")
    k("v_lshlrev_b32 v9, 7, v9")
    k("v_lshl_add_u32 v9, v4, 3, v9")
    k("v_bfe_u32 v4, v1, 4, 1")
    k("v_lshl_add_u32 v9, v4, 5, v9")
    k("s_lshl_b32 s15, s47, 6")
    k(f"s_add_u32 s15, s15, {BBASE}")
    k("v_add_u32 v9, s15, v9")
    k.vmwait_all()
    k("s_barrier")
    k.lg = []
    for s in range(24):
        k.ds(f"ds_read_b128 {vr(32+(s%8)*8)}, v7 offset:{32*s}", tag=f"f{s}")
        for q in range(2):
            k.ds(f"ds_read_b64_tr_b16 v[{36+(s%8)*8+2*q}:{37+(s%8)*8+2*q}], v9 offset:{(16*s+4*q)*128}", tag=f"f{s}")
        if s >= 4:
            s0 = s - 4
            k.lgwait(f"f{s0}")
            k(f"{MFMA} {vr(ACC,16)}, {vr(32+(s0%8)*8)}, {vr(36+(s0%8)*8)}, {vr(ACC,16) if s0 else 0}")
    for s0 in range(20, 24):
        k.lgwait(f"f{s0}")
        k(f"{MFMA} {vr(ACC,16)}, {vr(32+(s0%8)*8)}, {vr(36+(s0%8)*8)}, {vr(ACC,16)}")
    k("s_nop 15")
    for e in range(8):
        k(f"v_cvt_pk_bf16_f32 v{32+e}, v{ACC+2*e}, v{ACC+2*e+1}")
    k.label(f"{name}_store")
    k("s_lshl_b32 s13, s7, 1")
    k("s_add_u32 s13, s13, s47")
    k("s_mul_i32 s13, s13, 24")
    k("s_lshl_b32 s14, s6, 1")
    k("s_add_u32 s14, s14, s46")
    k("s_lshl_b32 s14, s14, 1")
    k("s_add_u32 s13, s13, s14")
    k("s_lshl_b32 s13, s13, 10")
    k("s_nop 1")
    k.vmem(f"buffer_store_dwordx4 {vr(32)}, v5, s[40:43], s13 offen sc1")
    k.vmem(f"buffer_store_dwordx4 {vr(36)}, v5, s[40:43], s13 offen offset:1024 sc1")

def phase1(k, name):
    k.vm = []; k.lg = []
    HB, XB, SX, YX, ST = 0, 25088, 50176, 66560, 91136
    k.stamp()
    UB = SX
    k.srd(32, 16, 0, X_BYTES)
    if 'winput' in FL:
        k.srd(36, 18, 0, WQKV_BYTES)
    else:
        k.srd(36, 30, 0, 4 * MiB)
    k.srd(40, 30, WS_X1, X_BYTES)
    k.srd(44, 30, WS_H2, X_BYTES)
    k.srd(48, 30, WS_U2, X_BYTES)
    k("v_lshrrev_b32 v4, 3, v1")
    k("s_lshl_b32 s4, s3, 3")
    k("v_add_u32 v4, s4, v4")
    k("v_and_b32 v5, 7, v1")
    k("v_mul_u32_u24 v6, 9363, v4")
    k("v_lshrrev_b32 v6, 16, v6")
    k("v_mul_u32_u24 v7, 7, v6")
    k("v_sub_u32 v7, v4, v7")
    k("s_lshl_b32 s5, s62, 2")
    k("v_add_u32 v6, s5, v6")
    k("v_mul_u32_u24 v7, 729, v7")
    k("v_add_u32 v7, v7, v6")
    k("v_mul_u32_u24 v7, 768, v7")
    k("v_lshl_add_u32 v7, v5, 4, v7")
    k(f"v_cmp_gt_u32 vcc, {N}, v6")
    k("s_mov_b64 s[12:13], vcc")
    k("v_cmp_gt_u32 vcc, 28, v4")
    k(f"v_mov_b32 v8, {hex(BIG)}")
    k("s_nop 1")
    k("s_and_b64 vcc, vcc, s[12:13]")
    k("s_nop 1")
    k("v_cndmask_b32 v8, v8, v7, vcc")
    XA, HA = 16, 40
    for j in range(6):
        k.vmem(f"buffer_load_dwordx4 {vr(XA+4*j)}, v8, s[32:35], 0 offen offset:{128*j}", tag="x")
    k(f"v_mul_u32_u24 v9, {PH}, v4")
    k("v_lshl_add_u32 v9, v5, 4, v9")
    R = 60
    k("v_lshlrev_b32 v10, 4, v1")
    k("s_mul_i32 s6, s3, 73728")
    bases = [WS_FQT, WS_FVT, WS_FQS] if 'winput' not in FL else [0, 294912, 589824]
    issued = [0]
    wgate = [0]
    wi = [0]
    def wissue(n=1):
        for _ in range(n):
            i = issued[0]
            if i >= 216 or i >= wi[0] + R or i >= wgate[0]: return
            mi, r = i // 72, i % 72
            s, j = r // 3, r % 3
            off = bases[mi] + (j * 24 + s) * 1024
            k(f"s_add_u32 s7, s6, {off & ~4095}")
            k.vmem(f"buffer_load_dwordx4 {ar((i % R)*4)}, v10, s[36:39], s7 offen offset:{off & 4095}{SC}", tag=f"w{i}")
            issued[0] += 1
    wissue(10)
    k("s_mov_b32 s10, 0x3f803f80")
    k("s_mov_b32 s11, 0xffff0000")
    for i in range(4): k(f"v_mov_b32 v{64+i}, 0")
    k.vmwait("x")
    k.stamp()
    for i in range(24):
        k(f"v_dot2_f32_bf16 v{64+(i&1)}, v{XA+i}, s10, v{64+(i&1)}")
        k(f"v_dot2_f32_bf16 v{66+(i&1)}, v{XA+i}, v{XA+i}, v{66+(i&1)}")
        if i % 2 == 1: wissue(1)
    for j in range(6):
        k.ds(f"ds_write_b128 v9, {vr(XA+4*j)} offset:{XB+128*j}")
    k("v_add_f32 v64, v64, v65")
    k("v_add_f32 v66, v66, v67")
    def red8(rs):
        for ctl in ("quad_perm:[1,0,3,2]", "quad_perm:[2,3,0,1]", "row_half_mirror"):
            k("s_nop 1")
            for r in rs:
                k(f"v_add_f32_dpp v{r}, v{r}, v{r} {ctl} row_mask:0xf bank_mask:0xf")
    red8([64, 66])
    ln_stats(k, 64, 66, 68, 69, 70)
    k("v_mul_f32 v68, v68, v69")
    for i in range(24):
        k(f"v_lshlrev_b32 v72, 16, v{XA+i}")
        k(f"v_and_b32 v73, s11, v{XA+i}")
        k(f"v_fma_f32 v72, v72, v69, -v68")
        k(f"v_fma_f32 v73, v73, v69, -v68")
        k(f"v_cvt_pk_bf16_f32 v{HA+i}, v72, v73")
        wissue(1)
    for j in range(6):
        k.ds(f"ds_write_b128 v9, {vr(HA+4*j)} offset:{HB+128*j}")
    wissue(8)
    k(f"v_mul_u32_u24 v11, {PH}, v2")
    k("v_lshl_add_u32 v12, v3, 4, v11")
    k("s_mul_i32 s8, s3, 192")
    k("v_lshl_add_u32 v13, v3, 3, v11")
    k("v_add_u32 v13, s8, v13")
    k.lgwait_all()
    k("s_cmp_lg_u32 s3, 0")
    k(f"s_cbranch_scc1 {name}_np0")
    poll(k, f"{name}_p0", 0, 72)
    k.label(f"{name}_np0")
    k("s_barrier")
    k.rt(1)
    k.stamp()
    k.vm = []
    wgate[0] = 144
    wissue(8)
    k("s_lshr_b32 s9, s62, 3")
    k("s_lshl_b32 s9, s9, 2")
    k("s_add_u32 s9, s9, s3")
    k("s_lshl_b32 s52, s9, 10")
    for j in range(7):
        k(f"s_add_u32 s9, s52, {92*1024*j}")
        k(f"s_cmp_ge_u32 s9, {288*1024}")
        k(f"s_cselect_b32 s7, {MiB - 288*1024}, 0")
        k("s_add_u32 s9, s9, s7")
        k.vmem(f"buffer_load_dwordx4 {ar(240+4*(j&3))}, v10, s[36:39], s9 offen sc1")
    wissue(12)
    BR, NBR = 64, 8
    ACC = 96
    PK = 144
    def gemm(baddr, boff, bstride):
        k.lg = []
        def rd(s): k.ds(f"ds_read_b128 {vr(BR+(s%NBR)*4)}, v{baddr} offset:{boff+s*bstride}", tag=f"b{s}")
        for s in range(NBR - 1): rd(s)
        for s in range(24):
            if s + NBR - 1 < 24: rd(s + NBR - 1)
            k.lgwait(f"b{s}")
            for j in range(3):
                i = wi[0]
                if 'now' not in FL: k.vmwait(f"w{i}")
                if 'nomf' not in FL: k(f"{MFMA} {vr(ACC+16*j,16)}, {ar((i%R)*4)}, {vr(BR+(s%NBR)*4)}, {vr(ACC+16*j,16) if s else 0}")
                wi[0] += 1
                if (i & 1) or issued[0] < wi[0] + 40: wissue(1)
        k("s_nop 15")
    k.stamp()
    gemm(12, HB, 32)
    k.stamp()
    for s in range(6):
        k.ds(f"ds_read2_b64 {vr(BR+4*s)}, v13 offset0:{4*s} offset1:{4*s+2}", tag=f"c{s}")
    for e in range(24):
        k(f"v_cvt_pk_bf16_f32 v{PK+e}, v{ACC+2*e}, v{ACC+2*e+1}")
        if e % 8 == 7: wissue(1)
    SA = 168
    k.lgwait_all()
    k("s_nop 1")
    for s in range(6):
        k(f"{MFMA} {vr(SA,16)}, {vr(BR+4*s)}, {vr(PK+4*s)}, {vr(SA,16) if s else 0}")
    k("s_lshl_b32 s9, s3, 12")
    k(f"s_add_u32 s9, s9, {SX}")
    k("v_add_u32 v14, s9, v10")
    k(f"v_add_u32 v15, {SX}, v10")
    k("s_nop 15")
    for e in range(4):
        k.ds(f"ds_write_b128 v14, {vr(SA+4*e)} offset:{1024*e}")
    k.lgwait_all()
    k("s_barrier")
    SS = 184
    for w in range(4):
        for e in range(4):
            k.ds(f"ds_read_b128 {vr(SS+16*w+4*e)}, v15 offset:{4096*w+1024*e}")
    k("v_mul_u32_u24 v4, 9363, v2")
    k("v_lshrrev_b32 v4, 16, v4")
    k("v_mul_u32_u24 v4, 7, v4")
    k("v_lshlrev_b32 v5, 2, v3")
    k("v_sub_u32 v4, v4, v5")
    k("v_mov_b32 v5, 0xff800000")
    k.lgwait_all()
    for r in range(16):
        k(f"v_add_f32 v{SS+r}, v{SS+r}, v{SS+16+r}")
        k(f"v_add_f32 v{SS+32+r}, v{SS+32+r}, v{SS+48+r}")
        if r % 4 == 3: wissue(1)
    for r in range(16):
        k(f"v_add_f32 v{SA+r}, v{SS+r}, v{SS+32+r}")
        if r % 8 == 7: wissue(1)
    k.stamp()
    for r in range(16):
        cr = 8 * (r >> 2) + (r & 3)
        k(f"v_sub_u32 v6, {cr}, v4")
        k("v_cmp_gt_u32 vcc, 7, v6")
        k("s_nop 1")
        k(f"v_cndmask_b32 v{SA+r}, v5, v{SA+r}, vcc")
        if r % 2 == 1: wissue(1)
    k(f"v_max3_f32 v6, v{SA}, v{SA+1}, v{SA+2}")
    for r in range(3, 15, 2):
        k(f"v_max3_f32 v6, v6, v{SA+r}, v{SA+r+1}")
    k(f"v_max_f32 v6, v6, v{SA+15}")
    xhalf(k, "v_max_f32", 6, 7)
    k("v_max_f32 v6, 0xff7fffff, v6")
    for r in range(16):
        k(f"v_sub_f32 v{SA+r}, v{SA+r}, v6")
        if r % 8 == 7: wissue(1)
    for r in range(16):
        k(f"v_exp_f32 v{SA+r}, v{SA+r}")
        if r % 4 == 3: wissue(1)
    k("s_nop 0")
    k(f"v_add_f32 v6, v{SA}, v{SA+1}")
    for r in range(2, 16):
        k(f"v_add_f32 v6, v6, v{SA+r}")
        if r % 8 == 7: wissue(1)
    xhalf(k, "v_add_f32", 6, 7)
    k("v_rcp_f32 v6, v6")
    k("s_nop 0")
    PF = 248
    for r in range(16):
        k(f"v_mul_f32 v{SA+r}, v{SA+r}, v6")
        if r % 8 == 7: wissue(1)
    for p in range(8):
        k(f"v_cvt_pk_bf16_f32 v{PF+p}, v{SA+2*p}, v{SA+2*p+1}")
    wissue(2)
    k("v_and_b32 v4, 15, v1")
    k("v_lshrrev_b32 v5, 2, v4")
    k("v_and_b32 v4, 3, v4")
    k("v_lshl_add_u32 v5, v3, 2, v5")
    k(f"v_mul_u32_u24 v5, {PH}, v5")
    k("v_lshl_add_u32 v5, v4, 3, v5")
    k("v_bfe_u32 v4, v1, 4, 1")
    k("v_lshl_add_u32 v5, v4, 5, v5")
    k("v_add_u32 v5, s8, v5")
    for j in range(3):
        for sp in range(2):
            for q in range(2):
                b = BR + (j * 2 + sp) * 4 + 2 * q
                k.ds(f"ds_read_b64_tr_b16 v[{b}:{b+1}], v5 offset:{HB+(16*sp+8*q)*PH+64*j}")
    k.lgwait_all()
    for j in range(3):
        for sp in range(2):
            k(f"{MFMA} {vr(ACC+16*j,16)}, {vr(BR+(j*2+sp)*4)}, {vr(PF+4*sp)}, {vr(ACC+16*j,16) if sp else 0}")
    k("s_mul_i32 s9, s3, 6144")
    k(f"s_add_u32 s9, s9, {YX}")
    k("v_add_u32 v14, s9, v10")
    k(f"v_add_u32 v15, {YX}, v10")
    k("s_nop 15")
    for e in range(24):
        k(f"v_cvt_pk_bf16_f32 v{PK+e}, v{ACC+2*e}, v{ACC+2*e+1}")
        if e % 6 == 5: wissue(1)
    for s in range(6):
        k.ds(f"ds_write_b128 v14, {vr(PK+4*s)} offset:{1024*s}")
    wissue(6)
    k.lgwait_all()
    k("s_barrier")
    k.stamp()
    gemm(15, 0, 1024)
    k.stamp()
    XR = 184
    for jq in range(12):
        j, q = jq // 4, jq % 4
        k.ds(f"ds_read_b64 v[{XR+2*jq}:{XR+2*jq+1}], v13 offset:{XB+64*j+16*q}")
    k("v_mov_b32 v6, 0"); k("v_mov_b32 v7, 0")
    k.lgwait_all()
    for jq in range(12):
        for e in range(2):
            a = ACC + jq * 4 + 2 * e
            x = XR + jq * 2 + e
            k(f"v_lshlrev_b32 v65, 16, v{x}")
            k(f"v_and_b32 v66, s11, v{x}")
            k(f"v_add_f32 v{a}, v{a}, v65")
            k(f"v_add_f32 v{a+1}, v{a+1}, v66")
            k(f"v_cvt_pk_bf16_f32 v{x}, v{a}, v{a+1}")
            k(f"v_dot2_f32_bf16 v6, v{x}, s10, v6")
            k(f"v_dot2_f32_bf16 v7, v{x}, v{x}, v7")
        wissue(1)
    for jq in range(12):
        j, q = jq // 4, jq % 4
        k.ds(f"ds_write_b64 v13, v[{XR+2*jq}:{XR+2*jq+1}] offset:{XB+64*j+16*q}")
    k("s_nop 2")
    xhalf(k, "v_add_f32", 6, 64)
    xhalf(k, "v_add_f32", 7, 64)
    k("v_lshlrev_b32 v4, 3, v2")
    k(f"v_add_u32 v4, {ST}, v4")
    k("s_lshl_b32 s9, s3, 8")
    k("v_add_u32 v5, s9, v4")
    k.ds("ds_write_b64 v5, v[6:7]")
    k.lgwait_all()
    k("s_barrier")
    for w in range(4):
        k.ds(f"ds_read_b64 v[{64+2*w}:{65+2*w}], v4 offset:{256*w}", tag="st")
    for j in range(6):
        k.ds(f"ds_read_b128 {vr(XA+4*j)}, v9 offset:{XB+128*j}", tag="x1r")
    k.lgwait("st")
    k("v_add_f32 v64, v64, v66"); k("v_add_f32 v65, v65, v67")
    k("v_add_f32 v68, v68, v70"); k("v_add_f32 v69, v69, v71")
    k("v_add_f32 v64, v64, v68"); k("v_add_f32 v65, v65, v69")
    ln_stats(k, 64, 65, 66, 67, 68)
    k("v_mul_f32 v66, v66, v67")
    k.lgwait("x1r")
    for j in range(6):
        k.vmem(f"buffer_store_dwordx4 {vr(XA+4*j)}, v8, s[40:43], 0 offen offset:{128*j} sc1")
    for e in range(24):
        x = XR + e
        k(f"v_lshlrev_b32 v72, 16, v{x}")
        k(f"v_and_b32 v73, s11, v{x}")
        k(f"v_fma_f32 v72, v72, v67, -v66")
        k(f"v_fma_f32 v73, v73, v67, -v66")
        k(f"v_cvt_pk_bf16_f32 v{PK+e}, v72, v73")
        if e % 2 == 1: wissue(1)
    for jq in range(12):
        j, q = jq // 4, jq % 4
        k.ds(f"ds_write_b64 v13, v[{PK+2*jq}:{PK+2*jq+1}] offset:{HB+64*j+16*q}")
    wissue(8)
    k.lgwait_all()
    k("s_barrier")
    for j in range(6):
        k.ds(f"ds_read_b128 {vr(HA+4*j)}, v9 offset:{HB+128*j}")
    k.lgwait_all()
    for j in range(6):
        k.vmem(f"buffer_store_dwordx4 {vr(HA+4*j)}, v8, s[44:47], 0 offen offset:{128*j} sc1")

def phase2(k, name):
    k.vm = []; k.lg = []
    k(f"s_mul_hi_u32 s4, s6, {((1<<32)+22)//23}")
    k("s_mul_i32 s5, s4, 23")
    k("s_sub_u32 s5, s6, s5")
    k(f"s_mul_i32 s6, s4, {FR_BYTES}")
    k(f"s_add_u32 s7, s6, {WS_H2}")
    k.srd_s(32, 30, 7, FR_BYTES)
    k.srd(36, 30, WS_FQS, WO_BYTES)
    k(f"s_add_u32 s7, s6, {WS_X1}")
    k.srd_s(40, 30, 7, FR_BYTES)
    k.srd_s(44, 26, 6, FR_BYTES)
    k.srd(48, 30, WS_FVS, WO_BYTES)
    HS = 12288
    k.stamp()
    WR = 3 * HS
    for b in range(3):
        k(f"v_add_u32 v7, {64*b}, v1")
        k("v_mul_u32_u24 v8, 1366, v7")
        k("v_lshrrev_b32 v8, 16, v8")
        k("v_mul_u32_u24 v9, 48, v8")
        k("v_sub_u32 v9, v7, v9")
        k("v_lshlrev_b32 v10, 2, v8")
        k("v_xor_b32 v9, v9, v10")
        k("v_mul_u32_u24 v8, 768, v8")
        k(f"v_lshl_add_u32 v{4+b}, v9, 4, v8")
    k(f"s_mul_i32 s8, s3, {WR}")
    tmpi = [0]
    def dma_one(srd, srow, ldsbase_s, ldsoff, tag, i):
        a, b = i // 3, i % 3
        if a:
            t = 7 + (tmpi[0] & 1); tmpi[0] += 1
            k(f"v_xor_b32 v{t}, {16*a}, v{4+b}")
        else:
            t = 4 + b
        k(f"s_add_u32 m0, s{ldsbase_s}, {ldsoff + i*1024}")
        k(f"s_add_u32 s10, s{srow}, {a*3072}")
        k.vmem(f"buffer_load_dwordx4 v{t}, s[{srd}:{srd+3}], s10 offen{SC} lds", tag=tag)
    def dma_half(srd, srow, ldsbase_s, ldsoff, tag):
        for i in range(12): dma_one(srd, srow, ldsbase_s, ldsoff, tag, i)
    k("s_lshl_b32 s11, s5, 5")
    k("s_mul_i32 s11, s11, 768")
    k("s_lshl_b32 s14, s3, 5")
    k("s_mul_i32 s14, s14, 768")
    k("s_mul_hi_u32 s15, s5, 0x2AAAAAAB")
    k("s_mul_i32 s15, s15, 6")
    k("s_sub_u32 s15, s5, s15")
    def hload_one(hf, i):
        if i == 0:
            d = 56 + (hf & 1)
            k(f"s_add_u32 s{d}, s15, {hf // 2}")
            k(f"s_cmp_ge_u32 s{d}, 6")
            k(f"s_cselect_b32 s12, 6, 0")
            k(f"s_sub_u32 s{d}, s{d}, s12")
            k(f"s_mul_i32 s{d}, s{d}, {128*768}")
            k(f"s_add_u32 s{d}, s{d}, s14")
            if hf & 1: k(f"s_add_u32 s{d}, s{d}, {16*768}")
        dma_one(32, 56 + (hf & 1), 8, (hf % 3) * HS, f"h{hf}", i)
    def hload(hf):
        for i in range(12): hload_one(hf, i)
    k("v_and_b32 v28, 15, v2")
    k("v_and_b32 v29, 3, v28")
    k("v_lshlrev_b32 v29, 2, v29")
    k("v_lshrrev_b32 v30, 2, v28")
    k("v_or_b32 v29, v29, v30")
    k("v_mul_u32_u24 v28, 768, v28")
    for bi in range(8):
        k(f"v_add_u32 v30, {2*bi}, v3")
        k("v_xor_b32 v30, v30, v29")
        k(f"v_lshl_add_u32 v{9+bi}, v30, 4, v28")
    k("v_lshrrev_b32 v30, 4, v2")
    k(f"v_mul_u32_u24 v31, {WR}, v30")
    k(f"v_add_u32 v31, {2*HS}, v31")
    for bi in range(8):
        k(f"v_add_u32 v{56+bi}, v{9+bi}, v31")
    k(f"v_mul_u32_u24 v31, {HS}, v30")
    k("v_add_u32 v31, s8, v31")
    for bi in range(8):
        k(f"v_add_u32 v{9+bi}, v{9+bi}, v31")
    k("v_cmp_eq_u32 vcc, 0, v30")
    k(f"v_mov_b32 v31, {2*HS}")
    k(f"v_mov_b32 v28, {(-HS) & 0xffffffff}")
    k("s_nop 0")
    k("v_cndmask_b32 v17, v28, v31, vcc")
    k("v_cndmask_b32 v18, v31, v28, vcc")
    k("v_mov_b32 v19, v28")
    k("v_and_b32 v28, 15, v1")
    k("v_lshrrev_b32 v29, 2, v28")
    k("v_and_b32 v28, 3, v28")
    k("v_bfe_u32 v30, v1, 4, 1")
    k("v_lshlrev_b32 v30, 1, v30")
    k("v_lshrrev_b32 v31, 1, v28")
    k("v_add_u32 v30, v30, v31")
    k("v_and_b32 v28, 1, v28")
    k("v_lshlrev_b32 v28, 3, v28")
    k("v_add_u32 v28, s8, v28")
    for q in range(2):
        k(f"v_lshl_add_u32 v31, v3, 2, v29")
        if q: k("v_add_u32 v31, 8, v31")
        k("v_mul_u32_u24 v31, 768, v31")
        k("v_add_u32 v31, v31, v28")
        k(f"v_add_u32 v32, {2*q}, v3")
        k("v_and_b32 v32, 3, v32")
        k("v_lshl_or_b32 v32, v29, 2, v32")
        for c in range(4):
            k(f"s_add_u32 s12, s3, {c}")
            k("s_and_b32 s12, s12, 3")
            k("s_lshl_b32 s12, s12, 2")
            k("v_add_u32 v33, s12, v30")
            k("v_xor_b32 v33, v33, v32")
            k(f"v_lshl_add_u32 v{20+q*4+c}, v33, 4, v31")
    k("v_lshlrev_b32 v34, 4, v1")
    k("s_mul_i32 s58, s3, 73728")
    RQ = 60
    qi = [0]; qc = [0]
    def qslot(i): return (i % RQ) * 4
    def qissue(n=1):
        for _ in range(n):
            i = qi[0]
            if i >= 72 or i >= qc[0] + RQ: return
            s_, j = i // 3, i % 3
            off = (j * 24 + s_) * 1024
            k(f"s_add_u32 s59, s58, {off & ~4095}")
            k.vmem(f"buffer_load_dwordx4 {ar(qslot(i))}, v34, s[36:39], s59 offen offset:{off & 4095}{SC}", tag=f"q{i}")
            qi[0] += 1
    k("s_cmp_lg_u32 s3, 0")
    k(f"s_cbranch_scc1 {name}_np1")
    poll(k, f"{name}_p1", 1, 72)
    k.label(f"{name}_np1")
    k("s_barrier")
    k("s_cmp_eq_u32 s3, 0")
    k(f"s_cbranch_scc1 {name}_w0")
    qissue(RQ)
    k.vm = []; qi[0] = 0
    k(f"s_branch {name}_np2")
    k.label(f"{name}_w0")
    poll(k, f"{name}_p2", 2, 183)
    k.label(f"{name}_np2")
    k("s_barrier")
    k.rt(4)
    k.stamp()
    k("s_add_u32 s13, s11, {}".format(16*768))
    k("s_mov_b32 s12, 0")
    k(f"s_mov_b32 s9, {WR}")
    k("s_cmp_lg_u32 s3, 0")
    k(f"s_cbranch_scc1 {name}_qa")
    qissue(RQ)
    vm_q = list(k.vm)
    k(f"s_branch {name}_qd")
    k.label(f"{name}_qa")
    for w_ in range(1, 4):
        if w_ < 3:
            k(f"s_cmp_lg_u32 s3, {w_}")
            k(f"s_cbranch_scc1 {name}_qn{w_}")
        k.vm = list(vm_q)
        for p_ in range(8 * (w_ - 1), 8 * w_):
            hh, i = p_ // 12, p_ % 12
            dma_one(32, 13 if hh else 11, 9 if hh else 12, 2 * HS, "u", i)
        if w_ < 3:
            k(f"s_branch {name}_qd")
            k.label(f"{name}_qn{w_}")
    k.label(f"{name}_qd")
    hload(0); hload(1)
    k.vmwait("u")
    k("s_barrier")
    k.stamp()
    QA, QB, NQB = 64, 112, 8
    k.lg = []
    def qrd(s_): k.ds(f"ds_read_b128 {vr(QB+(s_%NQB)*4)}, v{56+(s_%8)} offset:{(s_//8)*256}", tag=f"b{s_}")
    for s_ in range(NQB - 1): qrd(s_)
    for s_ in range(24):
        if s_ + NQB - 1 < 24: qrd(s_ + NQB - 1)
        k.lgwait(f"b{s_}")
        for j in range(3):
            i = qc[0]
            k.vmwait(f"q{i}")
            k(f"{MFMA} {vr(QA+16*j,16)}, {ar(qslot(i))}, {vr(QB+(s_%NQB)*4)}, {vr(QA+16*j,16) if s_ else 0}")
            qc[0] += 1
            qissue(1)
    k("s_nop 15")
    for e in range(24):
        k(f"v_cvt_pk_bf16_f32 v{QB+e}, v{QA+2*e}, v{QA+2*e+1}")
    k("s_nop 1")
    for f_ in range(6):
        k(f"v_permlane32_swap_b32 v{QB+4*f_}, v{QB+4*f_+2}")
        k(f"v_permlane32_swap_b32 v{QB+4*f_+1}, v{QB+4*f_+3}")
    k("s_lshr_b32 s12, s3, 1")
    k(f"s_mul_i32 s12, s12, {WR}")
    k("s_and_b32 s9, s3, 1")
    k("s_mul_i32 s9, s9, 6144")
    k("s_add_u32 s12, s12, s9")
    k(f"s_add_u32 s12, s12, {2*WR + 2*HS}")
    k("v_add_u32 v35, s12, v34")
    k("s_nop 1")
    for f_ in range(6):
        k.ds(f"ds_write_b128 v35, {vr(QB+4*f_)} offset:{1024*f_}")
    k(f"v_add_u32 v35, {2*WR + 2*HS}, v34")
    k(f"v_add_u32 v36, {3*WR + 2*HS}, v34")
    k.lgwait_all()
    k("s_barrier")
    UF = 0
    for s_ in range(24):
        k.ds(f"ds_read_b128 {ar(UF+4*s_)}, v{35 + s_//12} offset:{(s_%12)*1024}")
    k.lgwait_all()
    k("s_barrier")
    k.stamp()
    vm_keep = [t for t in k.vm]
    HT = 96
    KR, NKR = 192, 8
    SA, PF = 32, 48
    OA = 64
    M_, L_ = 28, 29
    THR = 8.0
    wslot = [224 + 4 * i for i in range(8)] + [4 * i for i in range(24)] + [96 + 4 * i for i in range(24)]
    RW = len(wslot)
    k("v_lshlrev_b32 v63, 4, v1")
    k("s_mul_i32 s58, s3, 73728")
    wiss = [0]; wcons = [0]; wlim = [8]
    def wissue(n=1):
        for _ in range(n):
            i = wiss[0]
            if i >= 72: return
            if i < RW:
                if i >= wlim[0]: return
            elif i >= wcons[0] + RW: return
            s, j = i // 3, i % 3
            off = (j * 24 + s) * 1024
            k(f"s_add_u32 s59, s58, {off & ~4095}")
            k.vmem(f"buffer_load_dwordx4 {ar(wslot[i%RW])}, v63, s[48:51], s59 offen offset:{off & 4095}{SC}", tag=f"w{i}")
            wiss[0] += 1
    for tau in range(6):
        hB = 2 * tau + 1
        FINE = 'fine' in FL and tau in (2, 3, 4)
        if 'fine' in FL: k.off = not FINE
        if FINE: k.stamp()
        if tau == 0:
            k.vmwait(f"h{hB}")
        if ('coarse' not in FL or tau in (0, 3)) and ('fine' not in FL or FINE): k.stamp()
        if tau == 0: k.lg = []
        trl = []
        for sp in range(2):
            slot = ((2 * tau + sp) % 3) * HS
            for ct in range(12):
                for q in range(2):
                    d = HT + (ct * 2 + sp) * 4 + 2 * q
                    trl.append(f"ds_read_b64_tr_b16 a[{d}:{d+1}], v{20+q*4+(ct%4)} offset:{slot+(ct//4)*256}")
        def krd(s): k.ds(f"ds_read_b128 {ar(KR+(s%NKR)*4)}, v{9+(s%8)} offset:{(s//8)*256}", tag=f"k{s}")
        PRE = int(os.environ.get("PRE", "5"))
        if tau == 0:
            for s in range(PRE): krd(s)
        hr = 2 * tau + 2
        for s in range(24):
            if s + PRE < 24: krd(s + PRE)
            if s >= 2:
                for _ in range(2 if s < 23 else 4):
                    if trl: k.ds(trl.pop(0))
            k.lgwait(f"k{s}")
            k(f"{MFMA} {vr(SA,16)}, {ar(KR+(s%NKR)*4)}, {ar(UF+4*s)}, {vr(SA,16) if s else 0}")
            if hr < 12 and s % 2 == 1: hload_one(hr, s // 2)
            elif hr >= 12 and s % 3 == 2: wissue(1)
        while trl: k.ds(trl.pop(0))
        if FINE: k.stamp()
        if tau < 5:
            for bi in range(8):
                k(f"v_add_u32 v{9+bi}, v{9+bi}, v{17+(tau%3)}")
        else:
            k("s_nop 7")
        k.lgwait_all()
        if 'coarse' not in FL and ('fine' not in FL or FINE): k.stamp()
        hu = 2 * tau + 3
        ui = [0]
        def urgent(n=1):
            for _ in range(n):
                if hu < 12:
                    if ui[0] < 12:
                        hload_one(hu, ui[0]); ui[0] += 1
                else:
                    wissue(1)
        if tau == 5: wlim[0] = 32
        urgent(2)
        if True:
            k(f"s_add_u32 s60, s15, {tau}")
            k("s_cmp_eq_u32 s60, 5")
            k("s_cselect_b32 s12, 1, 0")
            k("s_cmp_eq_u32 s60, 11")
            k("s_cselect_b32 s12, 1, s12")
            k("s_cmp_lg_u32 s12, 0")
            k(f"s_cbranch_scc1 {name}_mask{tau}")
            k.label(f"{name}_nomask{tau}")
            k.ool_begin()
            k.label(f"{name}_mask{tau}")
            k("s_lshl_b32 s60, s3, 5")
            k(f"s_sub_u32 s60, {N - 640}, s60")
            k("v_lshlrev_b32 v30, 2, v3")
            k("v_mov_b32 v31, 0xff800000")
            for r in range(16):
                cr = 8 * (r >> 2) + (r & 3)
                k(f"v_add_u32 v56, {cr}, v30")
                k("v_cmp_gt_i32 vcc, s60, v56")
                k("s_nop 1")
                k(f"v_cndmask_b32 v{SA+r}, v31, v{SA+r}, vcc")
            k(f"s_branch {name}_nomask{tau}")
            k.ool_end()
        k(f"v_max3_f32 v30, v{SA}, v{SA+1}, v{SA+2}")
        for r in range(3, 15, 2):
            k(f"v_max3_f32 v30, v30, v{SA+r}, v{SA+r+1}")
        k(f"v_max_f32 v30, v30, v{SA+15}")
        xhalf(k, "v_max_f32", 30, 31)
        urgent(1)
        if tau == 0:
            k(f"v_max_f32 v{M_}, 0xf149f2ca, v30")
            k(f"v_mov_b32 v{L_}, 0")
        else:
            k(f"v_add_f32 v31, {hex(f2u(THR))}, v{M_}")
            k("v_cmp_gt_f32 vcc, v30, v31")
            k(f"s_cbranch_vccnz {name}_rs{tau}")
            k.label(f"{name}_nors{tau}")
            k.ool_begin()
            k.label(f"{name}_rs{tau}")
            k(f"v_max_f32 v30, v30, v{M_}")
            k(f"v_sub_f32 v31, v{M_}, v30")
            k("v_exp_f32 v31, v31")
            k(f"v_mov_b32 v{M_}, v30")
            k("s_nop 7")
            k(f"v_mul_f32 v{L_}, v{L_}, v31")
            for r in range(192):
                k(f"v_mul_f32 v{OA+r}, v{OA+r}, v31")
            k("s_nop 1")
            k(f"s_branch {name}_nors{tau}")
            k.ool_end()
        for r in range(8):
            k(f"v_sub_f32 v{SA+r}, v{SA+r}, v{M_}")
        for r in range(8):
            k(f"v_exp_f32 v{SA+r}, v{SA+r}")
        urgent(1)
        for p in range(4):
            k(f"v_cvt_pk_bf16_f32 v{PF+p}, v{SA+2*p}, v{SA+2*p+1}")
        k("s_nop 1")
        if FINE: k.stamp()
        fill = [f"v_sub_f32 v{SA+r}, v{SA+r}, v{M_}" for r in range(8, 16)]
        fill += [f"v_exp_f32 v{SA+r}, v{SA+r}" for r in range(8, 16)]
        fill += [f"v_add_f32 v30, v{SA}, v{SA+1}"]
        fill += [f"v_cvt_pk_bf16_f32 v{PF+p}, v{SA+2*p}, v{SA+2*p+1}" for p in range(4, 8)]
        fill += [f"v_add_f32 v31, v{SA+2}, v{SA+3}"]
        for r in range(4, 16, 2):
            fill += [f"v_add_f32 v30, v30, v{SA+r}", f"v_add_f32 v31, v31, v{SA+r+1}"]
        fill += [f"v_add_f32 v{L_}, v{L_}, v30", f"v_add_f32 v{L_}, v{L_}, v31"]
        n = 0
        for sp in range(2):
            for ct in range(12):
                c = vr(OA + 16 * ct, 16) if (tau or sp) else "0"
                k(f"{MFMA} {vr(OA+16*ct,16)}, {ar(HT+(ct*2+sp)*4)}, {vr(PF+4*sp)}, {c}")
                for _ in range(3 if n < 8 else 2):
                    if fill: k(fill.pop(0))
                if n % 2 == 1 or n >= 10: urgent(1)
                n += 1
                if n == 18 and tau < 5:
                    urgent(12)
                    k.vmwait(f"h{2*tau+3}")
                    k.lg = []
                    for s in range(PRE): krd(s)
        assert not fill
        urgent(12)
    wlim[0] = RW
    if 'fine' in FL: k.off = True
    k.stamp()
    xhalf(k, "v_add_f32", L_, 30)
    STB = 147456
    k("v_lshlrev_b32 v30, 3, v2")
    k(f"v_add_u32 v30, {STB}, v30")
    k("s_lshl_b32 s60, s3, 8")
    k("v_add_u32 v31, s60, v30")
    k.ds(f"ds_write_b64 v31, v[{M_}:{L_}]")
    k("v_add_u32 v31, s8, v63")
    k("s_nop 4")
    for cp in range(1, 4):
        for a_ in range(3):
            for e in range(4):
                k.ds(f"ds_write_b128 v31, {vr(OA+16*(4*a_+cp)+4*e)} offset:{(cp-1)*HS+a_*4096+e*1024}")
        wissue(3)
    for cp in range(4):
        k(f"s_sub_u32 s60, s3, {cp}")
        k("s_and_b32 s60, s60, 3")
        k("s_lshl_b32 s12, s60, 8")
        k(f"v_add_u32 v{56+cp}, s12, v30")
        if cp:
            k(f"s_mul_i32 s12, s60, {WR}")
            k(f"s_add_u32 s12, s12, {(cp-1)*HS}")
            k(f"v_add_u32 v{59+cp}, s12, v63")
    k.lgwait_all()
    k("s_barrier")
    for cp in range(4):
        k.ds(f"ds_read_b64 v[{32+2*cp}:{33+2*cp}], v{56+cp}", tag="st")
    for cp in range(1, 4):
        for a_ in range(3):
            for e in range(4):
                k.ds(f"ds_read_b128 {vr(OA+16*(4*a_+cp)+4*e)}, v{59+cp} offset:{a_*4096+e*1024}", tag=f"pr{cp}")
    k.lgwait("st")
    k("v_max3_f32 v40, v32, v34, v36")
    k("v_max_f32 v40, v40, v38")
    for cp in range(4):
        k(f"v_sub_f32 v{32+2*cp}, v{32+2*cp}, v40")
    for cp in range(4):
        k(f"v_exp_f32 v{32+2*cp}, v{32+2*cp}")
    k("s_nop 0")
    k("v_mul_f32 v42, v32, v33")
    k("v_fmac_f32 v42, v34, v35")
    k("v_fmac_f32 v42, v36, v37")
    k("v_fmac_f32 v42, v38, v39")
    k("v_rcp_f32 v42, v42")
    k("s_nop 0")
    for cp in range(4):
        k(f"v_mul_f32 v{44+cp}, v{32+2*cp}, v42")
    for a_ in range(3):
        for r in range(16):
            k(f"v_mul_f32 v{OA+64*a_+r}, v{OA+64*a_+r}, v44")
    wissue(4)
    for cp in range(1, 4):
        k.lgwait(f"pr{cp}")
        for a_ in range(3):
            for r in range(16):
                k(f"v_fmac_f32 v{OA+64*a_+r}, v{OA+16*(4*a_+cp)+r}, v{44+cp}")
        wissue(4)
    for a_ in range(3):
        for e in range(8):
            k(f"v_cvt_pk_bf16_f32 v{32+a_*8+e}, v{OA+64*a_+2*e}, v{OA+64*a_+2*e+1}")
    for a_ in range(3):
        for sp in range(2):
            k.ds(f"ds_write_b128 v60, {vr(32+a_*8+sp*4)} offset:{(a_*2+sp)*1024}")
    for wp in range(4):
        k(f"v_add_u32 v{56+wp}, {((wp-1)&3)*WR}, v63")
    k("v_lshrrev_b32 v4, 3, v1")
    k("s_lshl_b32 s60, s3, 3")
    k("v_add_u32 v4, s60, v4")
    k("v_and_b32 v5, 7, v1")
    k("s_lshl_b32 s60, s5, 5")
    k("v_add_u32 v6, s60, v4")
    k("v_mul_u32_u24 v6, 768, v6")
    k("v_lshl_add_u32 v6, v5, 4, v6")
    XR = 160
    for j in range(6):
        k.vmem(f"buffer_load_dwordx4 {vr(XR+4*j)}, v6, s[40:43], 0 offen offset:{128*j} sc1", tag="xr")
    k.lgwait_all()
    k("s_barrier")
    YA = 96
    BR, NBR = 64, 8
    k.stamp()
    k.lg = []
    def rd(s):
        ct, sp = s // 2, s % 2
        a_, wp = ct // 4, ct % 4
        k.ds(f"ds_read_b128 {vr(BR+(s%NBR)*4)}, v{56+wp} offset:{(a_*2+sp)*1024}", tag=f"b{s}")
    for s in range(NBR - 1): rd(s)
    wi = 0
    for s in range(24):
        if s + NBR - 1 < 24: rd(s + NBR - 1)
        k.lgwait(f"b{s}")
        for j in range(3):
            k.vmwait(f"w{wi}")
            k(f"{MFMA} {vr(YA+16*j,16)}, {ar(wslot[wi%RW])}, {vr(BR+(s%NBR)*4)}, {vr(YA+16*j,16) if s else 0}")
            wi += 1
            wcons[0] = wi
            wissue(1)
    k("s_nop 15")
    k.stamp()
    YB = 8192
    k(f"v_mul_u32_u24 v7, {PH}, v2")
    k("s_mul_i32 s60, s3, 192")
    k(f"s_add_u32 s60, s60, {YB}")
    k("v_lshl_add_u32 v7, v3, 3, v7")
    k("v_add_u32 v7, s60, v7")
    for e in range(24):
        k(f"v_cvt_pk_bf16_f32 v{64+e}, v{YA+2*e}, v{YA+2*e+1}")
    for jq in range(12):
        j, q = jq // 4, jq % 4
        k.ds(f"ds_write_b64 v7, v[{64+2*jq}:{65+2*jq}] offset:{64*j+16*q}")
    k(f"v_mul_u32_u24 v8, {PH}, v4")
    k("v_lshl_add_u32 v8, v5, 4, v8")
    k.lgwait_all()
    k("s_barrier")
    for j in range(6):
        k.ds(f"ds_read_b128 {vr(96+4*j)}, v8 offset:{YB+128*j}")
    k("s_mov_b32 s60, 0xffff0000")
    k.vmwait("xr")
    k.lgwait_all()
    for e in range(24):
        k(f"v_lshlrev_b32 v64, 16, v{96+e}")
        k(f"v_and_b32 v65, s60, v{96+e}")
        k(f"v_lshlrev_b32 v66, 16, v{XR+e}")
        k(f"v_and_b32 v67, s60, v{XR+e}")
        k("v_add_f32 v64, v64, v66")
        k("v_add_f32 v65, v65, v67")
        k(f"v_cvt_pk_bf16_f32 v{128+e}, v64, v65")
    for j in range(6):
        k.vmem(f"buffer_store_dwordx4 {vr(128+4*j)}, v6, s[44:47], 0 offen offset:{128*j}{OUTF}")


NREP = 8
NSH = 8
WS_SYNC = 24 * MiB
CSZ = NREP * NSH * 128
def spin(k, lab, srd, voff_reg, target, nsh):
    k("s_mov_b32 s61, 0")
    k.label(lab)
    k(f"buffer_load_dword v244, v{voff_reg}, s[{srd}:{srd+3}], 0 offen sc1")
    k("s_waitcnt vmcnt(0)")
    if nsh == 1:
        k("v_readfirstlane_b32 s63, v244")
        k("s_nop 3")
    else:
        k("v_readlane_b32 s63, v244, 0")
        for i in range(1, nsh):
            k(f"v_readlane_b32 s52, v244, {i}")
            k("s_nop 3")
            k("s_add_u32 s63, s63, s52")
    k(f"s_cmp_ge_u32 s63, {target}")
    k(f"s_cbranch_scc1 {lab}_done")
    k(f"s_sleep {SLEEP}")
    k("s_add_u32 s61, s61, 1")
    k("s_cmp_lt_u32 s61, 0x200000")
    k(f"s_cbranch_scc1 {lab}")
    k.label(f"{lab}_done")

def zcheck(k, lab):
    k("s_cmp_lg_u32 s53, 0")
    k(f"s_cbranch_scc1 {lab}_skip")
    k("v_mov_b32 v245, 0")
    spin(k, lab, 64, 245, 1, 1)
    k("s_mov_b32 s53, 1")
    k.label(f"{lab}_skip")

def poll(k, lab, cidx, target):
    zcheck(k, lab + "z")
    k(f"s_and_b32 s63, s2, {NREP-1}")
    k(f"s_mul_i32 s63, s63, {NSH*128}")
    k(f"s_add_u32 s63, s63, {cidx*CSZ}")
    k(f"v_and_b32 v245, {NSH-1}, v1")
    k("v_lshlrev_b32 v245, 7, v245")
    k("v_add_u32 v245, s63, v245")
    spin(k, lab, 80, 245, target, NSH)

def signal(k, lab, cidx):
    k("s_waitcnt vmcnt(0)")
    k("s_barrier")
    k("s_cmp_lg_u32 s3, 0")
    k(f"s_cbranch_scc1 {lab}")
    zcheck(k, lab + "z")
    k("v_mov_b32 v244, 1")
    k("s_lshr_b32 s63, s2, 3")
    k(f"s_and_b32 s63, s63, {NSH-1}")
    k("s_lshl_b32 s63, s63, 7")
    if cidx is None:
        k(f"s_mul_i32 s52, s56, {CSZ}")
        k("s_add_u32 s63, s63, s52")
    else:
        k(f"s_add_u32 s63, s63, {cidx*CSZ}")
    k(f"v_mul_u32_u24 v245, {NSH*128}, v1")
    k("v_add_u32 v245, s63, v245")
    k("s_mov_b64 s[68:69], exec")
    k(f"s_mov_b64 exec, {(1<<NREP)-1}")
    k("buffer_atomic_add v244, v245, s[80:83], 0 offen sc1")
    k("s_mov_b64 exec, s[68:69]")
    k.label(lab)

def gen_main():
    k = K(); name = "standalone__video_timesformer__vision_kernel"
    prologue(k, name, 255)
    k.srd(64, 28, 0, 256)
    k.srd(80, 30, WS_SYNC, 3 * CSZ)
    k("s_mov_b32 s53, 0")
    k(f"s_cmp_lg_u32 s2, {ZWG}")
    k("s_cbranch_scc1 L_noz")
    k("s_cmp_lg_u32 s3, 0")
    k("s_cbranch_scc1 L_noz")
    k("v_mov_b32 v244, 0")
    k("v_lshlrev_b32 v245, 7, v1")
    for c in range(3):
        k(f"s_mov_b32 s63, {c*CSZ}")
        k("buffer_store_dword v244, v245, s[80:83], s63 offen sc1")
    k("s_waitcnt vmcnt(0)")
    k("v_mov_b32 v244, 1")
    k("v_mov_b32 v245, 0")
    k("buffer_store_dword v244, v245, s[64:67], 0 offen sc1")
    k("s_mov_b32 s53, 1")
    k.label("L_noz")
    for i in range(8):
        if 'rt' in FL: k(f"s_mov_b32 s{90+i}, 0")
    k.rt(0)
    k("s_cmp_ge_u32 s2, 72")
    k(f"s_cbranch_scc1 L_cons")
    k(f"s_mul_hi_u32 s54, s2, {((1<<32)+35)//36}")
    k("s_mul_i32 s55, s54, 36")
    k("s_sub_u32 s55, s2, s55")
    k("s_mov_b32 s56, 0")
    k.label("LF_loop")
    k("s_mov_b32 s4, s54")
    k("s_mov_b32 s5, s55")
    fold(k, "LF0")
    k.rt(1)
    signal(k, "LF0_sig", None)
    k.rt(2)
    k("s_add_u32 s54, s54, 2")
    k("s_add_u32 s56, s56, 1")
    k("s_cmp_lt_u32 s56, 2")
    k("s_cbranch_scc1 LF_loop")
    k.rt(3)
    k("s_branch L_ph2")
    k.label("L_cons")
    k("s_sub_u32 s62, s2, 72")
    k.ph = 1
    phase1(k, "L1")
    k.stamp()
    k.rt(2)
    signal(k, "L1_sig", 2)
    k.rt(3)
    k.stamp()
    k.label("L_ph2")
    k("s_and_b32 s4, s2, 7")
    k("s_lshr_b32 s5, s2, 3")
    k("s_cmp_eq_u32 s4, 0")
    k("s_cselect_b32 s7, 21, 20")
    k("s_cmp_ge_u32 s5, s7")
    k(f"s_cbranch_scc1 L_fin")
    k("s_mul_i32 s6, s4, 20")
    k("s_min_u32 s7, s4, 1")
    k("s_add_u32 s6, s6, s7")
    k("s_add_u32 s6, s6, s5")
    k.ph = 2
    if 'fine' in FL: k.off = True
    phase2(k, "L2")
    if 'stamp' in FL:
        k.vmwait_all()
        k.stamp()
        k.dump_stamps(100)
    k.rt(5)
    k.label("L_fin")
    k.dump_rt()
    k.label(f"{name}_end")
    k("s_endpgm")
    return k.text()

HEADER = """; TimeSformer divided space-time attention block, gfx950.  Generated by gen3.py (own generator).
; One persistent launch: workgroups 0..71 fold Wq Wk^T / Wv Wo into MFMA fragment order; workgroups 72..254 do
; @launch grid=(255,1,1) block=(256,1,1) lds=148480
.amdgcn_target "amdgcn-amd-amdhsa--gfx950"
.text
"""
def desc(name, vgpr, accum):
    return f""".amdhsa_kernel {name}
  .amdhsa_next_free_vgpr {vgpr}
  .amdhsa_next_free_sgpr 102
  .amdhsa_accum_offset {accum}
  .amdhsa_group_segment_fixed_size 0
  .amdhsa_kernarg_size 64
  .amdhsa_user_sgpr_count 2
  .amdhsa_user_sgpr_kernarg_segment_ptr 1
  .amdhsa_system_sgpr_workgroup_id_x 1
  .amdhsa_float_denorm_mode_32 3
.end_amdhsa_kernel
"""
def main():
    name = "standalone__video_timesformer__vision_kernel"
    out = HEADER + f".globl {name}\n.p2align 8\n.type {name},@function\n" + gen_main()
    out += '.section .rodata,"a"\n.p2align 6\n' + desc(name, 512, 256)
    path = sys.argv[1] if len(sys.argv) > 1 else "standalone__video_timesformer__vision.s"
    open(path, "w").write(out)
    print("wrote", path, len(out))
if __name__ == "__main__":
    main()
```

```python
import sys, os, struct
FL = os.environ.get('GENFLAGS', '').split(',')
T, N, C = 7, 729, 384
X_BYTES = T * N * C * 2
FR_BYTES = N * C * 2
WQKV_BYTES = C * 3 * C * 2
WO_BYTES = C * C * 2
MiB = 1 << 20
WS_FQT, WS_FVT, WS_FQS, WS_FVS = 0, 1 * MiB, 2 * MiB, 3 * MiB
WS_X1, WS_H2, WS_U2 = 4 * MiB, 9 * MiB, 14 * MiB
BIG = 0x7f000000
OUTF = os.environ.get('OUTF', '')
SC = '' if 'nosc' in FL else ' sc1'
ZWG = int(os.environ.get("ZWG", "72"))
SLEEP = int(os.environ.get('SLEEP', '4'))
LOG2E = 1.4426950408889634
QSCALE = (C ** -0.5) * LOG2E
def f2u(f): return struct.unpack('<I', struct.pack('<f', f))[0]

class K:
    def __init__(self):
        self.L = []; self.vm = []; self.lg = []
    def __call__(self, s): self.L.append("    " + s)
    def label(self, l): self.L.append(l + ":")
    def vmem(self, s, tag=None):
        self(s); self.vm.append(tag)
    def vmwait(self, tag):
        idx = max(i for i, t in enumerate(self.vm) if t == tag)
        n = len(self.vm) - 1 - idx
        self(f"s_waitcnt vmcnt({min(n,63)})")
    def vmwait_all(self): self("s_waitcnt vmcnt(0)")
    def ds(self, s, tag=None):
        self(s); self.lg.append(tag)
    def lgwait(self, tag):
        idx = max(i for i, t in enumerate(self.lg) if t == tag)
        n = len(self.lg) - 1 - idx
        self(f"s_waitcnt lgkmcnt({min(n,15)})")
    def lgwait_all(self): self("s_waitcnt lgkmcnt(0)")
    def srd(self, d, lo, off, size):
        if off:
            self(f"s_add_u32 s{d}, s{lo}, {off}")
            self(f"s_addc_u32 s{d+1}, s{lo+1}, 0")
        else:
            self(f"s_mov_b32 s{d}, s{lo}")
            self(f"s_mov_b32 s{d+1}, s{lo+1}")
        self(f"s_mov_b32 s{d+2}, {size}")
        self(f"s_mov_b32 s{d+3}, 0x00020000")
    def srd_s(self, d, lo, soff, size):
        self(f"s_add_u32 s{d}, s{lo}, s{soff}")
        self(f"s_addc_u32 s{d+1}, s{lo+1}, 0")
        self(f"s_mov_b32 s{d+2}, {size}")
        self(f"s_mov_b32 s{d+3}, 0x00020000")
    ph = 0
    off = False
    def stamp(self):
        if 'stamp' not in FL or self.off: return
        if f"st{self.ph}" not in FL: return
        n = getattr(self, 'nst', 0)
        if n >= 18: return
        self("s_memtime s[70:71]")
        self("s_waitcnt lgkmcnt(0)")
        self(f"s_mov_b32 s{84+n}, s70")
        self.nst = n + 1
    def rt(self, idx):
        if 'rt' not in FL: return
        self("s_memrealtime s[70:71]")
        self("s_waitcnt lgkmcnt(0)")
        self(f"s_mov_b32 s{90+idx}, s70")
    def rt0(self, idx):
        if 'rt' not in FL: return
        lab = f"L_rt0_{len(self.L)}"
        self("s_cmp_lg_u32 s56, 0")
        self(f"s_cbranch_scc1 {lab}")
        self.rt(idx)
        self.label(lab)
    def dump_rt(self):
        if 'rt' not in FL: return
        lab = f"L_nort_{len(self.L)}"
        self("s_cmp_lg_u32 s3, 0")
        self(f"s_cbranch_scc1 {lab}")
        self.srd(84, 30, 32 * MiB, 65536)
        self("s_lshl_b32 s70, s2, 5")
        self("v_mov_b32 v65, s70")
        for i in range(8):
            self(f"v_mov_b32 v64, s{90+i}")
            self(f"buffer_store_dword v64, v65, s[84:87], 0 offen offset:{4*i}")
        self.label(lab)
    def dump_stamps(self, wg=0):
        if 'stamp' not in FL: return
        lab = f"L_nodump_{id(self)}"
        self(f"s_cmp_lg_u32 s2, {wg}")
        self(f"s_cbranch_scc1 {lab}")
        self("s_cmp_lg_u32 s3, 0")
        self(f"s_cbranch_scc1 {lab}")
        self("s_load_dwordx2 s[64:65], s[0:1], 48")
        self("s_waitcnt lgkmcnt(0)")
        self("s_mov_b32 s66, 256")
        self("s_mov_b32 s67, 0x00020000")
        self("v_mov_b32 v65, 0")
        for i in range(self.nst):
            self(f"v_mov_b32 v64, s{84+i}")
            self(f"buffer_store_dword v64, v65, s[64:67], 0 offen offset:{4*i+4}")
        self.label(lab)
    def ool_begin(self):
        self._save = self.L; self.L = []
    def ool_end(self):
        if not hasattr(self, 'OOL'): self.OOL = []
        self.OOL += self.L; self.L = self._save
    def text(self): return "\n".join(self.L + getattr(self, 'OOL', [])) + "\n"

def vr(b, n=4): return f"v[{b}:{b+n-1}]"
def ar(b, n=4): return f"a[{b}:{b+n-1}]"
MFMA = "v_mfma_f32_32x32x16_bf16"

def prologue(k, name, ngrid):
    k.label(name)
    k(f"s_cmp_ge_u32 s2, {ngrid}")
    k(f"s_cbranch_scc1 {name}_end")
    k("s_load_dwordx16 s[16:31], s[0:1], 0")
    k("v_and_b32 v1, 63, v0")
    k("v_lshrrev_b32 v4, 6, v0")
    k("v_and_b32 v2, 31, v1")
    k("v_readfirstlane_b32 s3, v4")
    k("v_lshrrev_b32 v3, 5, v1")
    k("s_waitcnt lgkmcnt(0)")

def bf16r(k, dst, src):
    k(f"v_cvt_pk_bf16_f32 v{dst}, v{src}, v{src}")
    k(f"v_lshlrev_b32 v{dst}, 16, v{dst}")

def ln_stats(k, s1, s2, m, rinv, t):
    k(f"v_mul_f32 v{s1}, {hex(f2u(1.0/C))}, v{s1}")
    k(f"v_mul_f32 v{s2}, {hex(f2u(1.0/C))}, v{s2}")
    k(f"v_fma_f32 v{s2}, -v{s1}, v{s1}, v{s2}")
    k(f"v_max_f32 v{s2}, 0, v{s2}")
    bf16r(k, m, s1)
    bf16r(k, t, s2)
    k(f"v_add_f32 v{t}, {hex(f2u(1e-5))}, v{t}")
    bf16r(k, t, t)
    k(f"v_sqrt_f32 v{t}, v{t}")
    k("s_nop 0")
    bf16r(k, t, t)
    k(f"v_rcp_f32 v{rinv}, v{t}")
    k("s_nop 0")

def xhalf(k, op, a, tmp):
    k(f"v_mov_b32 v{tmp}, v{a}")
    k("s_nop 1")
    k(f"v_permlane32_swap_b32 v{a}, v{tmp}")
    k("s_nop 1")
    k(f"{op} v{a}, v{a}, v{tmp}")

PH = 784

def fold(k, name):
    k.vm = []; k.lg = []
    k("s_mul_hi_u32 s6, s5, 0x2AAAAAAB")
    k("s_mul_i32 s7, s6, 6")
    k("s_sub_u32 s7, s5, s7")
    k("s_cmp_ge_u32 s4, 2")
    k("s_cselect_b32 s8, s22, s18")
    k("s_cselect_b32 s9, s23, s19")
    k("s_cselect_b32 s10, s24, s20")
    k("s_cselect_b32 s11, s25, s21")
    k("s_mov_b32 s32, s8"); k("s_mov_b32 s33, s9"); k(f"s_mov_b32 s34, {WQKV_BYTES}"); k("s_mov_b32 s35, 0x00020000")
    k("s_mov_b32 s36, s10"); k("s_mov_b32 s37, s11"); k(f"s_mov_b32 s38, {WO_BYTES}"); k("s_mov_b32 s39, 0x00020000")
    k("s_lshl_b32 s8, s4, 20")
    k.srd_s(40, 30, 8, WO_BYTES)
    k("s_and_b32 s12, s4, 1")
    AB, BBASE = 0, 64 * PH
    k("v_lshlrev_b32 v5, 4, v1")
    k("s_lshl_b32 s13, s6, 6")
    k("s_lshl_b32 s14, s3, 4")
    k("s_add_u32 s13, s13, s14")
    k("s_mul_i32 s13, s13, 2304")
    k("s_mul_i32 s15, s12, 1536")
    k("s_add_u32 s13, s13, s15")
    k(f"s_mul_i32 s14, s14, {PH}")
    k("v_cmp_gt_u32 vcc, 48, v1")
    k("s_and_saveexec_b64 s[44:45], vcc")
    for r in range(16):
        k(f"s_add_u32 m0, s14, {AB + r*PH}")
        k(f"s_add_u32 s15, s13, {r*2304}")
        k("s_nop 0")
        k.vmem("buffer_load_dwordx4 v5, s[32:35], s15 offen lds")
    k("s_mov_b64 exec, s[44:45]")
    k(f"v_mul_u32_u24 v6, {PH}, v2")
    k("v_lshl_add_u32 v6, v3, 4, v6")
    k("s_lshr_b32 s46, s3, 1")
    k("s_and_b32 s47, s3, 1")
    k(f"s_mul_i32 s15, s46, {32*PH}")
    k("v_add_u32 v7, s15, v6")
    k("s_cmp_eq_u32 s12, 1")
    k(f"s_cbranch_scc1 {name}_vo")
    k("s_lshl_b32 s13, s7, 6")
    k("s_lshl_b32 s14, s3, 4")
    k("s_add_u32 s13, s13, s14")
    k("s_mul_i32 s13, s13, 2304")
    k("s_add_u32 s13, s13, 768")
    k(f"s_mul_i32 s14, s14, {PH}")
    k("s_and_saveexec_b64 s[44:45], vcc")
    for r in range(16):
        k(f"s_add_u32 m0, s14, {BBASE + r*PH}")
        k(f"s_add_u32 s15, s13, {r*2304}")
        k("s_nop 0")
        k.vmem("buffer_load_dwordx4 v5, s[32:35], s15 offen lds")
    k("s_mov_b64 exec, s[44:45]")
    k(f"s_mul_i32 s15, s47, {32*PH}")
    k(f"s_add_u32 s15, s15, {BBASE}")
    k("v_add_u32 v8, s15, v6")
    k("s_cmp_lg_u32 s3, 0")
    k(f"s_cbranch_scc1 {name}_nz0")
    zcheck(k, f"{name}_zc0")
    k.label(f"{name}_nz0")
    k.rt0(5)
    k.vmwait_all()
    k("s_barrier")
    k.rt0(6)
    ACC = 16
    for s in range(24):
        k.ds(f"ds_read_b128 {vr(32+(s%8)*8)}, v7 offset:{32*s}", tag=f"f{s}")
        k.ds(f"ds_read_b128 {vr(36+(s%8)*8)}, v8 offset:{32*s}", tag=f"f{s}")
        if s >= 6:
            s0 = s - 6
            k.lgwait(f"f{s0}")
            k(f"{MFMA} {vr(ACC,16)}, {vr(32+(s0%8)*8)}, {vr(36+(s0%8)*8)}, {vr(ACC,16) if s0 else 0}")
    for s0 in range(18, 24):
        k.lgwait(f"f{s0}")
        k(f"{MFMA} {vr(ACC,16)}, {vr(32+(s0%8)*8)}, {vr(36+(s0%8)*8)}, {vr(ACC,16)}")
    k("s_nop 15")
    for r in range(16):
        k(f"v_mul_f32 v{ACC+r}, {hex(f2u(QSCALE))}, v{ACC+r}")
    for e in range(8):
        k(f"v_cvt_pk_bf16_f32 v{32+e}, v{ACC+2*e}, v{ACC+2*e+1}")
    k("s_nop 1")
    for sp in range(2):
        k(f"v_permlane32_swap_b32 v{32+4*sp}, v{34+4*sp}")
        k(f"v_permlane32_swap_b32 v{33+4*sp}, v{35+4*sp}")
    k(f"s_branch {name}_store")
    k.label(f"{name}_vo")
    k("v_lshrrev_b32 v8, 3, v1")
    k("v_and_b32 v9, 7, v1")
    k("v_mul_u32_u24 v8, 768, v8")
    k("v_lshl_add_u32 v8, v9, 4, v8")
    k("s_lshl_b32 s13, s7, 7")
    k("s_mul_i32 s14, s3, 96*768")
    k("s_add_u32 s13, s13, s14")
    k("s_mul_i32 s14, s3, 96*128")
    for i in range(12):
        k(f"s_add_u32 m0, s14, {BBASE + i*1024}")
        k(f"s_add_u32 s15, s13, {i*8*768}")
        k("s_nop 0")
        k.vmem("buffer_load_dwordx4 v8, s[36:39], s15 offen lds")
    k("v_and_b32 v4, 15, v1")
    k("v_lshrrev_b32 v9, 2, v4")
    k("v_and_b32 v4, 3, v4")
    k("v_lshl_add_u32 v9, v3, 3, v9")
    k("v_lshlrev_b32 v9, 7, v9")
    k("v_lshl_add_u32 v9, v4, 3, v9")
    k("v_bfe_u32 v4, v1, 4, 1")
    k("v_lshl_add_u32 v9, v4, 5, v9")
    k("s_lshl_b32 s15, s47, 6")
    k(f"s_add_u32 s15, s15, {BBASE}")
    k("v_add_u32 v9, s15, v9")
    k("s_cmp_lg_u32 s3, 0")
    k(f"s_cbranch_scc1 {name}_nz1")
    zcheck(k, f"{name}_zc1")
    k.label(f"{name}_nz1")
    k.rt0(5)
    k.vmwait_all()
    k("s_barrier")
    k.rt0(6)
    k.lg = []
    for s in range(24):
        k.ds(f"ds_read_b128 {vr(32+(s%8)*8)}, v7 offset:{32*s}", tag=f"f{s}")
        for q in range(2):
            k.ds(f"ds_read_b64_tr_b16 v[{36+(s%8)*8+2*q}:{37+(s%8)*8+2*q}], v9 offset:{(16*s+4*q)*128}", tag=f"f{s}")
        if s >= 4:
            s0 = s - 4
            k.lgwait(f"f{s0}")
            k(f"{MFMA} {vr(ACC,16)}, {vr(32+(s0%8)*8)}, {vr(36+(s0%8)*8)}, {vr(ACC,16) if s0 else 0}")
    for s0 in range(20, 24):
        k.lgwait(f"f{s0}")
        k(f"{MFMA} {vr(ACC,16)}, {vr(32+(s0%8)*8)}, {vr(36+(s0%8)*8)}, {vr(ACC,16)}")
    k("s_nop 15")
    for e in range(8):
        k(f"v_cvt_pk_bf16_f32 v{32+e}, v{ACC+2*e}, v{ACC+2*e+1}")
    k.label(f"{name}_store")
    k.rt0(7)
    k("s_lshl_b32 s13, s7, 1")
    k("s_add_u32 s13, s13, s47")
    k("s_mul_i32 s13, s13, 24")
    k("s_lshl_b32 s14, s6, 1")
    k("s_add_u32 s14, s14, s46")
    k("s_lshl_b32 s14, s14, 1")
    k("s_add_u32 s13, s13, s14")
    k("s_lshl_b32 s13, s13, 10")
    k("s_nop 1")
    k.vmem(f"buffer_store_dwordx4 {vr(32)}, v5, s[40:43], s13 offen sc1")
    k.vmem(f"buffer_store_dwordx4 {vr(36)}, v5, s[40:43], s13 offen offset:1024 sc1")

def phase1(k, name):
    k.vm = []; k.lg = []
    HB, XB, SX, YX, ST = 0, 25088, 50176, 66560, 91136
    k.stamp()
    UB = SX
    k.srd(32, 16, 0, X_BYTES)
    if 'winput' in FL:
        k.srd(36, 18, 0, WQKV_BYTES)
    else:
        k.srd(36, 30, 0, 4 * MiB)
    k.srd(40, 30, WS_X1, X_BYTES)
    k.srd(44, 30, WS_H2, X_BYTES)
    k.srd(48, 30, WS_U2, X_BYTES)
    k("v_lshrrev_b32 v4, 3, v1")
    k("s_lshl_b32 s4, s3, 3")
    k("v_add_u32 v4, s4, v4")
    k("v_and_b32 v5, 7, v1")
    k("v_mul_u32_u24 v6, 9363, v4")
    k("v_lshrrev_b32 v6, 16, v6")
    k("v_mul_u32_u24 v7, 7, v6")
    k("v_sub_u32 v7, v4, v7")
    k("s_lshl_b32 s5, s62, 2")
    k("v_add_u32 v6, s5, v6")
    k("v_mul_u32_u24 v7, 729, v7")
    k("v_add_u32 v7, v7, v6")
    k("v_mul_u32_u24 v7, 768, v7")
    k("v_lshl_add_u32 v7, v5, 4, v7")
    k(f"v_cmp_gt_u32 vcc, {N}, v6")
    k("s_mov_b64 s[12:13], vcc")
    k("v_cmp_gt_u32 vcc, 28, v4")
    k(f"v_mov_b32 v8, {hex(BIG)}")
    k("s_nop 1")
    k("s_and_b64 vcc, vcc, s[12:13]")
    k("s_nop 1")
    k("v_cndmask_b32 v8, v8, v7, vcc")
    XA, HA = 16, 40
    for j in range(6):
        k.vmem(f"buffer_load_dwordx4 {vr(XA+4*j)}, v8, s[32:35], 0 offen offset:{128*j}", tag="x")
    k(f"v_mul_u32_u24 v9, {PH}, v4")
    k("v_lshl_add_u32 v9, v5, 4, v9")
    R = 60
    k("v_lshlrev_b32 v10, 4, v1")
    k("s_mul_i32 s6, s3, 73728")
    bases = [WS_FQT, WS_FVT, WS_FQS] if 'winput' not in FL else [0, 294912, 589824]
    issued = [0]
    wgate = [0]
    wi = [0]
    def wissue(n=1):
        for _ in range(n):
            i = issued[0]
            if i >= 216 or i >= wi[0] + R or i >= wgate[0]: return
            mi, r = i // 72, i % 72
            s, j = r // 3, r % 3
            off = bases[mi] + (j * 24 + s) * 1024
            k(f"s_add_u32 s7, s6, {off & ~4095}")
            k.vmem(f"buffer_load_dwordx4 {ar((i % R)*4)}, v10, s[36:39], s7 offen offset:{off & 4095}{SC}", tag=f"w{i}")
            issued[0] += 1
    wissue(10)
    k("s_mov_b32 s10, 0x3f803f80")
    k("s_mov_b32 s11, 0xffff0000")
    for i in range(4): k(f"v_mov_b32 v{64+i}, 0")
    k.vmwait("x")
    k.stamp()
    for i in range(24):
        k(f"v_dot2_f32_bf16 v{64+(i&1)}, v{XA+i}, s10, v{64+(i&1)}")
        k(f"v_dot2_f32_bf16 v{66+(i&1)}, v{XA+i}, v{XA+i}, v{66+(i&1)}")
        if i % 2 == 1: wissue(1)
    for j in range(6):
        k.ds(f"ds_write_b128 v9, {vr(XA+4*j)} offset:{XB+128*j}")
    k("v_add_f32 v64, v64, v65")
    k("v_add_f32 v66, v66, v67")
    def red8(rs):
        for ctl in ("quad_perm:[1,0,3,2]", "quad_perm:[2,3,0,1]", "row_half_mirror"):
            k("s_nop 1")
            for r in rs:
                k(f"v_add_f32_dpp v{r}, v{r}, v{r} {ctl} row_mask:0xf bank_mask:0xf")
    red8([64, 66])
    ln_stats(k, 64, 66, 68, 69, 70)
    k("v_mul_f32 v68, v68, v69")
    for i in range(24):
        k(f"v_lshlrev_b32 v72, 16, v{XA+i}")
        k(f"v_and_b32 v73, s11, v{XA+i}")
        k(f"v_fma_f32 v72, v72, v69, -v68")
        k(f"v_fma_f32 v73, v73, v69, -v68")
        k(f"v_cvt_pk_bf16_f32 v{HA+i}, v72, v73")
        wissue(1)
    for j in range(6):
        k.ds(f"ds_write_b128 v9, {vr(HA+4*j)} offset:{HB+128*j}")
    wissue(8)
    k(f"v_mul_u32_u24 v11, {PH}, v2")
    k("v_lshl_add_u32 v12, v3, 4, v11")
    k("s_mul_i32 s8, s3, 192")
    k("v_lshl_add_u32 v13, v3, 3, v11")
    k("v_add_u32 v13, s8, v13")
    k.lgwait_all()
    k("s_cmp_lg_u32 s3, 0")
    k(f"s_cbranch_scc1 {name}_np0")
    poll(k, f"{name}_p0", 0, 72)
    k.label(f"{name}_np0")
    k("s_barrier")
    k.rt(1)
    k.stamp()
    k.vm = []
    wgate[0] = 144
    wissue(8)
    k("s_lshr_b32 s9, s62, 3")
    k("s_lshl_b32 s9, s9, 2")
    k("s_add_u32 s9, s9, s3")
    k("s_lshl_b32 s52, s9, 10")
    for j in range(7):
        k(f"s_add_u32 s9, s52, {92*1024*j}")
        k(f"s_cmp_ge_u32 s9, {288*1024}")
        k(f"s_cselect_b32 s7, {MiB - 288*1024}, 0")
        k("s_add_u32 s9, s9, s7")
        k.vmem(f"buffer_load_dwordx4 {ar(240+4*(j&3))}, v10, s[36:39], s9 offen sc1")
    wissue(12)
    BR, NBR = 64, 8
    ACC = 96
    PK = 144
    def gemm(baddr, boff, bstride):
        k.lg = []
        def rd(s): k.ds(f"ds_read_b128 {vr(BR+(s%NBR)*4)}, v{baddr} offset:{boff+s*bstride}", tag=f"b{s}")
        for s in range(NBR - 1): rd(s)
        for s in range(24):
            if s + NBR - 1 < 24: rd(s + NBR - 1)
            k.lgwait(f"b{s}")
            for j in range(3):
                i = wi[0]
                if 'now' not in FL: k.vmwait(f"w{i}")
                if 'nomf' not in FL: k(f"{MFMA} {vr(ACC+16*j,16)}, {ar((i%R)*4)}, {vr(BR+(s%NBR)*4)}, {vr(ACC+16*j,16) if s else 0}")
                wi[0] += 1
                if (i & 1) or issued[0] < wi[0] + 40: wissue(1)
        k("s_nop 15")
    k.stamp()
    gemm(12, HB, 32)
    k.stamp()
    for s in range(6):
        k.ds(f"ds_read2_b64 {vr(BR+4*s)}, v13 offset0:{4*s} offset1:{4*s+2}", tag=f"c{s}")
    for e in range(24):
        k(f"v_cvt_pk_bf16_f32 v{PK+e}, v{ACC+2*e}, v{ACC+2*e+1}")
        if e % 8 == 7: wissue(1)
    SA = 168
    k.lgwait_all()
    k("s_nop 1")
    for s in range(6):
        k(f"{MFMA} {vr(SA,16)}, {vr(BR+4*s)}, {vr(PK+4*s)}, {vr(SA,16) if s else 0}")
    k("s_lshl_b32 s9, s3, 12")
    k(f"s_add_u32 s9, s9, {SX}")
    k("v_add_u32 v14, s9, v10")
    k(f"v_add_u32 v15, {SX}, v10")
    k("s_nop 15")
    for e in range(4):
        k.ds(f"ds_write_b128 v14, {vr(SA+4*e)} offset:{1024*e}")
    k.lgwait_all()
    k("s_barrier")
    SS = 184
    for w in range(4):
        for e in range(4):
            k.ds(f"ds_read_b128 {vr(SS+16*w+4*e)}, v15 offset:{4096*w+1024*e}")
    k("v_mul_u32_u24 v4, 9363, v2")
    k("v_lshrrev_b32 v4, 16, v4")
    k("v_mul_u32_u24 v4, 7, v4")
    k("v_lshlrev_b32 v5, 2, v3")
    k("v_sub_u32 v4, v4, v5")
    k("v_mov_b32 v5, 0xff800000")
    k.lgwait_all()
    for r in range(16):
        k(f"v_add_f32 v{SS+r}, v{SS+r}, v{SS+16+r}")
        k(f"v_add_f32 v{SS+32+r}, v{SS+32+r}, v{SS+48+r}")
        if r % 4 == 3: wissue(1)
    for r in range(16):
        k(f"v_add_f32 v{SA+r}, v{SS+r}, v{SS+32+r}")
        if r % 8 == 7: wissue(1)
    k.stamp()
    for r in range(16):
        cr = 8 * (r >> 2) + (r & 3)
        k(f"v_sub_u32 v6, {cr}, v4")
        k("v_cmp_gt_u32 vcc, 7, v6")
        k("s_nop 1")
        k(f"v_cndmask_b32 v{SA+r}, v5, v{SA+r}, vcc")
        if r % 2 == 1: wissue(1)
    k(f"v_max3_f32 v6, v{SA}, v{SA+1}, v{SA+2}")
    for r in range(3, 15, 2):
        k(f"v_max3_f32 v6, v6, v{SA+r}, v{SA+r+1}")
    k(f"v_max_f32 v6, v6, v{SA+15}")
    xhalf(k, "v_max_f32", 6, 7)
    k("v_max_f32 v6, 0xff7fffff, v6")
    for r in range(16):
        k(f"v_sub_f32 v{SA+r}, v{SA+r}, v6")
        if r % 8 == 7: wissue(1)
    for r in range(16):
        k(f"v_exp_f32 v{SA+r}, v{SA+r}")
        if r % 4 == 3: wissue(1)
    k("s_nop 0")
    k(f"v_add_f32 v6, v{SA}, v{SA+1}")
    for r in range(2, 16):
        k(f"v_add_f32 v6, v6, v{SA+r}")
        if r % 8 == 7: wissue(1)
    xhalf(k, "v_add_f32", 6, 7)
    k("v_rcp_f32 v6, v6")
    k("s_nop 0")
    PF = 248
    for r in range(16):
        k(f"v_mul_f32 v{SA+r}, v{SA+r}, v6")
        if r % 8 == 7: wissue(1)
    for p in range(8):
        k(f"v_cvt_pk_bf16_f32 v{PF+p}, v{SA+2*p}, v{SA+2*p+1}")
    wissue(2)
    k("v_and_b32 v4, 15, v1")
    k("v_lshrrev_b32 v5, 2, v4")
    k("v_and_b32 v4, 3, v4")
    k("v_lshl_add_u32 v5, v3, 2, v5")
    k(f"v_mul_u32_u24 v5, {PH}, v5")
    k("v_lshl_add_u32 v5, v4, 3, v5")
    k("v_bfe_u32 v4, v1, 4, 1")
    k("v_lshl_add_u32 v5, v4, 5, v5")
    k("v_add_u32 v5, s8, v5")
    for j in range(3):
        for sp in range(2):
            for q in range(2):
                b = BR + (j * 2 + sp) * 4 + 2 * q
                k.ds(f"ds_read_b64_tr_b16 v[{b}:{b+1}], v5 offset:{HB+(16*sp+8*q)*PH+64*j}")
    k.lgwait_all()
    for j in range(3):
        for sp in range(2):
            k(f"{MFMA} {vr(ACC+16*j,16)}, {vr(BR+(j*2+sp)*4)}, {vr(PF+4*sp)}, {vr(ACC+16*j,16) if sp else 0}")
    k("s_mul_i32 s9, s3, 6144")
    k(f"s_add_u32 s9, s9, {YX}")
    k("v_add_u32 v14, s9, v10")
    k(f"v_add_u32 v15, {YX}, v10")
    k("s_nop 15")
    for e in range(24):
        k(f"v_cvt_pk_bf16_f32 v{PK+e}, v{ACC+2*e}, v{ACC+2*e+1}")
        if e % 6 == 5: wissue(1)
    for s in range(6):
        k.ds(f"ds_write_b128 v14, {vr(PK+4*s)} offset:{1024*s}")
    wissue(6)
    k.lgwait_all()
    k("s_barrier")
    k.stamp()
    gemm(15, 0, 1024)
    k.stamp()
    XR = 184
    for jq in range(12):
        j, q = jq // 4, jq % 4
        k.ds(f"ds_read_b64 v[{XR+2*jq}:{XR+2*jq+1}], v13 offset:{XB+64*j+16*q}")
    k("v_mov_b32 v6, 0"); k("v_mov_b32 v7, 0")
    k.lgwait_all()
    for jq in range(12):
        for e in range(2):
            a = ACC + jq * 4 + 2 * e
            x = XR + jq * 2 + e
            k(f"v_lshlrev_b32 v65, 16, v{x}")
            k(f"v_and_b32 v66, s11, v{x}")
            k(f"v_add_f32 v{a}, v{a}, v65")
            k(f"v_add_f32 v{a+1}, v{a+1}, v66")
            k(f"v_cvt_pk_bf16_f32 v{x}, v{a}, v{a+1}")
            k(f"v_dot2_f32_bf16 v6, v{x}, s10, v6")
            k(f"v_dot2_f32_bf16 v7, v{x}, v{x}, v7")
        wissue(1)
    for jq in range(12):
        j, q = jq // 4, jq % 4
        k.ds(f"ds_write_b64 v13, v[{XR+2*jq}:{XR+2*jq+1}] offset:{XB+64*j+16*q}")
    k("s_nop 2")
    xhalf(k, "v_add_f32", 6, 64)
    xhalf(k, "v_add_f32", 7, 64)
    k("v_lshlrev_b32 v4, 3, v2")
    k(f"v_add_u32 v4, {ST}, v4")
    k("s_lshl_b32 s9, s3, 8")
    k("v_add_u32 v5, s9, v4")
    k.ds("ds_write_b64 v5, v[6:7]")
    k.lgwait_all()
    k("s_barrier")
    for w in range(4):
        k.ds(f"ds_read_b64 v[{64+2*w}:{65+2*w}], v4 offset:{256*w}", tag="st")
    for j in range(6):
        k.ds(f"ds_read_b128 {vr(XA+4*j)}, v9 offset:{XB+128*j}", tag="x1r")
    k.lgwait("st")
    k("v_add_f32 v64, v64, v66"); k("v_add_f32 v65, v65, v67")
    k("v_add_f32 v68, v68, v70"); k("v_add_f32 v69, v69, v71")
    k("v_add_f32 v64, v64, v68"); k("v_add_f32 v65, v65, v69")
    ln_stats(k, 64, 65, 66, 67, 68)
    k("v_mul_f32 v66, v66, v67")
    k.lgwait("x1r")
    for j in range(6):
        k.vmem(f"buffer_store_dwordx4 {vr(XA+4*j)}, v8, s[40:43], 0 offen offset:{128*j} sc1")
    for e in range(24):
        x = XR + e
        k(f"v_lshlrev_b32 v72, 16, v{x}")
        k(f"v_and_b32 v73, s11, v{x}")
        k(f"v_fma_f32 v72, v72, v67, -v66")
        k(f"v_fma_f32 v73, v73, v67, -v66")
        k(f"v_cvt_pk_bf16_f32 v{PK+e}, v72, v73")
        if e % 2 == 1: wissue(1)
    for jq in range(12):
        j, q = jq // 4, jq % 4
        k.ds(f"ds_write_b64 v13, v[{PK+2*jq}:{PK+2*jq+1}] offset:{HB+64*j+16*q}")
    wissue(8)
    k.lgwait_all()
    k("s_barrier")
    for j in range(6):
        k.ds(f"ds_read_b128 {vr(HA+4*j)}, v9 offset:{HB+128*j}")
    k.lgwait_all()
    for j in range(6):
        k.vmem(f"buffer_store_dwordx4 {vr(HA+4*j)}, v8, s[44:47], 0 offen offset:{128*j} sc1")

def phase2(k, name):
    k.vm = []; k.lg = []
    k(f"s_mul_hi_u32 s4, s6, {((1<<32)+22)//23}")
    k("s_mul_i32 s5, s4, 23")
    k("s_sub_u32 s5, s6, s5")
    k(f"s_mul_i32 s6, s4, {FR_BYTES}")
    k(f"s_add_u32 s7, s6, {WS_H2}")
    k.srd_s(32, 30, 7, FR_BYTES)
    k.srd(36, 30, WS_FQS, WO_BYTES)
    k(f"s_add_u32 s7, s6, {WS_X1}")
    k.srd_s(40, 30, 7, FR_BYTES)
    k.srd_s(44, 26, 6, FR_BYTES)
    k.srd(48, 30, WS_FVS, WO_BYTES)
    HS = 12288
    k.stamp()
    WR = 3 * HS
    for b in range(3):
        k(f"v_add_u32 v7, {64*b}, v1")
        k("v_mul_u32_u24 v8, 1366, v7")
        k("v_lshrrev_b32 v8, 16, v8")
        k("v_mul_u32_u24 v9, 48, v8")
        k("v_sub_u32 v9, v7, v9")
        k("v_lshlrev_b32 v10, 2, v8")
        k("v_xor_b32 v9, v9, v10")
        k("v_mul_u32_u24 v8, 768, v8")
        k(f"v_lshl_add_u32 v{4+b}, v9, 4, v8")
    k(f"s_mul_i32 s8, s3, {WR}")
    tmpi = [0]
    def dma_one(srd, srow, ldsbase_s, ldsoff, tag, i):
        a, b = i // 3, i % 3
        if a:
            t = 7 + (tmpi[0] & 1); tmpi[0] += 1
            k(f"v_xor_b32 v{t}, {16*a}, v{4+b}")
        else:
            t = 4 + b
        k(f"s_add_u32 m0, s{ldsbase_s}, {ldsoff + i*1024}")
        k(f"s_add_u32 s10, s{srow}, {a*3072}")
        k.vmem(f"buffer_load_dwordx4 v{t}, s[{srd}:{srd+3}], s10 offen{SC} lds", tag=tag)
    def dma_half(srd, srow, ldsbase_s, ldsoff, tag):
        for i in range(12): dma_one(srd, srow, ldsbase_s, ldsoff, tag, i)
    k("s_lshl_b32 s11, s5, 5")
    k("s_mul_i32 s11, s11, 768")
    k("s_lshl_b32 s14, s3, 5")
    k("s_mul_i32 s14, s14, 768")
    k("s_mul_hi_u32 s15, s5, 0x2AAAAAAB")
    k("s_mul_i32 s15, s15, 6")
    k("s_sub_u32 s15, s5, s15")
    def hload_one(hf, i):
        if i == 0:
            d = 56 + (hf & 1)
            k(f"s_add_u32 s{d}, s15, {hf // 2}")
            k(f"s_cmp_ge_u32 s{d}, 6")
            k(f"s_cselect_b32 s12, 6, 0")
            k(f"s_sub_u32 s{d}, s{d}, s12")
            k(f"s_mul_i32 s{d}, s{d}, {128*768}")
            k(f"s_add_u32 s{d}, s{d}, s14")
            if hf & 1: k(f"s_add_u32 s{d}, s{d}, {16*768}")
        dma_one(32, 56 + (hf & 1), 8, (hf % 3) * HS, f"h{hf}", i)
    def hload(hf):
        for i in range(12): hload_one(hf, i)
    k("v_and_b32 v28, 15, v2")
    k("v_and_b32 v29, 3, v28")
    k("v_lshlrev_b32 v29, 2, v29")
    k("v_lshrrev_b32 v30, 2, v28")
    k("v_or_b32 v29, v29, v30")
    k("v_mul_u32_u24 v28, 768, v28")
    for bi in range(8):
        k(f"v_add_u32 v30, {2*bi}, v3")
        k("v_xor_b32 v30, v30, v29")
        k(f"v_lshl_add_u32 v{9+bi}, v30, 4, v28")
    k("v_lshrrev_b32 v30, 4, v2")
    k(f"v_mul_u32_u24 v31, {WR}, v30")
    k(f"v_add_u32 v31, {2*HS}, v31")
    for bi in range(8):
        k(f"v_add_u32 v{56+bi}, v{9+bi}, v31")
    k(f"v_mul_u32_u24 v31, {HS}, v30")
    k("v_add_u32 v31, s8, v31")
    for bi in range(8):
        k(f"v_add_u32 v{9+bi}, v{9+bi}, v31")
    k("v_cmp_eq_u32 vcc, 0, v30")
    k(f"v_mov_b32 v31, {2*HS}")
    k(f"v_mov_b32 v28, {(-HS) & 0xffffffff}")
    k("s_nop 0")
    k("v_cndmask_b32 v17, v28, v31, vcc")
    k("v_cndmask_b32 v18, v31, v28, vcc")
    k("v_mov_b32 v19, v28")
    k("v_and_b32 v28, 15, v1")
    k("v_lshrrev_b32 v29, 2, v28")
    k("v_and_b32 v28, 3, v28")
    k("v_bfe_u32 v30, v1, 4, 1")
    k("v_lshlrev_b32 v30, 1, v30")
    k("v_lshrrev_b32 v31, 1, v28")
    k("v_add_u32 v30, v30, v31")
    k("v_and_b32 v28, 1, v28")
    k("v_lshlrev_b32 v28, 3, v28")
    k("v_add_u32 v28, s8, v28")
    for q in range(2):
        k(f"v_lshl_add_u32 v31, v3, 2, v29")
        if q: k("v_add_u32 v31, 8, v31")
        k("v_mul_u32_u24 v31, 768, v31")
        k("v_add_u32 v31, v31, v28")
        k(f"v_add_u32 v32, {2*q}, v3")
        k("v_and_b32 v32, 3, v32")
        k("v_lshl_or_b32 v32, v29, 2, v32")
        for c in range(4):
            k(f"s_add_u32 s12, s3, {c}")
            k("s_and_b32 s12, s12, 3")
            k("s_lshl_b32 s12, s12, 2")
            k("v_add_u32 v33, s12, v30")
            k("v_xor_b32 v33, v33, v32")
            k(f"v_lshl_add_u32 v{20+q*4+c}, v33, 4, v31")
    k("v_lshlrev_b32 v34, 4, v1")
    k("s_mul_i32 s58, s3, 73728")
    RQ = 60
    qi = [0]; qc = [0]
    def qslot(i): return (i % RQ) * 4
    def qissue(n=1):
        for _ in range(n):
            i = qi[0]
            if i >= 72 or i >= qc[0] + RQ: return
            s_, j = i // 3, i % 3
            off = (j * 24 + s_) * 1024
            k(f"s_add_u32 s59, s58, {off & ~4095}")
            k.vmem(f"buffer_load_dwordx4 {ar(qslot(i))}, v34, s[36:39], s59 offen offset:{off & 4095}{SC}", tag=f"q{i}")
            qi[0] += 1
    k("s_cmp_lg_u32 s3, 0")
    k(f"s_cbranch_scc1 {name}_np1")
    poll(k, f"{name}_p1", 1, 72)
    k.label(f"{name}_np1")
    k("s_barrier")
    k("s_cmp_eq_u32 s3, 0")
    k(f"s_cbranch_scc1 {name}_w0")
    qissue(RQ)
    k.vm = []; qi[0] = 0
    k(f"s_branch {name}_np2")
    k.label(f"{name}_w0")
    poll(k, f"{name}_p2", 2, 183)
    k.label(f"{name}_np2")
    k("s_barrier")
    k.rt(4)
    k.stamp()
    k("s_add_u32 s13, s11, {}".format(16*768))
    k("s_mov_b32 s12, 0")
    k(f"s_mov_b32 s9, {WR}")
    k("s_cmp_lg_u32 s3, 0")
    k(f"s_cbranch_scc1 {name}_qa")
    qissue(RQ)
    vm_q = list(k.vm)
    k(f"s_branch {name}_qd")
    k.label(f"{name}_qa")
    for w_ in range(1, 4):
        if w_ < 3:
            k(f"s_cmp_lg_u32 s3, {w_}")
            k(f"s_cbranch_scc1 {name}_qn{w_}")
        k.vm = list(vm_q)
        for p_ in range(8 * (w_ - 1), 8 * w_):
            hh, i = p_ // 12, p_ % 12
            dma_one(32, 13 if hh else 11, 9 if hh else 12, 2 * HS, "u", i)
        if w_ < 3:
            k(f"s_branch {name}_qd")
            k.label(f"{name}_qn{w_}")
    k.label(f"{name}_qd")
    hload(0); hload(1)
    k.vmwait("u")
    k("s_barrier")
    k.stamp()
    QA, QB, NQB = 64, 112, 8
    k.lg = []
    def qrd(s_): k.ds(f"ds_read_b128 {vr(QB+(s_%NQB)*4)}, v{56+(s_%8)} offset:{(s_//8)*256}", tag=f"b{s_}")
    for s_ in range(NQB - 1): qrd(s_)
    for s_ in range(24):
        if s_ + NQB - 1 < 24: qrd(s_ + NQB - 1)
        k.lgwait(f"b{s_}")
        for j in range(3):
            i = qc[0]
            k.vmwait(f"q{i}")
            k(f"{MFMA} {vr(QA+16*j,16)}, {ar(qslot(i))}, {vr(QB+(s_%NQB)*4)}, {vr(QA+16*j,16) if s_ else 0}")
            qc[0] += 1
            qissue(1)
    k("s_nop 15")
    for e in range(24):
        k(f"v_cvt_pk_bf16_f32 v{QB+e}, v{QA+2*e}, v{QA+2*e+1}")
    k("s_nop 1")
    for f_ in range(6):
        k(f"v_permlane32_swap_b32 v{QB+4*f_}, v{QB+4*f_+2}")
        k(f"v_permlane32_swap_b32 v{QB+4*f_+1}, v{QB+4*f_+3}")
    k("s_lshr_b32 s12, s3, 1")
    k(f"s_mul_i32 s12, s12, {WR}")
    k("s_and_b32 s9, s3, 1")
    k("s_mul_i32 s9, s9, 6144")
    k("s_add_u32 s12, s12, s9")
    k(f"s_add_u32 s12, s12, {2*WR + 2*HS}")
    k("v_add_u32 v35, s12, v34")
    k("s_nop 1")
    for f_ in range(6):
        k.ds(f"ds_write_b128 v35, {vr(QB+4*f_)} offset:{1024*f_}")
    k(f"v_add_u32 v35, {2*WR + 2*HS}, v34")
    k(f"v_add_u32 v36, {3*WR + 2*HS}, v34")
    k.lgwait_all()
    k("s_barrier")
    UF = 0
    for s_ in range(24):
        k.ds(f"ds_read_b128 {ar(UF+4*s_)}, v{35 + s_//12} offset:{(s_%12)*1024}")
    k.lgwait_all()
    k("s_barrier")
    k.stamp()
    vm_keep = [t for t in k.vm]
    HT = 96
    KR, NKR = 192, 8
    SA, PF = 32, 48
    OA = 64
    M_, L_ = 28, 29
    THR = 8.0
    wslot = [224 + 4 * i for i in range(8)] + [4 * i for i in range(24)] + [96 + 4 * i for i in range(24)]
    RW = len(wslot)
    k("v_lshlrev_b32 v63, 4, v1")
    k("s_mul_i32 s58, s3, 73728")
    wiss = [0]; wcons = [0]; wlim = [8]
    def wissue(n=1):
        for _ in range(n):
            i = wiss[0]
            if i >= 72: return
            if i < RW:
                if i >= wlim[0]: return
            elif i >= wcons[0] + RW: return
            s, j = i // 3, i % 3
            off = (j * 24 + s) * 1024
            k(f"s_add_u32 s59, s58, {off & ~4095}")
            k.vmem(f"buffer_load_dwordx4 {ar(wslot[i%RW])}, v63, s[48:51], s59 offen offset:{off & 4095}{SC}", tag=f"w{i}")
            wiss[0] += 1
    for tau in range(6):
        hB = 2 * tau + 1
        FINE = 'fine' in FL and tau in (2, 3, 4)
        if 'fine' in FL: k.off = not FINE
        if FINE: k.stamp()
        if tau == 0:
            k.vmwait(f"h{hB}")
        if ('coarse' not in FL or tau in (0, 3)) and ('fine' not in FL or FINE): k.stamp()
        if tau == 0: k.lg = []
        trl = []
        for sp in range(2):
            slot = ((2 * tau + sp) % 3) * HS
            for ct in range(12):
                for q in range(2):
                    d = HT + (ct * 2 + sp) * 4 + 2 * q
                    trl.append(f"ds_read_b64_tr_b16 a[{d}:{d+1}], v{20+q*4+(ct%4)} offset:{slot+(ct//4)*256}")
        def krd(s): k.ds(f"ds_read_b128 {ar(KR+(s%NKR)*4)}, v{9+(s%8)} offset:{(s//8)*256}", tag=f"k{s}")
        PRE = int(os.environ.get("PRE", "5"))
        if tau == 0:
            for s in range(PRE): krd(s)
        hr = 2 * tau + 2
        for s in range(24):
            if s + PRE < 24: krd(s + PRE)
            if s >= 2:
                for _ in range(2 if s < 23 else 4):
                    if trl: k.ds(trl.pop(0))
            k.lgwait(f"k{s}")
            k(f"{MFMA} {vr(SA,16)}, {ar(KR+(s%NKR)*4)}, {ar(UF+4*s)}, {vr(SA,16) if s else 0}")
            if hr < 12 and s % 2 == 1: hload_one(hr, s // 2)
            elif hr >= 12 and s % 3 == 2: wissue(1)
        while trl: k.ds(trl.pop(0))
        if FINE: k.stamp()
        if tau < 5:
            for bi in range(8):
                k(f"v_add_u32 v{9+bi}, v{9+bi}, v{17+(tau%3)}")
        else:
            k("s_nop 7")
        k.lgwait_all()
        if 'coarse' not in FL and ('fine' not in FL or FINE): k.stamp()
        hu = 2 * tau + 3
        ui = [0]
        def urgent(n=1):
            for _ in range(n):
                if hu < 12:
                    if ui[0] < 12:
                        hload_one(hu, ui[0]); ui[0] += 1
                else:
                    wissue(1)
        if tau == 5: wlim[0] = 32
        urgent(2)
        if True:
            k(f"s_add_u32 s60, s15, {tau}")
            k("s_cmp_eq_u32 s60, 5")
            k("s_cselect_b32 s12, 1, 0")
            k("s_cmp_eq_u32 s60, 11")
            k("s_cselect_b32 s12, 1, s12")
            k("s_cmp_lg_u32 s12, 0")
            k(f"s_cbranch_scc1 {name}_mask{tau}")
            k.label(f"{name}_nomask{tau}")
            k.ool_begin()
            k.label(f"{name}_mask{tau}")
            k("s_lshl_b32 s60, s3, 5")
            k(f"s_sub_u32 s60, {N - 640}, s60")
            k("v_lshlrev_b32 v30, 2, v3")
            k("v_mov_b32 v31, 0xff800000")
            for r in range(16):
                cr = 8 * (r >> 2) + (r & 3)
                k(f"v_add_u32 v56, {cr}, v30")
                k("v_cmp_gt_i32 vcc, s60, v56")
                k("s_nop 1")
                k(f"v_cndmask_b32 v{SA+r}, v31, v{SA+r}, vcc")
            k(f"s_branch {name}_nomask{tau}")
            k.ool_end()
        k(f"v_max3_f32 v30, v{SA}, v{SA+1}, v{SA+2}")
        for r in range(3, 15, 2):
            k(f"v_max3_f32 v30, v30, v{SA+r}, v{SA+r+1}")
        k(f"v_max_f32 v30, v30, v{SA+15}")
        xhalf(k, "v_max_f32", 30, 31)
        urgent(1)
        if tau == 0:
            k(f"v_max_f32 v{M_}, 0xf149f2ca, v30")
            k(f"v_mov_b32 v{L_}, 0")
        else:
            k(f"v_add_f32 v31, {hex(f2u(THR))}, v{M_}")
            k("v_cmp_gt_f32 vcc, v30, v31")
            k(f"s_cbranch_vccnz {name}_rs{tau}")
            k.label(f"{name}_nors{tau}")
            k.ool_begin()
            k.label(f"{name}_rs{tau}")
            k(f"v_max_f32 v30, v30, v{M_}")
            k(f"v_sub_f32 v31, v{M_}, v30")
            k("v_exp_f32 v31, v31")
            k(f"v_mov_b32 v{M_}, v30")
            k("s_nop 7")
            k(f"v_mul_f32 v{L_}, v{L_}, v31")
            for r in range(192):
                k(f"v_mul_f32 v{OA+r}, v{OA+r}, v31")
            k("s_nop 1")
            k(f"s_branch {name}_nors{tau}")
            k.ool_end()
        for r in range(8):
            k(f"v_sub_f32 v{SA+r}, v{SA+r}, v{M_}")
        for r in range(8):
            k(f"v_exp_f32 v{SA+r}, v{SA+r}")
        urgent(1)
        for p in range(4):
            k(f"v_cvt_pk_bf16_f32 v{PF+p}, v{SA+2*p}, v{SA+2*p+1}")
        k("s_nop 1")
        if FINE: k.stamp()
        fill = [f"v_sub_f32 v{SA+r}, v{SA+r}, v{M_}" for r in range(8, 16)]
        fill += [f"v_exp_f32 v{SA+r}, v{SA+r}" for r in range(8, 16)]
        fill += [f"v_add_f32 v30, v{SA}, v{SA+1}"]
        fill += [f"v_cvt_pk_bf16_f32 v{PF+p}, v{SA+2*p}, v{SA+2*p+1}" for p in range(4, 8)]
        fill += [f"v_add_f32 v31, v{SA+2}, v{SA+3}"]
        for r in range(4, 16, 2):
            fill += [f"v_add_f32 v30, v30, v{SA+r}", f"v_add_f32 v31, v31, v{SA+r+1}"]
        fill += [f"v_add_f32 v{L_}, v{L_}, v30", f"v_add_f32 v{L_}, v{L_}, v31"]
        n = 0
        for sp in range(2):
            for ct in range(12):
                c = vr(OA + 16 * ct, 16) if (tau or sp) else "0"
                k(f"{MFMA} {vr(OA+16*ct,16)}, {ar(HT+(ct*2+sp)*4)}, {vr(PF+4*sp)}, {c}")
                for _ in range(3 if n < 8 else 2):
                    if fill: k(fill.pop(0))
                if n % 2 == 1 or n >= 10: urgent(1)
                n += 1
                if n == 18 and tau < 5:
                    urgent(12)
                    k.vmwait(f"h{2*tau+3}")
                    k.lg = []
                    for s in range(PRE): krd(s)
        assert not fill
        urgent(12)
    wlim[0] = RW
    if 'fine' in FL: k.off = True
    k.stamp()
    xhalf(k, "v_add_f32", L_, 30)
    STB = 147456
    k("v_lshlrev_b32 v30, 3, v2")
    k(f"v_add_u32 v30, {STB}, v30")
    k("s_lshl_b32 s60, s3, 8")
    k("v_add_u32 v31, s60, v30")
    k.ds(f"ds_write_b64 v31, v[{M_}:{L_}]")
    k("v_add_u32 v31, s8, v63")
    k("s_nop 4")
    for cp in range(1, 4):
        for a_ in range(3):
            for e in range(4):
                k.ds(f"ds_write_b128 v31, {vr(OA+16*(4*a_+cp)+4*e)} offset:{(cp-1)*HS+a_*4096+e*1024}")
        wissue(3)
    for cp in range(4):
        k(f"s_sub_u32 s60, s3, {cp}")
        k("s_and_b32 s60, s60, 3")
        k("s_lshl_b32 s12, s60, 8")
        k(f"v_add_u32 v{56+cp}, s12, v30")
        if cp:
            k(f"s_mul_i32 s12, s60, {WR}")
            k(f"s_add_u32 s12, s12, {(cp-1)*HS}")
            k(f"v_add_u32 v{59+cp}, s12, v63")
    k.lgwait_all()
    k("s_barrier")
    for cp in range(4):
        k.ds(f"ds_read_b64 v[{32+2*cp}:{33+2*cp}], v{56+cp}", tag="st")
    for cp in range(1, 4):
        for a_ in range(3):
            for e in range(4):
                k.ds(f"ds_read_b128 {vr(OA+16*(4*a_+cp)+4*e)}, v{59+cp} offset:{a_*4096+e*1024}", tag=f"pr{cp}")
    k.lgwait("st")
    k("v_max3_f32 v40, v32, v34, v36")
    k("v_max_f32 v40, v40, v38")
    for cp in range(4):
        k(f"v_sub_f32 v{32+2*cp}, v{32+2*cp}, v40")
    for cp in range(4):
        k(f"v_exp_f32 v{32+2*cp}, v{32+2*cp}")
    k("s_nop 0")
    k("v_mul_f32 v42, v32, v33")
    k("v_fmac_f32 v42, v34, v35")
    k("v_fmac_f32 v42, v36, v37")
    k("v_fmac_f32 v42, v38, v39")
    k("v_rcp_f32 v42, v42")
    k("s_nop 0")
    for cp in range(4):
        k(f"v_mul_f32 v{44+cp}, v{32+2*cp}, v42")
    for a_ in range(3):
        for r in range(16):
            k(f"v_mul_f32 v{OA+64*a_+r}, v{OA+64*a_+r}, v44")
    wissue(4)
    for cp in range(1, 4):
        k.lgwait(f"pr{cp}")
        for a_ in range(3):
            for r in range(16):
                k(f"v_fmac_f32 v{OA+64*a_+r}, v{OA+16*(4*a_+cp)+r}, v{44+cp}")
        wissue(4)
    for a_ in range(3):
        for e in range(8):
            k(f"v_cvt_pk_bf16_f32 v{32+a_*8+e}, v{OA+64*a_+2*e}, v{OA+64*a_+2*e+1}")
    for a_ in range(3):
        for sp in range(2):
            k.ds(f"ds_write_b128 v60, {vr(32+a_*8+sp*4)} offset:{(a_*2+sp)*1024}")
    for wp in range(4):
        k(f"v_add_u32 v{56+wp}, {((wp-1)&3)*WR}, v63")
    k("v_lshrrev_b32 v4, 3, v1")
    k("s_lshl_b32 s60, s3, 3")
    k("v_add_u32 v4, s60, v4")
    k("v_and_b32 v5, 7, v1")
    k("s_lshl_b32 s60, s5, 5")
    k("v_add_u32 v6, s60, v4")
    k("v_mul_u32_u24 v6, 768, v6")
    k("v_lshl_add_u32 v6, v5, 4, v6")
    XR = 160
    for j in range(6):
        k.vmem(f"buffer_load_dwordx4 {vr(XR+4*j)}, v6, s[40:43], 0 offen offset:{128*j} sc1", tag="xr")
    k.lgwait_all()
    k("s_barrier")
    YA = 96
    BR, NBR = 64, 8
    k.stamp()
    k.lg = []
    def rd(s):
        ct, sp = s // 2, s % 2
        a_, wp = ct // 4, ct % 4
        k.ds(f"ds_read_b128 {vr(BR+(s%NBR)*4)}, v{56+wp} offset:{(a_*2+sp)*1024}", tag=f"b{s}")
    for s in range(NBR - 1): rd(s)
    wi = 0
    for s in range(24):
        if s + NBR - 1 < 24: rd(s + NBR - 1)
        k.lgwait(f"b{s}")
        for j in range(3):
            k.vmwait(f"w{wi}")
            k(f"{MFMA} {vr(YA+16*j,16)}, {ar(wslot[wi%RW])}, {vr(BR+(s%NBR)*4)}, {vr(YA+16*j,16) if s else 0}")
            wi += 1
            wcons[0] = wi
            wissue(1)
    k("s_nop 15")
    k.stamp()
    YB = 8192
    k(f"v_mul_u32_u24 v7, {PH}, v2")
    k("s_mul_i32 s60, s3, 192")
    k(f"s_add_u32 s60, s60, {YB}")
    k("v_lshl_add_u32 v7, v3, 3, v7")
    k("v_add_u32 v7, s60, v7")
    for e in range(24):
        k(f"v_cvt_pk_bf16_f32 v{64+e}, v{YA+2*e}, v{YA+2*e+1}")
    for jq in range(12):
        j, q = jq // 4, jq % 4
        k.ds(f"ds_write_b64 v7, v[{64+2*jq}:{65+2*jq}] offset:{64*j+16*q}")
    k(f"v_mul_u32_u24 v8, {PH}, v4")
    k("v_lshl_add_u32 v8, v5, 4, v8")
    k.lgwait_all()
    k("s_barrier")
    for j in range(6):
        k.ds(f"ds_read_b128 {vr(96+4*j)}, v8 offset:{YB+128*j}")
    k("s_mov_b32 s60, 0xffff0000")
    k.vmwait("xr")
    k.lgwait_all()
    for e in range(24):
        k(f"v_lshlrev_b32 v64, 16, v{96+e}")
        k(f"v_and_b32 v65, s60, v{96+e}")
        k(f"v_lshlrev_b32 v66, 16, v{XR+e}")
        k(f"v_and_b32 v67, s60, v{XR+e}")
        k("v_add_f32 v64, v64, v66")
        k("v_add_f32 v65, v65, v67")
        k(f"v_cvt_pk_bf16_f32 v{128+e}, v64, v65")
    for j in range(6):
        k.vmem(f"buffer_store_dwordx4 {vr(128+4*j)}, v6, s[44:47], 0 offen offset:{128*j}{OUTF}")


NREP = 8
NSH = 8
WS_SYNC = 24 * MiB
CSZ = NREP * NSH * 128
def spin(k, lab, srd, voff_reg, target, nsh):
    k("s_mov_b32 s61, 0")
    k.label(lab)
    k(f"buffer_load_dword v244, v{voff_reg}, s[{srd}:{srd+3}], 0 offen sc1")
    k("s_waitcnt vmcnt(0)")
    if nsh == 1:
        k("v_readfirstlane_b32 s63, v244")
        k("s_nop 3")
    else:
        k("v_readlane_b32 s63, v244, 0")
        for i in range(1, nsh):
            k(f"v_readlane_b32 s52, v244, {i}")
            k("s_nop 3")
            k("s_add_u32 s63, s63, s52")
    k(f"s_cmp_ge_u32 s63, {target}")
    k(f"s_cbranch_scc1 {lab}_done")
    k(f"s_sleep {SLEEP}")
    k("s_add_u32 s61, s61, 1")
    k("s_cmp_lt_u32 s61, 0x200000")
    k(f"s_cbranch_scc1 {lab}")
    k.label(f"{lab}_done")

def zcheck(k, lab):
    k("s_cmp_lg_u32 s53, 0")
    k(f"s_cbranch_scc1 {lab}_skip")
    k("v_mov_b32 v245, 0")
    spin(k, lab, 64, 245, 1, 1)
    k("s_mov_b32 s53, 1")
    k.label(f"{lab}_skip")

def poll(k, lab, cidx, target):
    zcheck(k, lab + "z")
    k(f"s_and_b32 s63, s2, {NREP-1}")
    k(f"s_mul_i32 s63, s63, {NSH*128}")
    k(f"s_add_u32 s63, s63, {cidx*CSZ}")
    k(f"v_and_b32 v245, {NSH-1}, v1")
    k("v_lshlrev_b32 v245, 7, v245")
    k("v_add_u32 v245, s63, v245")
    spin(k, lab, 80, 245, target, NSH)

def signal(k, lab, cidx):
    k("s_waitcnt vmcnt(0)")
    k("s_barrier")
    k("s_cmp_lg_u32 s3, 0")
    k(f"s_cbranch_scc1 {lab}")
    zcheck(k, lab + "z")
    k("v_mov_b32 v244, 1")
    k("s_lshr_b32 s63, s2, 3")
    k(f"s_and_b32 s63, s63, {NSH-1}")
    k("s_lshl_b32 s63, s63, 7")
    if cidx is None:
        k(f"s_mul_i32 s52, s56, {CSZ}")
        k("s_add_u32 s63, s63, s52")
    else:
        k(f"s_add_u32 s63, s63, {cidx*CSZ}")
    k(f"v_mul_u32_u24 v245, {NSH*128}, v1")
    k("v_add_u32 v245, s63, v245")
    k("s_mov_b64 s[68:69], exec")
    k(f"s_mov_b64 exec, {(1<<NREP)-1}")
    k("buffer_atomic_add v244, v245, s[80:83], 0 offen sc1")
    k("s_mov_b64 exec, s[68:69]")
    k.label(lab)

def gen_main():
    k = K(); name = "standalone__video_timesformer__vision_kernel"
    prologue(k, name, 255)
    k.srd(64, 28, 0, 256)
    k.srd(80, 30, WS_SYNC, 3 * CSZ)
    k("s_mov_b32 s53, 0")
    k(f"s_cmp_lg_u32 s2, {ZWG}")
    k("s_cbranch_scc1 L_noz")
    k("s_cmp_lg_u32 s3, 0")
    k("s_cbranch_scc1 L_noz")
    k("v_mov_b32 v244, 0")
    k("v_lshlrev_b32 v245, 7, v1")
    for c in range(3):
        k(f"s_mov_b32 s63, {c*CSZ}")
        k("buffer_store_dword v244, v245, s[80:83], s63 offen sc1")
    k("s_waitcnt vmcnt(0)")
    k("v_mov_b32 v244, 1")
    k("v_mov_b32 v245, 0")
    k("buffer_store_dword v244, v245, s[64:67], 0 offen sc1")
    k("s_mov_b32 s53, 1")
    k.label("L_noz")
    for i in range(8):
        if 'rt' in FL: k(f"s_mov_b32 s{90+i}, 0")
    k.rt(0)
    k("s_cmp_ge_u32 s2, 72")
    k(f"s_cbranch_scc1 L_cons")
    k(f"s_mul_hi_u32 s54, s2, {((1<<32)+35)//36}")
    k("s_mul_i32 s55, s54, 36")
    k("s_sub_u32 s55, s2, s55")
    k("s_mov_b32 s56, 0")
    k.label("LF_loop")
    k("s_mov_b32 s4, s54")
    k("s_mov_b32 s5, s55")
    fold(k, "LF0")
    k.rt0(1)
    signal(k, "LF0_sig", None)
    k.rt0(2)
    k("s_add_u32 s54, s54, 2")
    k("s_add_u32 s56, s56, 1")
    k("s_cmp_lt_u32 s56, 2")
    k("s_cbranch_scc1 LF_loop")
    k.rt(3)
    k("s_branch L_ph2")
    k.label("L_cons")
    k("s_sub_u32 s62, s2, 72")
    k.ph = 1
    phase1(k, "L1")
    k.stamp()
    k.rt(2)
    signal(k, "L1_sig", 2)
    k.rt(3)
    k.stamp()
    k.label("L_ph2")
    k("s_and_b32 s4, s2, 7")
    k("s_lshr_b32 s5, s2, 3")
    k("s_cmp_eq_u32 s4, 0")
    k("s_cselect_b32 s7, 21, 20")
    k("s_cmp_ge_u32 s5, s7")
    k(f"s_cbranch_scc1 L_fin")
    k("s_mul_i32 s6, s4, 20")
    k("s_min_u32 s7, s4, 1")
    k("s_add_u32 s6, s6, s7")
    k("s_add_u32 s6, s6, s5")
    k.ph = 2
    if 'fine' in FL: k.off = True
    phase2(k, "L2")
    if 'stamp' in FL:
        k.vmwait_all()
        k.stamp()
        k.dump_stamps(100)
    k.rt(5)
    k.label("L_fin")
    k.dump_rt()
    k.label(f"{name}_end")
    k("s_endpgm")
    return k.text()

HEADER = """; TimeSformer divided space-time attention block, gfx950.  Generated by gen3.py (own generator).
; One persistent launch: workgroups 0..71 fold Wq Wk^T / Wv Wo into MFMA fragment order; workgroups 72..254 do
; @launch grid=(255,1,1) block=(256,1,1) lds=148480
.amdgcn_target "amdgcn-amd-amdhsa--gfx950"
.text
"""
def desc(name, vgpr, accum):
    return f""".amdhsa_kernel {name}
  .amdhsa_next_free_vgpr {vgpr}
  .amdhsa_next_free_sgpr 102
  .amdhsa_accum_offset {accum}
  .amdhsa_group_segment_fixed_size 0
  .amdhsa_kernarg_size 64
  .amdhsa_user_sgpr_count 2
  .amdhsa_user_sgpr_kernarg_segment_ptr 1
  .amdhsa_system_sgpr_workgroup_id_x 1
  .amdhsa_float_denorm_mode_32 3
.end_amdhsa_kernel
"""
def main():
    name = "standalone__video_timesformer__vision_kernel"
    out = HEADER + f".globl {name}\n.p2align 8\n.type {name},@function\n" + gen_main()
    out += '.section .rodata,"a"\n.p2align 6\n' + desc(name, 512, 256)
    path = sys.argv[1] if len(sys.argv) > 1 else "standalone__video_timesformer__vision.s"
    open(path, "w").write(out)
    print("wrote", path, len(out))
if __name__ == "__main__":
    main()
```

```python
import sys, os, struct
FL = os.environ.get('GENFLAGS', '').split(',')
T, N, C = 7, 729, 384
X_BYTES = T * N * C * 2
FR_BYTES = N * C * 2
WQKV_BYTES = C * 3 * C * 2
WO_BYTES = C * C * 2
MiB = 1 << 20
WS_FQT, WS_FVT, WS_FQS, WS_FVS = 0, 1 * MiB, 2 * MiB, 3 * MiB
WS_X1, WS_H2, WS_U2 = 4 * MiB, 9 * MiB, 14 * MiB
BIG = 0x7f000000
OUTF = os.environ.get('OUTF', '')
SC = '' if 'nosc' in FL else ' sc1'
ZWG = int(os.environ.get("ZWG", "72"))
SLEEP = int(os.environ.get('SLEEP', '4'))
LOG2E = 1.4426950408889634
QSCALE = (C ** -0.5) * LOG2E
def f2u(f): return struct.unpack('<I', struct.pack('<f', f))[0]

class K:
    def __init__(self):
        self.L = []; self.vm = []; self.lg = []
    def __call__(self, s): self.L.append("    " + s)
    def label(self, l): self.L.append(l + ":")
    def vmem(self, s, tag=None):
        self(s); self.vm.append(tag)
    def vmwait(self, tag):
        idx = max(i for i, t in enumerate(self.vm) if t == tag)
        n = len(self.vm) - 1 - idx
        self(f"s_waitcnt vmcnt({min(n,63)})")
    def vmwait_all(self): self("s_waitcnt vmcnt(0)")
    def ds(self, s, tag=None):
        self(s); self.lg.append(tag)
    def lgwait(self, tag):
        idx = max(i for i, t in enumerate(self.lg) if t == tag)
        n = len(self.lg) - 1 - idx
        self(f"s_waitcnt lgkmcnt({min(n,15)})")
    def lgwait_all(self): self("s_waitcnt lgkmcnt(0)")
    def srd(self, d, lo, off, size):
        if off:
            self(f"s_add_u32 s{d}, s{lo}, {off}")
            self(f"s_addc_u32 s{d+1}, s{lo+1}, 0")
        else:
            self(f"s_mov_b32 s{d}, s{lo}")
            self(f"s_mov_b32 s{d+1}, s{lo+1}")
        self(f"s_mov_b32 s{d+2}, {size}")
        self(f"s_mov_b32 s{d+3}, 0x00020000")
    def srd_s(self, d, lo, soff, size):
        self(f"s_add_u32 s{d}, s{lo}, s{soff}")
        self(f"s_addc_u32 s{d+1}, s{lo+1}, 0")
        self(f"s_mov_b32 s{d+2}, {size}")
        self(f"s_mov_b32 s{d+3}, 0x00020000")
    ph = 0
    off = False
    def stamp(self):
        if 'stamp' not in FL or self.off: return
        if f"st{self.ph}" not in FL: return
        n = getattr(self, 'nst', 0)
        if n >= 18: return
        self("s_memtime s[70:71]")
        self("s_waitcnt lgkmcnt(0)")
        self(f"s_mov_b32 s{84+n}, s70")
        self.nst = n + 1
    def rt(self, idx):
        if 'rt' not in FL: return
        self("s_memrealtime s[70:71]")
        self("s_waitcnt lgkmcnt(0)")
        self(f"s_mov_b32 s{90+idx}, s70")
    def rt0(self, idx):
        if 'rt' not in FL: return
        lab = f"L_rt0_{len(self.L)}"
        self("s_cmp_lg_u32 s56, 0")
        self(f"s_cbranch_scc1 {lab}")
        self.rt(idx)
        self.label(lab)
    def dump_rt(self):
        if 'rt' not in FL: return
        lab = f"L_nort_{len(self.L)}"
        self("s_cmp_lg_u32 s3, 0")
        self(f"s_cbranch_scc1 {lab}")
        if 'rtdbg' in FL:
            for wg, base in ((100, 4), (3, 36)):
                l2 = f"L_rd_{wg}"
                self(f"s_cmp_lg_u32 s2, {wg}")
                self(f"s_cbranch_scc1 {l2}")
                self("v_mov_b32 v65, 0")
                for i in range(1, 8):
                    self(f"s_sub_u32 s70, s{90+i}, s90")
                    self("v_mov_b32 v64, s70")
                    self(f"buffer_store_dword v64, v65, s[64:67], 0 offen offset:{base+4*(i-1)}")
                self.label(l2)
        self.srd(84, 30, 32 * MiB, 65536)
        self("s_lshl_b32 s70, s2, 5")
        self("v_mov_b32 v65, s70")
        for i in range(8):
            self(f"v_mov_b32 v64, s{90+i}")
            self(f"buffer_store_dword v64, v65, s[84:87], 0 offen offset:{4*i}")
        self.label(lab)
    def dump_stamps(self, wg=0):
        if 'stamp' not in FL: return
        lab = f"L_nodump_{id(self)}"
        self(f"s_cmp_lg_u32 s2, {wg}")
        self(f"s_cbranch_scc1 {lab}")
        self("s_cmp_lg_u32 s3, 0")
        self(f"s_cbranch_scc1 {lab}")
        self("s_load_dwordx2 s[64:65], s[0:1], 48")
        self("s_waitcnt lgkmcnt(0)")
        self("s_mov_b32 s66, 256")
        self("s_mov_b32 s67, 0x00020000")
        self("v_mov_b32 v65, 0")
        for i in range(self.nst):
            self(f"v_mov_b32 v64, s{84+i}")
            self(f"buffer_store_dword v64, v65, s[64:67], 0 offen offset:{4*i+4}")
        self.label(lab)
    def ool_begin(self):
        self._save = self.L; self.L = []
    def ool_end(self):
        if not hasattr(self, 'OOL'): self.OOL = []
        self.OOL += self.L; self.L = self._save
    def text(self): return "\n".join(self.L + getattr(self, 'OOL', [])) + "\n"

def vr(b, n=4): return f"v[{b}:{b+n-1}]"
def ar(b, n=4): return f"a[{b}:{b+n-1}]"
MFMA = "v_mfma_f32_32x32x16_bf16"

def prologue(k, name, ngrid):
    k.label(name)
    k(f"s_cmp_ge_u32 s2, {ngrid}")
    k(f"s_cbranch_scc1 {name}_end")
    k("s_load_dwordx16 s[16:31], s[0:1], 0")
    k("v_and_b32 v1, 63, v0")
    k("v_lshrrev_b32 v4, 6, v0")
    k("v_and_b32 v2, 31, v1")
    k("v_readfirstlane_b32 s3, v4")
    k("v_lshrrev_b32 v3, 5, v1")
    k("s_waitcnt lgkmcnt(0)")

def bf16r(k, dst, src):
    k(f"v_cvt_pk_bf16_f32 v{dst}, v{src}, v{src}")
    k(f"v_lshlrev_b32 v{dst}, 16, v{dst}")

def ln_stats(k, s1, s2, m, rinv, t):
    k(f"v_mul_f32 v{s1}, {hex(f2u(1.0/C))}, v{s1}")
    k(f"v_mul_f32 v{s2}, {hex(f2u(1.0/C))}, v{s2}")
    k(f"v_fma_f32 v{s2}, -v{s1}, v{s1}, v{s2}")
    k(f"v_max_f32 v{s2}, 0, v{s2}")
    bf16r(k, m, s1)
    bf16r(k, t, s2)
    k(f"v_add_f32 v{t}, {hex(f2u(1e-5))}, v{t}")
    bf16r(k, t, t)
    k(f"v_sqrt_f32 v{t}, v{t}")
    k("s_nop 0")
    bf16r(k, t, t)
    k(f"v_rcp_f32 v{rinv}, v{t}")
    k("s_nop 0")

def xhalf(k, op, a, tmp):
    k(f"v_mov_b32 v{tmp}, v{a}")
    k("s_nop 1")
    k(f"v_permlane32_swap_b32 v{a}, v{tmp}")
    k("s_nop 1")
    k(f"{op} v{a}, v{a}, v{tmp}")

PH = 784

def fold(k, name):
    k.vm = []; k.lg = []
    k("s_mul_hi_u32 s6, s5, 0x2AAAAAAB")
    k("s_mul_i32 s7, s6, 6")
    k("s_sub_u32 s7, s5, s7")
    k("s_cmp_ge_u32 s4, 2")
    k("s_cselect_b32 s8, s22, s18")
    k("s_cselect_b32 s9, s23, s19")
    k("s_cselect_b32 s10, s24, s20")
    k("s_cselect_b32 s11, s25, s21")
    k("s_mov_b32 s32, s8"); k("s_mov_b32 s33, s9"); k(f"s_mov_b32 s34, {WQKV_BYTES}"); k("s_mov_b32 s35, 0x00020000")
    k("s_mov_b32 s36, s10"); k("s_mov_b32 s37, s11"); k(f"s_mov_b32 s38, {WO_BYTES}"); k("s_mov_b32 s39, 0x00020000")
    k("s_lshl_b32 s8, s4, 20")
    k.srd_s(40, 30, 8, WO_BYTES)
    k("s_and_b32 s12, s4, 1")
    AB, BBASE = 0, 64 * PH
    k("v_lshlrev_b32 v5, 4, v1")
    k("s_lshl_b32 s13, s6, 6")
    k("s_lshl_b32 s14, s3, 4")
    k("s_add_u32 s13, s13, s14")
    k("s_mul_i32 s13, s13, 2304")
    k("s_mul_i32 s15, s12, 1536")
    k("s_add_u32 s13, s13, s15")
    k(f"s_mul_i32 s14, s14, {PH}")
    k("v_cmp_gt_u32 vcc, 48, v1")
    k("s_and_saveexec_b64 s[44:45], vcc")
    for r in range(16):
        k(f"s_add_u32 m0, s14, {AB + r*PH}")
        k(f"s_add_u32 s15, s13, {r*2304}")
        k("s_nop 0")
        k.vmem("buffer_load_dwordx4 v5, s[32:35], s15 offen lds")
    k("s_mov_b64 exec, s[44:45]")
    k(f"v_mul_u32_u24 v6, {PH}, v2")
    k("v_lshl_add_u32 v6, v3, 4, v6")
    k("s_lshr_b32 s46, s3, 1")
    k("s_and_b32 s47, s3, 1")
    k(f"s_mul_i32 s15, s46, {32*PH}")
    k("v_add_u32 v7, s15, v6")
    k("s_cmp_eq_u32 s12, 1")
    k(f"s_cbranch_scc1 {name}_vo")
    k("s_lshl_b32 s13, s7, 6")
    k("s_lshl_b32 s14, s3, 4")
    k("s_add_u32 s13, s13, s14")
    k("s_mul_i32 s13, s13, 2304")
    k("s_add_u32 s13, s13, 768")
    k(f"s_mul_i32 s14, s14, {PH}")
    k("s_and_saveexec_b64 s[44:45], vcc")
    for r in range(16):
        k(f"s_add_u32 m0, s14, {BBASE + r*PH}")
        k(f"s_add_u32 s15, s13, {r*2304}")
        k("s_nop 0")
        k.vmem("buffer_load_dwordx4 v5, s[32:35], s15 offen lds")
    k("s_mov_b64 exec, s[44:45]")
    k(f"s_mul_i32 s15, s47, {32*PH}")
    k(f"s_add_u32 s15, s15, {BBASE}")
    k("v_add_u32 v8, s15, v6")
    k("s_cmp_lg_u32 s3, 0")
    k(f"s_cbranch_scc1 {name}_nz0")
    zcheck(k, f"{name}_zc0")
    k.label(f"{name}_nz0")
    k.rt0(5)
    k.vmwait_all()
    k("s_barrier")
    k.rt0(6)
    ACC = 16
    for s in range(24):
        k.ds(f"ds_read_b128 {vr(32+(s%8)*8)}, v7 offset:{32*s}", tag=f"f{s}")
        k.ds(f"ds_read_b128 {vr(36+(s%8)*8)}, v8 offset:{32*s}", tag=f"f{s}")
        if s >= 6:
            s0 = s - 6
            k.lgwait(f"f{s0}")
            k(f"{MFMA} {vr(ACC,16)}, {vr(32+(s0%8)*8)}, {vr(36+(s0%8)*8)}, {vr(ACC,16) if s0 else 0}")
    for s0 in range(18, 24):
        k.lgwait(f"f{s0}")
        k(f"{MFMA} {vr(ACC,16)}, {vr(32+(s0%8)*8)}, {vr(36+(s0%8)*8)}, {vr(ACC,16)}")
    k("s_nop 15")
    for r in range(16):
        k(f"v_mul_f32 v{ACC+r}, {hex(f2u(QSCALE))}, v{ACC+r}")
    for e in range(8):
        k(f"v_cvt_pk_bf16_f32 v{32+e}, v{ACC+2*e}, v{ACC+2*e+1}")
    k("s_nop 1")
    for sp in range(2):
        k(f"v_permlane32_swap_b32 v{32+4*sp}, v{34+4*sp}")
        k(f"v_permlane32_swap_b32 v{33+4*sp}, v{35+4*sp}")
    k(f"s_branch {name}_store")
    k.label(f"{name}_vo")
    k("v_lshrrev_b32 v8, 3, v1")
    k("v_and_b32 v9, 7, v1")
    k("v_mul_u32_u24 v8, 768, v8")
    k("v_lshl_add_u32 v8, v9, 4, v8")
    k("s_lshl_b32 s13, s7, 7")
    k("s_mul_i32 s14, s3, 96*768")
    k("s_add_u32 s13, s13, s14")
    k("s_mul_i32 s14, s3, 96*128")
    for i in range(12):
        k(f"s_add_u32 m0, s14, {BBASE + i*1024}")
        k(f"s_add_u32 s15, s13, {i*8*768}")
        k("s_nop 0")
        k.vmem("buffer_load_dwordx4 v8, s[36:39], s15 offen lds")
    k("v_and_b32 v4, 15, v1")
    k("v_lshrrev_b32 v9, 2, v4")
    k("v_and_b32 v4, 3, v4")
    k("v_lshl_add_u32 v9, v3, 3, v9")
    k("v_lshlrev_b32 v9, 7, v9")
    k("v_lshl_add_u32 v9, v4, 3, v9")
    k("v_bfe_u32 v4, v1, 4, 1")
    k("v_lshl_add_u32 v9, v4, 5, v9")
    k("s_lshl_b32 s15, s47, 6")
    k(f"s_add_u32 s15, s15, {BBASE}")
    k("v_add_u32 v9, s15, v9")
    k("s_cmp_lg_u32 s3, 0")
    k(f"s_cbranch_scc1 {name}_nz1")
    zcheck(k, f"{name}_zc1")
    k.label(f"{name}_nz1")
    k.rt0(5)
    k.vmwait_all()
    k("s_barrier")
    k.rt0(6)
    k.lg = []
    for s in range(24):
        k.ds(f"ds_read_b128 {vr(32+(s%8)*8)}, v7 offset:{32*s}", tag=f"f{s}")
        for q in range(2):
            k.ds(f"ds_read_b64_tr_b16 v[{36+(s%8)*8+2*q}:{37+(s%8)*8+2*q}], v9 offset:{(16*s+4*q)*128}", tag=f"f{s}")
        if s >= 4:
            s0 = s - 4
            k.lgwait(f"f{s0}")
            k(f"{MFMA} {vr(ACC,16)}, {vr(32+(s0%8)*8)}, {vr(36+(s0%8)*8)}, {vr(ACC,16) if s0 else 0}")
    for s0 in range(20, 24):
        k.lgwait(f"f{s0}")
        k(f"{MFMA} {vr(ACC,16)}, {vr(32+(s0%8)*8)}, {vr(36+(s0%8)*8)}, {vr(ACC,16)}")
    k("s_nop 15")
    for e in range(8):
        k(f"v_cvt_pk_bf16_f32 v{32+e}, v{ACC+2*e}, v{ACC+2*e+1}")
    k.label(f"{name}_store")
    k.rt0(7)
    k("s_lshl_b32 s13, s7, 1")
    k("s_add_u32 s13, s13, s47")
    k("s_mul_i32 s13, s13, 24")
    k("s_lshl_b32 s14, s6, 1")
    k("s_add_u32 s14, s14, s46")
    k("s_lshl_b32 s14, s14, 1")
    k("s_add_u32 s13, s13, s14")
    k("s_lshl_b32 s13, s13, 10")
    k("s_nop 1")
    k.vmem(f"buffer_store_dwordx4 {vr(32)}, v5, s[40:43], s13 offen sc1")
    k.vmem(f"buffer_store_dwordx4 {vr(36)}, v5, s[40:43], s13 offen offset:1024 sc1")

def phase1(k, name):
    k.vm = []; k.lg = []
    HB, XB, SX, YX, ST = 0, 25088, 50176, 66560, 91136
    k.stamp()
    UB = SX
    k.srd(32, 16, 0, X_BYTES)
    if 'winput' in FL:
        k.srd(36, 18, 0, WQKV_BYTES)
    else:
        k.srd(36, 30, 0, 4 * MiB)
    k.srd(40, 30, WS_X1, X_BYTES)
    k.srd(44, 30, WS_H2, X_BYTES)
    k.srd(48, 30, WS_U2, X_BYTES)
    k("v_lshrrev_b32 v4, 3, v1")
    k("s_lshl_b32 s4, s3, 3")
    k("v_add_u32 v4, s4, v4")
    k("v_and_b32 v5, 7, v1")
    k("v_mul_u32_u24 v6, 9363, v4")
    k("v_lshrrev_b32 v6, 16, v6")
    k("v_mul_u32_u24 v7, 7, v6")
    k("v_sub_u32 v7, v4, v7")
    k("s_lshl_b32 s5, s62, 2")
    k("v_add_u32 v6, s5, v6")
    k("v_mul_u32_u24 v7, 729, v7")
    k("v_add_u32 v7, v7, v6")
    k("v_mul_u32_u24 v7, 768, v7")
    k("v_lshl_add_u32 v7, v5, 4, v7")
    k(f"v_cmp_gt_u32 vcc, {N}, v6")
    k("s_mov_b64 s[12:13], vcc")
    k("v_cmp_gt_u32 vcc, 28, v4")
    k(f"v_mov_b32 v8, {hex(BIG)}")
    k("s_nop 1")
    k("s_and_b64 vcc, vcc, s[12:13]")
    k("s_nop 1")
    k("v_cndmask_b32 v8, v8, v7, vcc")
    XA, HA = 16, 40
    for j in range(6):
        k.vmem(f"buffer_load_dwordx4 {vr(XA+4*j)}, v8, s[32:35], 0 offen offset:{128*j}", tag="x")
    k(f"v_mul_u32_u24 v9, {PH}, v4")
    k("v_lshl_add_u32 v9, v5, 4, v9")
    R = 60
    k("v_lshlrev_b32 v10, 4, v1")
    k("s_mul_i32 s6, s3, 73728")
    bases = [WS_FQT, WS_FVT, WS_FQS] if 'winput' not in FL else [0, 294912, 589824]
    issued = [0]
    wgate = [0]
    wi = [0]
    def wissue(n=1):
        for _ in range(n):
            i = issued[0]
            if i >= 216 or i >= wi[0] + R or i >= wgate[0]: return
            mi, r = i // 72, i % 72
            s, j = r // 3, r % 3
            off = bases[mi] + (j * 24 + s) * 1024
            k(f"s_add_u32 s7, s6, {off & ~4095}")
            k.vmem(f"buffer_load_dwordx4 {ar((i % R)*4)}, v10, s[36:39], s7 offen offset:{off & 4095}{SC}", tag=f"w{i}")
            issued[0] += 1
    wissue(10)
    k("s_mov_b32 s10, 0x3f803f80")
    k("s_mov_b32 s11, 0xffff0000")
    for i in range(4): k(f"v_mov_b32 v{64+i}, 0")
    k.vmwait("x")
    k.stamp()
    for i in range(24):
        k(f"v_dot2_f32_bf16 v{64+(i&1)}, v{XA+i}, s10, v{64+(i&1)}")
        k(f"v_dot2_f32_bf16 v{66+(i&1)}, v{XA+i}, v{XA+i}, v{66+(i&1)}")
        if i % 2 == 1: wissue(1)
    for j in range(6):
        k.ds(f"ds_write_b128 v9, {vr(XA+4*j)} offset:{XB+128*j}")
    k("v_add_f32 v64, v64, v65")
    k("v_add_f32 v66, v66, v67")
    def red8(rs):
        for ctl in ("quad_perm:[1,0,3,2]", "quad_perm:[2,3,0,1]", "row_half_mirror"):
            k("s_nop 1")
            for r in rs:
                k(f"v_add_f32_dpp v{r}, v{r}, v{r} {ctl} row_mask:0xf bank_mask:0xf")
    red8([64, 66])
    ln_stats(k, 64, 66, 68, 69, 70)
    k("v_mul_f32 v68, v68, v69")
    for i in range(24):
        k(f"v_lshlrev_b32 v72, 16, v{XA+i}")
        k(f"v_and_b32 v73, s11, v{XA+i}")
        k(f"v_fma_f32 v72, v72, v69, -v68")
        k(f"v_fma_f32 v73, v73, v69, -v68")
        k(f"v_cvt_pk_bf16_f32 v{HA+i}, v72, v73")
        wissue(1)
    for j in range(6):
        k.ds(f"ds_write_b128 v9, {vr(HA+4*j)} offset:{HB+128*j}")
    wissue(8)
    k(f"v_mul_u32_u24 v11, {PH}, v2")
    k("v_lshl_add_u32 v12, v3, 4, v11")
    k("s_mul_i32 s8, s3, 192")
    k("v_lshl_add_u32 v13, v3, 3, v11")
    k("v_add_u32 v13, s8, v13")
    k.lgwait_all()
    k("s_cmp_lg_u32 s3, 0")
    k(f"s_cbranch_scc1 {name}_np0")
    poll(k, f"{name}_p0", 0, 72)
    k.label(f"{name}_np0")
    k("s_barrier")
    k.rt(1)
    k.stamp()
    k.vm = []
    wgate[0] = 144
    wissue(8)
    k("s_lshr_b32 s9, s62, 3")
    k("s_lshl_b32 s9, s9, 2")
    k("s_add_u32 s9, s9, s3")
    k("s_lshl_b32 s52, s9, 10")
    for j in range(7):
        k(f"s_add_u32 s9, s52, {92*1024*j}")
        k(f"s_cmp_ge_u32 s9, {288*1024}")
        k(f"s_cselect_b32 s7, {MiB - 288*1024}, 0")
        k("s_add_u32 s9, s9, s7")
        k.vmem(f"buffer_load_dwordx4 {ar(240+4*(j&3))}, v10, s[36:39], s9 offen sc1")
    wissue(12)
    BR, NBR = 64, 8
    ACC = 96
    PK = 144
    def gemm(baddr, boff, bstride):
        k.lg = []
        def rd(s): k.ds(f"ds_read_b128 {vr(BR+(s%NBR)*4)}, v{baddr} offset:{boff+s*bstride}", tag=f"b{s}")
        for s in range(NBR - 1): rd(s)
        for s in range(24):
            if s + NBR - 1 < 24: rd(s + NBR - 1)
            k.lgwait(f"b{s}")
            for j in range(3):
                i = wi[0]
                if 'now' not in FL: k.vmwait(f"w{i}")
                if 'nomf' not in FL: k(f"{MFMA} {vr(ACC+16*j,16)}, {ar((i%R)*4)}, {vr(BR+(s%NBR)*4)}, {vr(ACC+16*j,16) if s else 0}")
                wi[0] += 1
                if (i & 1) or issued[0] < wi[0] + 40: wissue(1)
        k("s_nop 15")
    k.stamp()
    gemm(12, HB, 32)
    k.stamp()
    for s in range(6):
        k.ds(f"ds_read2_b64 {vr(BR+4*s)}, v13 offset0:{4*s} offset1:{4*s+2}", tag=f"c{s}")
    for e in range(24):
        k(f"v_cvt_pk_bf16_f32 v{PK+e}, v{ACC+2*e}, v{ACC+2*e+1}")
        if e % 8 == 7: wissue(1)
    SA = 168
    k.lgwait_all()
    k("s_nop 1")
    for s in range(6):
        k(f"{MFMA} {vr(SA,16)}, {vr(BR+4*s)}, {vr(PK+4*s)}, {vr(SA,16) if s else 0}")
    k("s_lshl_b32 s9, s3, 12")
    k(f"s_add_u32 s9, s9, {SX}")
    k("v_add_u32 v14, s9, v10")
    k(f"v_add_u32 v15, {SX}, v10")
    k("s_nop 15")
    for e in range(4):
        k.ds(f"ds_write_b128 v14, {vr(SA+4*e)} offset:{1024*e}")
    k.lgwait_all()
    k("s_barrier")
    SS = 184
    for w in range(4):
        for e in range(4):
            k.ds(f"ds_read_b128 {vr(SS+16*w+4*e)}, v15 offset:{4096*w+1024*e}")
    k("v_mul_u32_u24 v4, 9363, v2")
    k("v_lshrrev_b32 v4, 16, v4")
    k("v_mul_u32_u24 v4, 7, v4")
    k("v_lshlrev_b32 v5, 2, v3")
    k("v_sub_u32 v4, v4, v5")
    k("v_mov_b32 v5, 0xff800000")
    k.lgwait_all()
    for r in range(16):
        k(f"v_add_f32 v{SS+r}, v{SS+r}, v{SS+16+r}")
        k(f"v_add_f32 v{SS+32+r}, v{SS+32+r}, v{SS+48+r}")
        if r % 4 == 3: wissue(1)
    for r in range(16):
        k(f"v_add_f32 v{SA+r}, v{SS+r}, v{SS+32+r}")
        if r % 8 == 7: wissue(1)
    k.stamp()
    for r in range(16):
        cr = 8 * (r >> 2) + (r & 3)
        k(f"v_sub_u32 v6, {cr}, v4")
        k("v_cmp_gt_u32 vcc, 7, v6")
        k("s_nop 1")
        k(f"v_cndmask_b32 v{SA+r}, v5, v{SA+r}, vcc")
        if r % 2 == 1: wissue(1)
    k(f"v_max3_f32 v6, v{SA}, v{SA+1}, v{SA+2}")
    for r in range(3, 15, 2):
        k(f"v_max3_f32 v6, v6, v{SA+r}, v{SA+r+1}")
    k(f"v_max_f32 v6, v6, v{SA+15}")
    xhalf(k, "v_max_f32", 6, 7)
    k("v_max_f32 v6, 0xff7fffff, v6")
    for r in range(16):
        k(f"v_sub_f32 v{SA+r}, v{SA+r}, v6")
        if r % 8 == 7: wissue(1)
    for r in range(16):
        k(f"v_exp_f32 v{SA+r}, v{SA+r}")
        if r % 4 == 3: wissue(1)
    k("s_nop 0")
    k(f"v_add_f32 v6, v{SA}, v{SA+1}")
    for r in range(2, 16):
        k(f"v_add_f32 v6, v6, v{SA+r}")
        if r % 8 == 7: wissue(1)
    xhalf(k, "v_add_f32", 6, 7)
    k("v_rcp_f32 v6, v6")
    k("s_nop 0")
    PF = 248
    for r in range(16):
        k(f"v_mul_f32 v{SA+r}, v{SA+r}, v6")
        if r % 8 == 7: wissue(1)
    for p in range(8):
        k(f"v_cvt_pk_bf16_f32 v{PF+p}, v{SA+2*p}, v{SA+2*p+1}")
    wissue(2)
    k("v_and_b32 v4, 15, v1")
    k("v_lshrrev_b32 v5, 2, v4")
    k("v_and_b32 v4, 3, v4")
    k("v_lshl_add_u32 v5, v3, 2, v5")
    k(f"v_mul_u32_u24 v5, {PH}, v5")
    k("v_lshl_add_u32 v5, v4, 3, v5")
    k("v_bfe_u32 v4, v1, 4, 1")
    k("v_lshl_add_u32 v5, v4, 5, v5")
    k("v_add_u32 v5, s8, v5")
    for j in range(3):
        for sp in range(2):
            for q in range(2):
                b = BR + (j * 2 + sp) * 4 + 2 * q
                k.ds(f"ds_read_b64_tr_b16 v[{b}:{b+1}], v5 offset:{HB+(16*sp+8*q)*PH+64*j}")
    k.lgwait_all()
    for j in range(3):
        for sp in range(2):
            k(f"{MFMA} {vr(ACC+16*j,16)}, {vr(BR+(j*2+sp)*4)}, {vr(PF+4*sp)}, {vr(ACC+16*j,16) if sp else 0}")
    k("s_mul_i32 s9, s3, 6144")
    k(f"s_add_u32 s9, s9, {YX}")
    k("v_add_u32 v14, s9, v10")
    k(f"v_add_u32 v15, {YX}, v10")
    k("s_nop 15")
    for e in range(24):
        k(f"v_cvt_pk_bf16_f32 v{PK+e}, v{ACC+2*e}, v{ACC+2*e+1}")
        if e % 6 == 5: wissue(1)
    for s in range(6):
        k.ds(f"ds_write_b128 v14, {vr(PK+4*s)} offset:{1024*s}")
    wissue(6)
    k.lgwait_all()
    k("s_barrier")
    k.stamp()
    gemm(15, 0, 1024)
    k.stamp()
    XR = 184
    for jq in range(12):
        j, q = jq // 4, jq % 4
        k.ds(f"ds_read_b64 v[{XR+2*jq}:{XR+2*jq+1}], v13 offset:{XB+64*j+16*q}")
    k("v_mov_b32 v6, 0"); k("v_mov_b32 v7, 0")
    k.lgwait_all()
    for jq in range(12):
        for e in range(2):
            a = ACC + jq * 4 + 2 * e
            x = XR + jq * 2 + e
            k(f"v_lshlrev_b32 v65, 16, v{x}")
            k(f"v_and_b32 v66, s11, v{x}")
            k(f"v_add_f32 v{a}, v{a}, v65")
            k(f"v_add_f32 v{a+1}, v{a+1}, v66")
            k(f"v_cvt_pk_bf16_f32 v{x}, v{a}, v{a+1}")
            k(f"v_dot2_f32_bf16 v6, v{x}, s10, v6")
            k(f"v_dot2_f32_bf16 v7, v{x}, v{x}, v7")
        wissue(1)
    for jq in range(12):
        j, q = jq // 4, jq % 4
        k.ds(f"ds_write_b64 v13, v[{XR+2*jq}:{XR+2*jq+1}] offset:{XB+64*j+16*q}")
    k("s_nop 2")
    xhalf(k, "v_add_f32", 6, 64)
    xhalf(k, "v_add_f32", 7, 64)
    k("v_lshlrev_b32 v4, 3, v2")
    k(f"v_add_u32 v4, {ST}, v4")
    k("s_lshl_b32 s9, s3, 8")
    k("v_add_u32 v5, s9, v4")
    k.ds("ds_write_b64 v5, v[6:7]")
    k.lgwait_all()
    k("s_barrier")
    for w in range(4):
        k.ds(f"ds_read_b64 v[{64+2*w}:{65+2*w}], v4 offset:{256*w}", tag="st")
    for j in range(6):
        k.ds(f"ds_read_b128 {vr(XA+4*j)}, v9 offset:{XB+128*j}", tag="x1r")
    k.lgwait("st")
    k("v_add_f32 v64, v64, v66"); k("v_add_f32 v65, v65, v67")
    k("v_add_f32 v68, v68, v70"); k("v_add_f32 v69, v69, v71")
    k("v_add_f32 v64, v64, v68"); k("v_add_f32 v65, v65, v69")
    ln_stats(k, 64, 65, 66, 67, 68)
    k("v_mul_f32 v66, v66, v67")
    k.lgwait("x1r")
    for j in range(6):
        k.vmem(f"buffer_store_dwordx4 {vr(XA+4*j)}, v8, s[40:43], 0 offen offset:{128*j} sc1")
    for e in range(24):
        x = XR + e
        k(f"v_lshlrev_b32 v72, 16, v{x}")
        k(f"v_and_b32 v73, s11, v{x}")
        k(f"v_fma_f32 v72, v72, v67, -v66")
        k(f"v_fma_f32 v73, v73, v67, -v66")
        k(f"v_cvt_pk_bf16_f32 v{PK+e}, v72, v73")
        if e % 2 == 1: wissue(1)
    for jq in range(12):
        j, q = jq // 4, jq % 4
        k.ds(f"ds_write_b64 v13, v[{PK+2*jq}:{PK+2*jq+1}] offset:{HB+64*j+16*q}")
    wissue(8)
    k.lgwait_all()
    k("s_barrier")
    for j in range(6):
        k.ds(f"ds_read_b128 {vr(HA+4*j)}, v9 offset:{HB+128*j}")
    k.lgwait_all()
    for j in range(6):
        k.vmem(f"buffer_store_dwordx4 {vr(HA+4*j)}, v8, s[44:47], 0 offen offset:{128*j} sc1")

def phase2(k, name):
    k.vm = []; k.lg = []
    k(f"s_mul_hi_u32 s4, s6, {((1<<32)+22)//23}")
    k("s_mul_i32 s5, s4, 23")
    k("s_sub_u32 s5, s6, s5")
    k(f"s_mul_i32 s6, s4, {FR_BYTES}")
    k(f"s_add_u32 s7, s6, {WS_H2}")
    k.srd_s(32, 30, 7, FR_BYTES)
    k.srd(36, 30, WS_FQS, WO_BYTES)
    k(f"s_add_u32 s7, s6, {WS_X1}")
    k.srd_s(40, 30, 7, FR_BYTES)
    k.srd_s(44, 26, 6, FR_BYTES)
    k.srd(48, 30, WS_FVS, WO_BYTES)
    HS = 12288
    k.stamp()
    WR = 3 * HS
    for b in range(3):
        k(f"v_add_u32 v7, {64*b}, v1")
        k("v_mul_u32_u24 v8, 1366, v7")
        k("v_lshrrev_b32 v8, 16, v8")
        k("v_mul_u32_u24 v9, 48, v8")
        k("v_sub_u32 v9, v7, v9")
        k("v_lshlrev_b32 v10, 2, v8")
        k("v_xor_b32 v9, v9, v10")
        k("v_mul_u32_u24 v8, 768, v8")
        k(f"v_lshl_add_u32 v{4+b}, v9, 4, v8")
    k(f"s_mul_i32 s8, s3, {WR}")
    tmpi = [0]
    def dma_one(srd, srow, ldsbase_s, ldsoff, tag, i):
        a, b = i // 3, i % 3
        if a:
            t = 7 + (tmpi[0] & 1); tmpi[0] += 1
            k(f"v_xor_b32 v{t}, {16*a}, v{4+b}")
        else:
            t = 4 + b
        k(f"s_add_u32 m0, s{ldsbase_s}, {ldsoff + i*1024}")
        k(f"s_add_u32 s10, s{srow}, {a*3072}")
        k.vmem(f"buffer_load_dwordx4 v{t}, s[{srd}:{srd+3}], s10 offen{SC} lds", tag=tag)
    def dma_half(srd, srow, ldsbase_s, ldsoff, tag):
        for i in range(12): dma_one(srd, srow, ldsbase_s, ldsoff, tag, i)
    k("s_lshl_b32 s11, s5, 5")
    k("s_mul_i32 s11, s11, 768")
    k("s_lshl_b32 s14, s3, 5")
    k("s_mul_i32 s14, s14, 768")
    k("s_mul_hi_u32 s15, s5, 0x2AAAAAAB")
    k("s_mul_i32 s15, s15, 6")
    k("s_sub_u32 s15, s5, s15")
    def hload_one(hf, i):
        if i == 0:
            d = 56 + (hf & 1)
            k(f"s_add_u32 s{d}, s15, {hf // 2}")
            k(f"s_cmp_ge_u32 s{d}, 6")
            k(f"s_cselect_b32 s12, 6, 0")
            k(f"s_sub_u32 s{d}, s{d}, s12")
            k(f"s_mul_i32 s{d}, s{d}, {128*768}")
            k(f"s_add_u32 s{d}, s{d}, s14")
            if hf & 1: k(f"s_add_u32 s{d}, s{d}, {16*768}")
        dma_one(32, 56 + (hf & 1), 8, (hf % 3) * HS, f"h{hf}", i)
    def hload(hf):
        for i in range(12): hload_one(hf, i)
    k("v_and_b32 v28, 15, v2")
    k("v_and_b32 v29, 3, v28")
    k("v_lshlrev_b32 v29, 2, v29")
    k("v_lshrrev_b32 v30, 2, v28")
    k("v_or_b32 v29, v29, v30")
    k("v_mul_u32_u24 v28, 768, v28")
    for bi in range(8):
        k(f"v_add_u32 v30, {2*bi}, v3")
        k("v_xor_b32 v30, v30, v29")
        k(f"v_lshl_add_u32 v{9+bi}, v30, 4, v28")
    k("v_lshrrev_b32 v30, 4, v2")
    k(f"v_mul_u32_u24 v31, {WR}, v30")
    k(f"v_add_u32 v31, {2*HS}, v31")
    for bi in range(8):
        k(f"v_add_u32 v{56+bi}, v{9+bi}, v31")
    k(f"v_mul_u32_u24 v31, {HS}, v30")
    k("v_add_u32 v31, s8, v31")
    for bi in range(8):
        k(f"v_add_u32 v{9+bi}, v{9+bi}, v31")
    k("v_cmp_eq_u32 vcc, 0, v30")
    k(f"v_mov_b32 v31, {2*HS}")
    k(f"v_mov_b32 v28, {(-HS) & 0xffffffff}")
    k("s_nop 0")
    k("v_cndmask_b32 v17, v28, v31, vcc")
    k("v_cndmask_b32 v18, v31, v28, vcc")
    k("v_mov_b32 v19, v28")
    k("v_and_b32 v28, 15, v1")
    k("v_lshrrev_b32 v29, 2, v28")
    k("v_and_b32 v28, 3, v28")
    k("v_bfe_u32 v30, v1, 4, 1")
    k("v_lshlrev_b32 v30, 1, v30")
    k("v_lshrrev_b32 v31, 1, v28")
    k("v_add_u32 v30, v30, v31")
    k("v_and_b32 v28, 1, v28")
    k("v_lshlrev_b32 v28, 3, v28")
    k("v_add_u32 v28, s8, v28")
    for q in range(2):
        k(f"v_lshl_add_u32 v31, v3, 2, v29")
        if q: k("v_add_u32 v31, 8, v31")
        k("v_mul_u32_u24 v31, 768, v31")
        k("v_add_u32 v31, v31, v28")
        k(f"v_add_u32 v32, {2*q}, v3")
        k("v_and_b32 v32, 3, v32")
        k("v_lshl_or_b32 v32, v29, 2, v32")
        for c in range(4):
            k(f"s_add_u32 s12, s3, {c}")
            k("s_and_b32 s12, s12, 3")
            k("s_lshl_b32 s12, s12, 2")
            k("v_add_u32 v33, s12, v30")
            k("v_xor_b32 v33, v33, v32")
            k(f"v_lshl_add_u32 v{20+q*4+c}, v33, 4, v31")
    k("v_lshlrev_b32 v34, 4, v1")
    k("s_mul_i32 s58, s3, 73728")
    RQ = 60
    qi = [0]; qc = [0]
    def qslot(i): return (i % RQ) * 4
    def qissue(n=1):
        for _ in range(n):
            i = qi[0]
            if i >= 72 or i >= qc[0] + RQ: return
            s_, j = i // 3, i % 3
            off = (j * 24 + s_) * 1024
            k(f"s_add_u32 s59, s58, {off & ~4095}")
            k.vmem(f"buffer_load_dwordx4 {ar(qslot(i))}, v34, s[36:39], s59 offen offset:{off & 4095}{SC}", tag=f"q{i}")
            qi[0] += 1
    k("s_cmp_lg_u32 s3, 0")
    k(f"s_cbranch_scc1 {name}_np1")
    poll(k, f"{name}_p1", 1, 72)
    k.label(f"{name}_np1")
    k("s_barrier")
    k("s_cmp_eq_u32 s3, 0")
    k(f"s_cbranch_scc1 {name}_w0")
    qissue(RQ)
    k.vm = []; qi[0] = 0
    k(f"s_branch {name}_np2")
    k.label(f"{name}_w0")
    poll(k, f"{name}_p2", 2, 183)
    k.label(f"{name}_np2")
    k("s_barrier")
    k.rt(4)
    k.stamp()
    k("s_add_u32 s13, s11, {}".format(16*768))
    k("s_mov_b32 s12, 0")
    k(f"s_mov_b32 s9, {WR}")
    k("s_cmp_lg_u32 s3, 0")
    k(f"s_cbranch_scc1 {name}_qa")
    qissue(RQ)
    vm_q = list(k.vm)
    k(f"s_branch {name}_qd")
    k.label(f"{name}_qa")
    for w_ in range(1, 4):
        if w_ < 3:
            k(f"s_cmp_lg_u32 s3, {w_}")
            k(f"s_cbranch_scc1 {name}_qn{w_}")
        k.vm = list(vm_q)
        for p_ in range(8 * (w_ - 1), 8 * w_):
            hh, i = p_ // 12, p_ % 12
            dma_one(32, 13 if hh else 11, 9 if hh else 12, 2 * HS, "u", i)
        if w_ < 3:
            k(f"s_branch {name}_qd")
            k.label(f"{name}_qn{w_}")
    k.label(f"{name}_qd")
    hload(0); hload(1)
    k.vmwait("u")
    k("s_barrier")
    k.stamp()
    QA, QB, NQB = 64, 112, 8
    k.lg = []
    def qrd(s_): k.ds(f"ds_read_b128 {vr(QB+(s_%NQB)*4)}, v{56+(s_%8)} offset:{(s_//8)*256}", tag=f"b{s_}")
    for s_ in range(NQB - 1): qrd(s_)
    for s_ in range(24):
        if s_ + NQB - 1 < 24: qrd(s_ + NQB - 1)
        k.lgwait(f"b{s_}")
        for j in range(3):
            i = qc[0]
            k.vmwait(f"q{i}")
            k(f"{MFMA} {vr(QA+16*j,16)}, {ar(qslot(i))}, {vr(QB+(s_%NQB)*4)}, {vr(QA+16*j,16) if s_ else 0}")
            qc[0] += 1
            qissue(1)
    k("s_nop 15")
    for e in range(24):
        k(f"v_cvt_pk_bf16_f32 v{QB+e}, v{QA+2*e}, v{QA+2*e+1}")
    k("s_nop 1")
    for f_ in range(6):
        k(f"v_permlane32_swap_b32 v{QB+4*f_}, v{QB+4*f_+2}")
        k(f"v_permlane32_swap_b32 v{QB+4*f_+1}, v{QB+4*f_+3}")
    k("s_lshr_b32 s12, s3, 1")
    k(f"s_mul_i32 s12, s12, {WR}")
    k("s_and_b32 s9, s3, 1")
    k("s_mul_i32 s9, s9, 6144")
    k("s_add_u32 s12, s12, s9")
    k(f"s_add_u32 s12, s12, {2*WR + 2*HS}")
    k("v_add_u32 v35, s12, v34")
    k("s_nop 1")
    for f_ in range(6):
        k.ds(f"ds_write_b128 v35, {vr(QB+4*f_)} offset:{1024*f_}")
    k(f"v_add_u32 v35, {2*WR + 2*HS}, v34")
    k(f"v_add_u32 v36, {3*WR + 2*HS}, v34")
    k.lgwait_all()
    k("s_barrier")
    UF = 0
    for s_ in range(24):
        k.ds(f"ds_read_b128 {ar(UF+4*s_)}, v{35 + s_//12} offset:{(s_%12)*1024}")
    k.lgwait_all()
    k("s_barrier")
    k.stamp()
    vm_keep = [t for t in k.vm]
    HT = 96
    KR, NKR = 192, 8
    SA, PF = 32, 48
    OA = 64
    M_, L_ = 28, 29
    THR = 8.0
    wslot = [224 + 4 * i for i in range(8)] + [4 * i for i in range(24)] + [96 + 4 * i for i in range(24)]
    RW = len(wslot)
    k("v_lshlrev_b32 v63, 4, v1")
    k("s_mul_i32 s58, s3, 73728")
    wiss = [0]; wcons = [0]; wlim = [8]
    def wissue(n=1):
        for _ in range(n):
            i = wiss[0]
            if i >= 72: return
            if i < RW:
                if i >= wlim[0]: return
            elif i >= wcons[0] + RW: return
            s, j = i // 3, i % 3
            off = (j * 24 + s) * 1024
            k(f"s_add_u32 s59, s58, {off & ~4095}")
            k.vmem(f"buffer_load_dwordx4 {ar(wslot[i%RW])}, v63, s[48:51], s59 offen offset:{off & 4095}{SC}", tag=f"w{i}")
            wiss[0] += 1
    for tau in range(6):
        hB = 2 * tau + 1
        FINE = 'fine' in FL and tau in (2, 3, 4)
        if 'fine' in FL: k.off = not FINE
        if FINE: k.stamp()
        if tau == 0:
            k.vmwait(f"h{hB}")
        if ('coarse' not in FL or tau in (0, 3)) and ('fine' not in FL or FINE): k.stamp()
        if tau == 0: k.lg = []
        trl = []
        for sp in range(2):
            slot = ((2 * tau + sp) % 3) * HS
            for ct in range(12):
                for q in range(2):
                    d = HT + (ct * 2 + sp) * 4 + 2 * q
                    trl.append(f"ds_read_b64_tr_b16 a[{d}:{d+1}], v{20+q*4+(ct%4)} offset:{slot+(ct//4)*256}")
        def krd(s): k.ds(f"ds_read_b128 {ar(KR+(s%NKR)*4)}, v{9+(s%8)} offset:{(s//8)*256}", tag=f"k{s}")
        PRE = int(os.environ.get("PRE", "5"))
        if tau == 0:
            for s in range(PRE): krd(s)
        hr = 2 * tau + 2
        for s in range(24):
            if s + PRE < 24: krd(s + PRE)
            if s >= 2:
                for _ in range(2 if s < 23 else 4):
                    if trl: k.ds(trl.pop(0))
            k.lgwait(f"k{s}")
            k(f"{MFMA} {vr(SA,16)}, {ar(KR+(s%NKR)*4)}, {ar(UF+4*s)}, {vr(SA,16) if s else 0}")
            if hr < 12 and s % 2 == 1: hload_one(hr, s // 2)
            elif hr >= 12 and s % 3 == 2: wissue(1)
        while trl: k.ds(trl.pop(0))
        if FINE: k.stamp()
        if tau < 5:
            for bi in range(8):
                k(f"v_add_u32 v{9+bi}, v{9+bi}, v{17+(tau%3)}")
        else:
            k("s_nop 7")
        k.lgwait_all()
        if 'coarse' not in FL and ('fine' not in FL or FINE): k.stamp()
        hu = 2 * tau + 3
        ui = [0]
        def urgent(n=1):
            for _ in range(n):
                if hu < 12:
                    if ui[0] < 12:
                        hload_one(hu, ui[0]); ui[0] += 1
                else:
                    wissue(1)
        if tau == 5: wlim[0] = 32
        urgent(2)
        if True:
            k(f"s_add_u32 s60, s15, {tau}")
            k("s_cmp_eq_u32 s60, 5")
            k("s_cselect_b32 s12, 1, 0")
            k("s_cmp_eq_u32 s60, 11")
            k("s_cselect_b32 s12, 1, s12")
            k("s_cmp_lg_u32 s12, 0")
            k(f"s_cbranch_scc1 {name}_mask{tau}")
            k.label(f"{name}_nomask{tau}")
            k.ool_begin()
            k.label(f"{name}_mask{tau}")
            k("s_lshl_b32 s60, s3, 5")
            k(f"s_sub_u32 s60, {N - 640}, s60")
            k("v_lshlrev_b32 v30, 2, v3")
            k("v_mov_b32 v31, 0xff800000")
            for r in range(16):
                cr = 8 * (r >> 2) + (r & 3)
                k(f"v_add_u32 v56, {cr}, v30")
                k("v_cmp_gt_i32 vcc, s60, v56")
                k("s_nop 1")
                k(f"v_cndmask_b32 v{SA+r}, v31, v{SA+r}, vcc")
            k(f"s_branch {name}_nomask{tau}")
            k.ool_end()
        k(f"v_max3_f32 v30, v{SA}, v{SA+1}, v{SA+2}")
        for r in range(3, 15, 2):
            k(f"v_max3_f32 v30, v30, v{SA+r}, v{SA+r+1}")
        k(f"v_max_f32 v30, v30, v{SA+15}")
        xhalf(k, "v_max_f32", 30, 31)
        urgent(1)
        if tau == 0:
            k(f"v_max_f32 v{M_}, 0xf149f2ca, v30")
            k(f"v_mov_b32 v{L_}, 0")
        else:
            k(f"v_add_f32 v31, {hex(f2u(THR))}, v{M_}")
            k("v_cmp_gt_f32 vcc, v30, v31")
            k(f"s_cbranch_vccnz {name}_rs{tau}")
            k.label(f"{name}_nors{tau}")
            k.ool_begin()
            k.label(f"{name}_rs{tau}")
            k(f"v_max_f32 v30, v30, v{M_}")
            k(f"v_sub_f32 v31, v{M_}, v30")
            k("v_exp_f32 v31, v31")
            k(f"v_mov_b32 v{M_}, v30")
            k("s_nop 7")
            k(f"v_mul_f32 v{L_}, v{L_}, v31")
            for r in range(192):
                k(f"v_mul_f32 v{OA+r}, v{OA+r}, v31")
            k("s_nop 1")
            k(f"s_branch {name}_nors{tau}")
            k.ool_end()
        for r in range(8):
            k(f"v_sub_f32 v{SA+r}, v{SA+r}, v{M_}")
        for r in range(8):
            k(f"v_exp_f32 v{SA+r}, v{SA+r}")
        urgent(1)
        for p in range(4):
            k(f"v_cvt_pk_bf16_f32 v{PF+p}, v{SA+2*p}, v{SA+2*p+1}")
        k("s_nop 1")
        if FINE: k.stamp()
        fill = [f"v_sub_f32 v{SA+r}, v{SA+r}, v{M_}" for r in range(8, 16)]
        fill += [f"v_exp_f32 v{SA+r}, v{SA+r}" for r in range(8, 16)]
        fill += [f"v_add_f32 v30, v{SA}, v{SA+1}"]
        fill += [f"v_cvt_pk_bf16_f32 v{PF+p}, v{SA+2*p}, v{SA+2*p+1}" for p in range(4, 8)]
        fill += [f"v_add_f32 v31, v{SA+2}, v{SA+3}"]
        for r in range(4, 16, 2):
            fill += [f"v_add_f32 v30, v30, v{SA+r}", f"v_add_f32 v31, v31, v{SA+r+1}"]
        fill += [f"v_add_f32 v{L_}, v{L_}, v30", f"v_add_f32 v{L_}, v{L_}, v31"]
        n = 0
        for sp in range(2):
            for ct in range(12):
                c = vr(OA + 16 * ct, 16) if (tau or sp) else "0"
                k(f"{MFMA} {vr(OA+16*ct,16)}, {ar(HT+(ct*2+sp)*4)}, {vr(PF+4*sp)}, {c}")
                for _ in range(3 if n < 8 else 2):
                    if fill: k(fill.pop(0))
                if n % 2 == 1 or n >= 10: urgent(1)
                n += 1
                if n == 18 and tau < 5:
                    urgent(12)
                    k.vmwait(f"h{2*tau+3}")
                    k.lg = []
                    for s in range(PRE): krd(s)
        assert not fill
        urgent(12)
    wlim[0] = RW
    if 'fine' in FL: k.off = True
    k.stamp()
    xhalf(k, "v_add_f32", L_, 30)
    STB = 147456
    k("v_lshlrev_b32 v30, 3, v2")
    k(f"v_add_u32 v30, {STB}, v30")
    k("s_lshl_b32 s60, s3, 8")
    k("v_add_u32 v31, s60, v30")
    k.ds(f"ds_write_b64 v31, v[{M_}:{L_}]")
    k("v_add_u32 v31, s8, v63")
    k("s_nop 4")
    for cp in range(1, 4):
        for a_ in range(3):
            for e in range(4):
                k.ds(f"ds_write_b128 v31, {vr(OA+16*(4*a_+cp)+4*e)} offset:{(cp-1)*HS+a_*4096+e*1024}")
        wissue(3)
    for cp in range(4):
        k(f"s_sub_u32 s60, s3, {cp}")
        k("s_and_b32 s60, s60, 3")
        k("s_lshl_b32 s12, s60, 8")
        k(f"v_add_u32 v{56+cp}, s12, v30")
        if cp:
            k(f"s_mul_i32 s12, s60, {WR}")
            k(f"s_add_u32 s12, s12, {(cp-1)*HS}")
            k(f"v_add_u32 v{59+cp}, s12, v63")
    k.lgwait_all()
    k("s_barrier")
    for cp in range(4):
        k.ds(f"ds_read_b64 v[{32+2*cp}:{33+2*cp}], v{56+cp}", tag="st")
    for cp in range(1, 4):
        for a_ in range(3):
            for e in range(4):
                k.ds(f"ds_read_b128 {vr(OA+16*(4*a_+cp)+4*e)}, v{59+cp} offset:{a_*4096+e*1024}", tag=f"pr{cp}")
    k.lgwait("st")
    k("v_max3_f32 v40, v32, v34, v36")
    k("v_max_f32 v40, v40, v38")
    for cp in range(4):
        k(f"v_sub_f32 v{32+2*cp}, v{32+2*cp}, v40")
    for cp in range(4):
        k(f"v_exp_f32 v{32+2*cp}, v{32+2*cp}")
    k("s_nop 0")
    k("v_mul_f32 v42, v32, v33")
    k("v_fmac_f32 v42, v34, v35")
    k("v_fmac_f32 v42, v36, v37")
    k("v_fmac_f32 v42, v38, v39")
    k("v_rcp_f32 v42, v42")
    k("s_nop 0")
    for cp in range(4):
        k(f"v_mul_f32 v{44+cp}, v{32+2*cp}, v42")
    for a_ in range(3):
        for r in range(16):
            k(f"v_mul_f32 v{OA+64*a_+r}, v{OA+64*a_+r}, v44")
    wissue(4)
    for cp in range(1, 4):
        k.lgwait(f"pr{cp}")
        for a_ in range(3):
            for r in range(16):
                k(f"v_fmac_f32 v{OA+64*a_+r}, v{OA+16*(4*a_+cp)+r}, v{44+cp}")
        wissue(4)
    for a_ in range(3):
        for e in range(8):
            k(f"v_cvt_pk_bf16_f32 v{32+a_*8+e}, v{OA+64*a_+2*e}, v{OA+64*a_+2*e+1}")
    for a_ in range(3):
        for sp in range(2):
            k.ds(f"ds_write_b128 v60, {vr(32+a_*8+sp*4)} offset:{(a_*2+sp)*1024}")
    for wp in range(4):
        k(f"v_add_u32 v{56+wp}, {((wp-1)&3)*WR}, v63")
    k("v_lshrrev_b32 v4, 3, v1")
    k("s_lshl_b32 s60, s3, 3")
    k("v_add_u32 v4, s60, v4")
    k("v_and_b32 v5, 7, v1")
    k("s_lshl_b32 s60, s5, 5")
    k("v_add_u32 v6, s60, v4")
    k("v_mul_u32_u24 v6, 768, v6")
    k("v_lshl_add_u32 v6, v5, 4, v6")
    XR = 160
    for j in range(6):
        k.vmem(f"buffer_load_dwordx4 {vr(XR+4*j)}, v6, s[40:43], 0 offen offset:{128*j} sc1", tag="xr")
    k.lgwait_all()
    k("s_barrier")
    YA = 96
    BR, NBR = 64, 8
    k.stamp()
    k.lg = []
    def rd(s):
        ct, sp = s // 2, s % 2
        a_, wp = ct // 4, ct % 4
        k.ds(f"ds_read_b128 {vr(BR+(s%NBR)*4)}, v{56+wp} offset:{(a_*2+sp)*1024}", tag=f"b{s}")
    for s in range(NBR - 1): rd(s)
    wi = 0
    for s in range(24):
        if s + NBR - 1 < 24: rd(s + NBR - 1)
        k.lgwait(f"b{s}")
        for j in range(3):
            k.vmwait(f"w{wi}")
            k(f"{MFMA} {vr(YA+16*j,16)}, {ar(wslot[wi%RW])}, {vr(BR+(s%NBR)*4)}, {vr(YA+16*j,16) if s else 0}")
            wi += 1
            wcons[0] = wi
            wissue(1)
    k("s_nop 15")
    k.stamp()
    YB = 8192
    k(f"v_mul_u32_u24 v7, {PH}, v2")
    k("s_mul_i32 s60, s3, 192")
    k(f"s_add_u32 s60, s60, {YB}")
    k("v_lshl_add_u32 v7, v3, 3, v7")
    k("v_add_u32 v7, s60, v7")
    for e in range(24):
        k(f"v_cvt_pk_bf16_f32 v{64+e}, v{YA+2*e}, v{YA+2*e+1}")
    for jq in range(12):
        j, q = jq // 4, jq % 4
        k.ds(f"ds_write_b64 v7, v[{64+2*jq}:{65+2*jq}] offset:{64*j+16*q}")
    k(f"v_mul_u32_u24 v8, {PH}, v4")
    k("v_lshl_add_u32 v8, v5, 4, v8")
    k.lgwait_all()
    k("s_barrier")
    for j in range(6):
        k.ds(f"ds_read_b128 {vr(96+4*j)}, v8 offset:{YB+128*j}")
    k("s_mov_b32 s60, 0xffff0000")
    k.vmwait("xr")
    k.lgwait_all()
    for e in range(24):
        k(f"v_lshlrev_b32 v64, 16, v{96+e}")
        k(f"v_and_b32 v65, s60, v{96+e}")
        k(f"v_lshlrev_b32 v66, 16, v{XR+e}")
        k(f"v_and_b32 v67, s60, v{XR+e}")
        k("v_add_f32 v64, v64, v66")
        k("v_add_f32 v65, v65, v67")
        k(f"v_cvt_pk_bf16_f32 v{128+e}, v64, v65")
    for j in range(6):
        k.vmem(f"buffer_store_dwordx4 {vr(128+4*j)}, v6, s[44:47], 0 offen offset:{128*j}{OUTF}")


NREP = 8
NSH = 8
WS_SYNC = 24 * MiB
CSZ = NREP * NSH * 128
def spin(k, lab, srd, voff_reg, target, nsh):
    k("s_mov_b32 s61, 0")
    k.label(lab)
    k(f"buffer_load_dword v244, v{voff_reg}, s[{srd}:{srd+3}], 0 offen sc1")
    k("s_waitcnt vmcnt(0)")
    if nsh == 1:
        k("v_readfirstlane_b32 s63, v244")
        k("s_nop 3")
    else:
        k("v_readlane_b32 s63, v244, 0")
        for i in range(1, nsh):
            k(f"v_readlane_b32 s52, v244, {i}")
            k("s_nop 3")
            k("s_add_u32 s63, s63, s52")
    k(f"s_cmp_ge_u32 s63, {target}")
    k(f"s_cbranch_scc1 {lab}_done")
    k(f"s_sleep {SLEEP}")
    k("s_add_u32 s61, s61, 1")
    k("s_cmp_lt_u32 s61, 0x200000")
    k(f"s_cbranch_scc1 {lab}")
    k.label(f"{lab}_done")

def zcheck(k, lab):
    k("s_cmp_lg_u32 s53, 0")
    k(f"s_cbranch_scc1 {lab}_skip")
    k("v_mov_b32 v245, 0")
    spin(k, lab, 64, 245, 1, 1)
    k("s_mov_b32 s53, 1")
    k.label(f"{lab}_skip")

def poll(k, lab, cidx, target):
    zcheck(k, lab + "z")
    k(f"s_and_b32 s63, s2, {NREP-1}")
    k(f"s_mul_i32 s63, s63, {NSH*128}")
    k(f"s_add_u32 s63, s63, {cidx*CSZ}")
    k(f"v_and_b32 v245, {NSH-1}, v1")
    k("v_lshlrev_b32 v245, 7, v245")
    k("v_add_u32 v245, s63, v245")
    spin(k, lab, 80, 245, target, NSH)

def signal(k, lab, cidx):
    k("s_waitcnt vmcnt(0)")
    k("s_barrier")
    k("s_cmp_lg_u32 s3, 0")
    k(f"s_cbranch_scc1 {lab}")
    zcheck(k, lab + "z")
    k("v_mov_b32 v244, 1")
    k("s_lshr_b32 s63, s2, 3")
    k(f"s_and_b32 s63, s63, {NSH-1}")
    k("s_lshl_b32 s63, s63, 7")
    if cidx is None:
        k(f"s_mul_i32 s52, s56, {CSZ}")
        k("s_add_u32 s63, s63, s52")
    else:
        k(f"s_add_u32 s63, s63, {cidx*CSZ}")
    k(f"v_mul_u32_u24 v245, {NSH*128}, v1")
    k("v_add_u32 v245, s63, v245")
    k("s_mov_b64 s[68:69], exec")
    k(f"s_mov_b64 exec, {(1<<NREP)-1}")
    k("buffer_atomic_add v244, v245, s[80:83], 0 offen sc1")
    k("s_mov_b64 exec, s[68:69]")
    k.label(lab)

def gen_main():
    k = K(); name = "standalone__video_timesformer__vision_kernel"
    prologue(k, name, 255)
    k.srd(64, 28, 0, 256)
    k.srd(80, 30, WS_SYNC, 3 * CSZ)
    k("s_mov_b32 s53, 0")
    k(f"s_cmp_lg_u32 s2, {ZWG}")
    k("s_cbranch_scc1 L_noz")
    k("s_cmp_lg_u32 s3, 0")
    k("s_cbranch_scc1 L_noz")
    k("v_mov_b32 v244, 0")
    k("v_lshlrev_b32 v245, 7, v1")
    for c in range(3):
        k(f"s_mov_b32 s63, {c*CSZ}")
        k("buffer_store_dword v244, v245, s[80:83], s63 offen sc1")
    k("s_waitcnt vmcnt(0)")
    k("v_mov_b32 v244, 1")
    k("v_mov_b32 v245, 0")
    k("buffer_store_dword v244, v245, s[64:67], 0 offen sc1")
    k("s_mov_b32 s53, 1")
    k.label("L_noz")
    for i in range(8):
        if 'rt' in FL: k(f"s_mov_b32 s{90+i}, 0")
    k.rt(0)
    k("s_cmp_ge_u32 s2, 72")
    k(f"s_cbranch_scc1 L_cons")
    k(f"s_mul_hi_u32 s54, s2, {((1<<32)+35)//36}")
    k("s_mul_i32 s55, s54, 36")
    k("s_sub_u32 s55, s2, s55")
    k("s_mov_b32 s56, 0")
    k.label("LF_loop")
    k("s_mov_b32 s4, s54")
    k("s_mov_b32 s5, s55")
    fold(k, "LF0")
    k.rt0(1)
    signal(k, "LF0_sig", None)
    k.rt0(2)
    k("s_add_u32 s54, s54, 2")
    k("s_add_u32 s56, s56, 1")
    k("s_cmp_lt_u32 s56, 2")
    k("s_cbranch_scc1 LF_loop")
    k.rt(3)
    k("s_branch L_ph2")
    k.label("L_cons")
    k("s_sub_u32 s62, s2, 72")
    k.ph = 1
    phase1(k, "L1")
    k.stamp()
    k.rt(2)
    signal(k, "L1_sig", 2)
    k.rt(3)
    k.stamp()
    k.label("L_ph2")
    k("s_and_b32 s4, s2, 7")
    k("s_lshr_b32 s5, s2, 3")
    k("s_cmp_eq_u32 s4, 0")
    k("s_cselect_b32 s7, 21, 20")
    k("s_cmp_ge_u32 s5, s7")
    k(f"s_cbranch_scc1 L_fin")
    k("s_mul_i32 s6, s4, 20")
    k("s_min_u32 s7, s4, 1")
    k("s_add_u32 s6, s6, s7")
    k("s_add_u32 s6, s6, s5")
    k.ph = 2
    if 'fine' in FL: k.off = True
    phase2(k, "L2")
    if 'stamp' in FL:
        k.vmwait_all()
        k.stamp()
        k.dump_stamps(100)
    k.rt(5)
    k.label("L_fin")
    k.dump_rt()
    k.label(f"{name}_end")
    k("s_endpgm")
    return k.text()

HEADER = """; TimeSformer divided space-time attention block, gfx950.  Generated by gen3.py (own generator).
; One persistent launch: workgroups 0..71 fold Wq Wk^T / Wv Wo into MFMA fragment order; workgroups 72..254 do
; @launch grid=(255,1,1) block=(256,1,1) lds=148480
.amdgcn_target "amdgcn-amd-amdhsa--gfx950"
.text
"""
def desc(name, vgpr, accum):
    return f""".amdhsa_kernel {name}
  .amdhsa_next_free_vgpr {vgpr}
  .amdhsa_next_free_sgpr 102
  .amdhsa_accum_offset {accum}
  .amdhsa_group_segment_fixed_size 0
  .amdhsa_kernarg_size 64
  .amdhsa_user_sgpr_count 2
  .amdhsa_user_sgpr_kernarg_segment_ptr 1
  .amdhsa_system_sgpr_workgroup_id_x 1
  .amdhsa_float_denorm_mode_32 3
.end_amdhsa_kernel
"""
def main():
    name = "standalone__video_timesformer__vision_kernel"
    out = HEADER + f".globl {name}\n.p2align 8\n.type {name},@function\n" + gen_main()
    out += '.section .rodata,"a"\n.p2align 6\n' + desc(name, 512, 256)
    path = sys.argv[1] if len(sys.argv) > 1 else "standalone__video_timesformer__vision.s"
    open(path, "w").write(out)
    print("wrote", path, len(out))
if __name__ == "__main__":
    main()
```

```python
import sys, os, struct
FL = os.environ.get('GENFLAGS', '').split(',')
T, N, C = 7, 729, 384
X_BYTES = T * N * C * 2
FR_BYTES = N * C * 2
WQKV_BYTES = C * 3 * C * 2
WO_BYTES = C * C * 2
MiB = 1 << 20
WS_FQT, WS_FVT, WS_FQS, WS_FVS = 0, 1 * MiB, 2 * MiB, 3 * MiB
WS_X1, WS_H2, WS_U2 = 4 * MiB, 9 * MiB, 14 * MiB
BIG = 0x7f000000
OUTF = os.environ.get('OUTF', '')
SC = '' if 'nosc' in FL else ' sc1'
ZWG = int(os.environ.get("ZWG", "72"))
SLEEP = int(os.environ.get('SLEEP', '4'))
LOG2E = 1.4426950408889634
QSCALE = (C ** -0.5) * LOG2E
def f2u(f): return struct.unpack('<I', struct.pack('<f', f))[0]

class K:
    def __init__(self):
        self.L = []; self.vm = []; self.lg = []
    def __call__(self, s): self.L.append("    " + s)
    def label(self, l): self.L.append(l + ":")
    def vmem(self, s, tag=None):
        self(s); self.vm.append(tag)
    def vmwait(self, tag):
        idx = max(i for i, t in enumerate(self.vm) if t == tag)
        n = len(self.vm) - 1 - idx
        self(f"s_waitcnt vmcnt({min(n,63)})")
    def vmwait_all(self): self("s_waitcnt vmcnt(0)")
    def ds(self, s, tag=None):
        self(s); self.lg.append(tag)
    def lgwait(self, tag):
        idx = max(i for i, t in enumerate(self.lg) if t == tag)
        n = len(self.lg) - 1 - idx
        self(f"s_waitcnt lgkmcnt({min(n,15)})")
    def lgwait_all(self): self("s_waitcnt lgkmcnt(0)")
    def srd(self, d, lo, off, size):
        if off:
            self(f"s_add_u32 s{d}, s{lo}, {off}")
            self(f"s_addc_u32 s{d+1}, s{lo+1}, 0")
        else:
            self(f"s_mov_b32 s{d}, s{lo}")
            self(f"s_mov_b32 s{d+1}, s{lo+1}")
        self(f"s_mov_b32 s{d+2}, {size}")
        self(f"s_mov_b32 s{d+3}, 0x00020000")
    def srd_s(self, d, lo, soff, size):
        self(f"s_add_u32 s{d}, s{lo}, s{soff}")
        self(f"s_addc_u32 s{d+1}, s{lo+1}, 0")
        self(f"s_mov_b32 s{d+2}, {size}")
        self(f"s_mov_b32 s{d+3}, 0x00020000")
    ph = 0
    off = False
    def stamp(self):
        if 'stamp' not in FL or self.off: return
        if f"st{self.ph}" not in FL: return
        n = getattr(self, 'nst', 0)
        if n >= 18: return
        self("s_memtime s[70:71]")
        self("s_waitcnt lgkmcnt(0)")
        self(f"s_mov_b32 s{84+n}, s70")
        self.nst = n + 1
    def rt(self, idx):
        if 'rt' not in FL: return
        self("s_memrealtime s[70:71]")
        self("s_waitcnt lgkmcnt(0)")
        self(f"s_mov_b32 s{90+idx}, s70")
    def rt0(self, idx):
        if 'rt' not in FL: return
        lab = f"L_rt0_{len(self.L)}"
        self("s_cmp_lg_u32 s56, 0")
        self(f"s_cbranch_scc1 {lab}")
        self.rt(idx)
        self.label(lab)
    def dump_rt(self):
        if 'rt' not in FL: return
        lab = f"L_nort_{len(self.L)}"
        self("s_cmp_lg_u32 s3, 0")
        self(f"s_cbranch_scc1 {lab}")
        if 'rtdbg' in FL:
            for wg, base in ((100, 4), (3, 36)):
                l2 = f"L_rd_{wg}"
                self(f"s_cmp_lg_u32 s2, {wg}")
                self(f"s_cbranch_scc1 {l2}")
                self("v_mov_b32 v65, 0")
                for i in range(1, 8):
                    self(f"s_sub_u32 s70, s{90+i}, s90")
                    self("v_mov_b32 v64, s70")
                    self(f"buffer_store_dword v64, v65, s[64:67], 0 offen offset:{base+4*(i-1)}")
                self.label(l2)
        self.srd(84, 30, 32 * MiB, 65536)
        self("s_lshl_b32 s70, s2, 5")
        self("v_mov_b32 v65, s70")
        for i in range(8):
            self(f"v_mov_b32 v64, s{90+i}")
            self(f"buffer_store_dword v64, v65, s[84:87], 0 offen offset:{4*i}")
        self.label(lab)
    def dump_stamps(self, wg=0):
        if 'stamp' not in FL: return
        lab = f"L_nodump_{id(self)}"
        self(f"s_cmp_lg_u32 s2, {wg}")
        self(f"s_cbranch_scc1 {lab}")
        self("s_cmp_lg_u32 s3, 0")
        self(f"s_cbranch_scc1 {lab}")
        self("s_load_dwordx2 s[64:65], s[0:1], 48")
        self("s_waitcnt lgkmcnt(0)")
        self("s_mov_b32 s66, 256")
        self("s_mov_b32 s67, 0x00020000")
        self("v_mov_b32 v65, 0")
        for i in range(self.nst):
            self(f"v_mov_b32 v64, s{84+i}")
            self(f"buffer_store_dword v64, v65, s[64:67], 0 offen offset:{4*i+4}")
        self.label(lab)
    def ool_begin(self):
        self._save = self.L; self.L = []
    def ool_end(self):
        if not hasattr(self, 'OOL'): self.OOL = []
        self.OOL += self.L; self.L = self._save
    def text(self): return "\n".join(self.L + getattr(self, 'OOL', [])) + "\n"

def vr(b, n=4): return f"v[{b}:{b+n-1}]"
def ar(b, n=4): return f"a[{b}:{b+n-1}]"
MFMA = "v_mfma_f32_32x32x16_bf16"

def prologue(k, name, ngrid):
    k.label(name)
    k(f"s_cmp_ge_u32 s2, {ngrid}")
    k(f"s_cbranch_scc1 {name}_end")
    k("s_load_dwordx16 s[16:31], s[0:1], 0")
    k("v_and_b32 v1, 63, v0")
    k("v_lshrrev_b32 v4, 6, v0")
    k("v_and_b32 v2, 31, v1")
    k("v_readfirstlane_b32 s3, v4")
    k("v_lshrrev_b32 v3, 5, v1")
    k("s_waitcnt lgkmcnt(0)")

def bf16r(k, dst, src):
    k(f"v_cvt_pk_bf16_f32 v{dst}, v{src}, v{src}")
    k(f"v_lshlrev_b32 v{dst}, 16, v{dst}")

def ln_stats(k, s1, s2, m, rinv, t):
    k(f"v_mul_f32 v{s1}, {hex(f2u(1.0/C))}, v{s1}")
    k(f"v_mul_f32 v{s2}, {hex(f2u(1.0/C))}, v{s2}")
    k(f"v_fma_f32 v{s2}, -v{s1}, v{s1}, v{s2}")
    k(f"v_max_f32 v{s2}, 0, v{s2}")
    bf16r(k, m, s1)
    bf16r(k, t, s2)
    k(f"v_add_f32 v{t}, {hex(f2u(1e-5))}, v{t}")
    bf16r(k, t, t)
    k(f"v_sqrt_f32 v{t}, v{t}")
    k("s_nop 0")
    bf16r(k, t, t)
    k(f"v_rcp_f32 v{rinv}, v{t}")
    k("s_nop 0")

def xhalf(k, op, a, tmp):
    k(f"v_mov_b32 v{tmp}, v{a}")
    k("s_nop 1")
    k(f"v_permlane32_swap_b32 v{a}, v{tmp}")
    k("s_nop 1")
    k(f"{op} v{a}, v{a}, v{tmp}")

PH = 784

def fold(k, name):
    k.vm = []; k.lg = []
    k("s_mul_hi_u32 s6, s5, 0x2AAAAAAB")
    k("s_mul_i32 s7, s6, 6")
    k("s_sub_u32 s7, s5, s7")
    k("s_cmp_ge_u32 s4, 2")
    k("s_cselect_b32 s8, s22, s18")
    k("s_cselect_b32 s9, s23, s19")
    k("s_cselect_b32 s10, s24, s20")
    k("s_cselect_b32 s11, s25, s21")
    k("s_mov_b32 s32, s8"); k("s_mov_b32 s33, s9"); k(f"s_mov_b32 s34, {WQKV_BYTES}"); k("s_mov_b32 s35, 0x00020000")
    k("s_mov_b32 s36, s10"); k("s_mov_b32 s37, s11"); k(f"s_mov_b32 s38, {WO_BYTES}"); k("s_mov_b32 s39, 0x00020000")
    k("s_lshl_b32 s8, s4, 20")
    k.srd_s(40, 30, 8, WO_BYTES)
    k("s_and_b32 s12, s4, 1")
    AB, BBASE = 0, 64 * PH
    k("v_lshlrev_b32 v5, 4, v1")
    k("s_lshl_b32 s13, s6, 6")
    k("s_lshl_b32 s14, s3, 4")
    k("s_add_u32 s13, s13, s14")
    k("s_mul_i32 s13, s13, 2304")
    k("s_mul_i32 s15, s12, 1536")
    k("s_add_u32 s13, s13, s15")
    k(f"s_mul_i32 s14, s14, {PH}")
    k("v_cmp_gt_u32 vcc, 48, v1")
    k("s_and_saveexec_b64 s[44:45], vcc")
    for r in range(16):
        k(f"s_add_u32 m0, s14, {AB + r*PH}")
        k(f"s_add_u32 s15, s13, {r*2304}")
        k("s_nop 0")
        k.vmem("buffer_load_dwordx4 v5, s[32:35], s15 offen lds")
    k("s_mov_b64 exec, s[44:45]")
    k(f"v_mul_u32_u24 v6, {PH}, v2")
    k("v_lshl_add_u32 v6, v3, 4, v6")
    k("s_lshr_b32 s46, s3, 1")
    k("s_and_b32 s47, s3, 1")
    k(f"s_mul_i32 s15, s46, {32*PH}")
    k("v_add_u32 v7, s15, v6")
    k("s_cmp_eq_u32 s12, 1")
    k(f"s_cbranch_scc1 {name}_vo")
    k("s_lshl_b32 s13, s7, 6")
    k("s_lshl_b32 s14, s3, 4")
    k("s_add_u32 s13, s13, s14")
    k("s_mul_i32 s13, s13, 2304")
    k("s_add_u32 s13, s13, 768")
    k(f"s_mul_i32 s14, s14, {PH}")
    k("s_and_saveexec_b64 s[44:45], vcc")
    for r in range(16):
        k(f"s_add_u32 m0, s14, {BBASE + r*PH}")
        k(f"s_add_u32 s15, s13, {r*2304}")
        k("s_nop 0")
        k.vmem("buffer_load_dwordx4 v5, s[32:35], s15 offen lds")
    k("s_mov_b64 exec, s[44:45]")
    k(f"s_mul_i32 s15, s47, {32*PH}")
    k(f"s_add_u32 s15, s15, {BBASE}")
    k("v_add_u32 v8, s15, v6")
    k("s_cmp_lg_u32 s3, 0")
    k(f"s_cbranch_scc1 {name}_nz0")
    zcheck(k, f"{name}_zc0")
    k.label(f"{name}_nz0")
    k.rt0(5)
    k.vmwait_all()
    k("s_barrier")
    k.rt0(6)
    ACC = 16
    for s in range(24):
        k.ds(f"ds_read_b128 {vr(32+(s%8)*8)}, v7 offset:{32*s}", tag=f"f{s}")
        k.ds(f"ds_read_b128 {vr(36+(s%8)*8)}, v8 offset:{32*s}", tag=f"f{s}")
        if s >= 6:
            s0 = s - 6
            k.lgwait(f"f{s0}")
            k(f"{MFMA} {vr(ACC,16)}, {vr(32+(s0%8)*8)}, {vr(36+(s0%8)*8)}, {vr(ACC,16) if s0 else 0}")
    for s0 in range(18, 24):
        k.lgwait(f"f{s0}")
        k(f"{MFMA} {vr(ACC,16)}, {vr(32+(s0%8)*8)}, {vr(36+(s0%8)*8)}, {vr(ACC,16)}")
    k("s_nop 15")
    for r in range(16):
        k(f"v_mul_f32 v{ACC+r}, {hex(f2u(QSCALE))}, v{ACC+r}")
    for e in range(8):
        k(f"v_cvt_pk_bf16_f32 v{32+e}, v{ACC+2*e}, v{ACC+2*e+1}")
    k("s_nop 1")
    for sp in range(2):
        k(f"v_permlane32_swap_b32 v{32+4*sp}, v{34+4*sp}")
        k(f"v_permlane32_swap_b32 v{33+4*sp}, v{35+4*sp}")
    k(f"s_branch {name}_store")
    k.label(f"{name}_vo")
    k("v_lshrrev_b32 v8, 3, v1")
    k("v_and_b32 v9, 7, v1")
    k("v_mul_u32_u24 v8, 768, v8")
    k("v_lshl_add_u32 v8, v9, 4, v8")
    k("s_lshl_b32 s13, s7, 7")
    k("s_mul_i32 s14, s3, 96*768")
    k("s_add_u32 s13, s13, s14")
    k("s_mul_i32 s14, s3, 96*128")
    for i in range(12):
        k(f"s_add_u32 m0, s14, {BBASE + i*1024}")
        k(f"s_add_u32 s15, s13, {i*8*768}")
        k("s_nop 0")
        k.vmem("buffer_load_dwordx4 v8, s[36:39], s15 offen lds")
    k("v_and_b32 v4, 15, v1")
    k("v_lshrrev_b32 v9, 2, v4")
    k("v_and_b32 v4, 3, v4")
    k("v_lshl_add_u32 v9, v3, 3, v9")
    k("v_lshlrev_b32 v9, 7, v9")
    k("v_lshl_add_u32 v9, v4, 3, v9")
    k("v_bfe_u32 v4, v1, 4, 1")
    k("v_lshl_add_u32 v9, v4, 5, v9")
    k("s_lshl_b32 s15, s47, 6")
    k(f"s_add_u32 s15, s15, {BBASE}")
    k("v_add_u32 v9, s15, v9")
    k("s_cmp_lg_u32 s3, 0")
    k(f"s_cbranch_scc1 {name}_nz1")
    zcheck(k, f"{name}_zc1")
    k.label(f"{name}_nz1")
    k.rt0(5)
    k.vmwait_all()
    k("s_barrier")
    k.rt0(6)
    k.lg = []
    for s in range(24):
        k.ds(f"ds_read_b128 {vr(32+(s%8)*8)}, v7 offset:{32*s}", tag=f"f{s}")
        for q in range(2):
            k.ds(f"ds_read_b64_tr_b16 v[{36+(s%8)*8+2*q}:{37+(s%8)*8+2*q}], v9 offset:{(16*s+4*q)*128}", tag=f"f{s}")
        if s >= 4:
            s0 = s - 4
            k.lgwait(f"f{s0}")
            k(f"{MFMA} {vr(ACC,16)}, {vr(32+(s0%8)*8)}, {vr(36+(s0%8)*8)}, {vr(ACC,16) if s0 else 0}")
    for s0 in range(20, 24):
        k.lgwait(f"f{s0}")
        k(f"{MFMA} {vr(ACC,16)}, {vr(32+(s0%8)*8)}, {vr(36+(s0%8)*8)}, {vr(ACC,16)}")
    k("s_nop 15")
    for e in range(8):
        k(f"v_cvt_pk_bf16_f32 v{32+e}, v{ACC+2*e}, v{ACC+2*e+1}")
    k.label(f"{name}_store")
    k.rt0(7)
    k("s_lshl_b32 s13, s7, 1")
    k("s_add_u32 s13, s13, s47")
    k("s_mul_i32 s13, s13, 24")
    k("s_lshl_b32 s14, s6, 1")
    k("s_add_u32 s14, s14, s46")
    k("s_lshl_b32 s14, s14, 1")
    k("s_add_u32 s13, s13, s14")
    k("s_lshl_b32 s13, s13, 10")
    k("s_nop 1")
    k.vmem(f"buffer_store_dwordx4 {vr(32)}, v5, s[40:43], s13 offen sc1")
    k.vmem(f"buffer_store_dwordx4 {vr(36)}, v5, s[40:43], s13 offen offset:1024 sc1")

def phase1(k, name):
    k.vm = []; k.lg = []
    HB, XB, SX, YX, ST = 0, 25088, 50176, 66560, 91136
    k.stamp()
    UB = SX
    k.srd(32, 16, 0, X_BYTES)
    if 'winput' in FL:
        k.srd(36, 18, 0, WQKV_BYTES)
    else:
        k.srd(36, 30, 0, 4 * MiB)
    k.srd(40, 30, WS_X1, X_BYTES)
    k.srd(44, 30, WS_H2, X_BYTES)
    k.srd(48, 30, WS_U2, X_BYTES)
    k("v_lshrrev_b32 v4, 3, v1")
    k("s_lshl_b32 s4, s3, 3")
    k("v_add_u32 v4, s4, v4")
    k("v_and_b32 v5, 7, v1")
    k("v_mul_u32_u24 v6, 9363, v4")
    k("v_lshrrev_b32 v6, 16, v6")
    k("v_mul_u32_u24 v7, 7, v6")
    k("v_sub_u32 v7, v4, v7")
    k("s_lshl_b32 s5, s62, 2")
    k("v_add_u32 v6, s5, v6")
    k("v_mul_u32_u24 v7, 729, v7")
    k("v_add_u32 v7, v7, v6")
    k("v_mul_u32_u24 v7, 768, v7")
    k("v_lshl_add_u32 v7, v5, 4, v7")
    k(f"v_cmp_gt_u32 vcc, {N}, v6")
    k("s_mov_b64 s[12:13], vcc")
    k("v_cmp_gt_u32 vcc, 28, v4")
    k(f"v_mov_b32 v8, {hex(BIG)}")
    k("s_nop 1")
    k("s_and_b64 vcc, vcc, s[12:13]")
    k("s_nop 1")
    k("v_cndmask_b32 v8, v8, v7, vcc")
    XA, HA = 16, 40
    for j in range(6):
        k.vmem(f"buffer_load_dwordx4 {vr(XA+4*j)}, v8, s[32:35], 0 offen offset:{128*j}", tag="x")
    if 'tlb' in FL:
        k.srd(72, 30, 0, 16 * MiB)
        k("v_mov_b32 v15, 0")
        for off in (400 * 1024, 2 * MiB + 400 * 1024, 4 * MiB - 4096, 8 * MiB + 4096, 13 * MiB):
            k(f"s_mov_b32 s7, {off}")
            k.vmem(f"buffer_load_dword a255, v15, s[72:75], s7 offen")
    k(f"v_mul_u32_u24 v9, {PH}, v4")
    k("v_lshl_add_u32 v9, v5, 4, v9")
    R = 60
    k("v_lshlrev_b32 v10, 4, v1")
    k("s_mul_i32 s6, s3, 73728")
    bases = [WS_FQT, WS_FVT, WS_FQS] if 'winput' not in FL else [0, 294912, 589824]
    issued = [0]
    wgate = [0]
    wi = [0]
    def wissue(n=1):
        for _ in range(n):
            i = issued[0]
            if i >= 216 or i >= wi[0] + R or i >= wgate[0]: return
            mi, r = i // 72, i % 72
            s, j = r // 3, r % 3
            off = bases[mi] + (j * 24 + s) * 1024
            k(f"s_add_u32 s7, s6, {off & ~4095}")
            k.vmem(f"buffer_load_dwordx4 {ar((i % R)*4)}, v10, s[36:39], s7 offen offset:{off & 4095}{SC}", tag=f"w{i}")
            issued[0] += 1
    wissue(10)
    k("s_mov_b32 s10, 0x3f803f80")
    k("s_mov_b32 s11, 0xffff0000")
    for i in range(4): k(f"v_mov_b32 v{64+i}, 0")
    k.vmwait("x")
    k.stamp()
    for i in range(24):
        k(f"v_dot2_f32_bf16 v{64+(i&1)}, v{XA+i}, s10, v{64+(i&1)}")
        k(f"v_dot2_f32_bf16 v{66+(i&1)}, v{XA+i}, v{XA+i}, v{66+(i&1)}")
        if i % 2 == 1: wissue(1)
    for j in range(6):
        k.ds(f"ds_write_b128 v9, {vr(XA+4*j)} offset:{XB+128*j}")
    k("v_add_f32 v64, v64, v65")
    k("v_add_f32 v66, v66, v67")
    def red8(rs):
        for ctl in ("quad_perm:[1,0,3,2]", "quad_perm:[2,3,0,1]", "row_half_mirror"):
            k("s_nop 1")
            for r in rs:
                k(f"v_add_f32_dpp v{r}, v{r}, v{r} {ctl} row_mask:0xf bank_mask:0xf")
    red8([64, 66])
    ln_stats(k, 64, 66, 68, 69, 70)
    k("v_mul_f32 v68, v68, v69")
    for i in range(24):
        k(f"v_lshlrev_b32 v72, 16, v{XA+i}")
        k(f"v_and_b32 v73, s11, v{XA+i}")
        k(f"v_fma_f32 v72, v72, v69, -v68")
        k(f"v_fma_f32 v73, v73, v69, -v68")
        k(f"v_cvt_pk_bf16_f32 v{HA+i}, v72, v73")
        wissue(1)
    for j in range(6):
        k.ds(f"ds_write_b128 v9, {vr(HA+4*j)} offset:{HB+128*j}")
    wissue(8)
    k(f"v_mul_u32_u24 v11, {PH}, v2")
    k("v_lshl_add_u32 v12, v3, 4, v11")
    k("s_mul_i32 s8, s3, 192")
    k("v_lshl_add_u32 v13, v3, 3, v11")
    k("v_add_u32 v13, s8, v13")
    k.lgwait_all()
    k("s_cmp_lg_u32 s3, 0")
    k(f"s_cbranch_scc1 {name}_np0")
    poll(k, f"{name}_p0", 0, 72)
    k.label(f"{name}_np0")
    k("s_barrier")
    k.rt(1)
    k.stamp()
    k.vm = []
    wgate[0] = 144
    wissue(8)
    k("s_lshr_b32 s9, s62, 3")
    k("s_lshl_b32 s9, s9, 2")
    k("s_add_u32 s9, s9, s3")
    k("s_lshl_b32 s52, s9, 10")
    for j in range(7):
        k(f"s_add_u32 s9, s52, {92*1024*j}")
        k(f"s_cmp_ge_u32 s9, {288*1024}")
        k(f"s_cselect_b32 s7, {MiB - 288*1024}, 0")
        k("s_add_u32 s9, s9, s7")
        k.vmem(f"buffer_load_dwordx4 {ar(240+4*(j&3))}, v10, s[36:39], s9 offen sc1")
    wissue(12)
    BR, NBR = 64, 8
    ACC = 96
    PK = 144
    def gemm(baddr, boff, bstride):
        k.lg = []
        def rd(s): k.ds(f"ds_read_b128 {vr(BR+(s%NBR)*4)}, v{baddr} offset:{boff+s*bstride}", tag=f"b{s}")
        for s in range(NBR - 1): rd(s)
        for s in range(24):
            if s + NBR - 1 < 24: rd(s + NBR - 1)
            k.lgwait(f"b{s}")
            for j in range(3):
                i = wi[0]
                if 'now' not in FL: k.vmwait(f"w{i}")
                if 'nomf' not in FL: k(f"{MFMA} {vr(ACC+16*j,16)}, {ar((i%R)*4)}, {vr(BR+(s%NBR)*4)}, {vr(ACC+16*j,16) if s else 0}")
                wi[0] += 1
                if (i & 1) or issued[0] < wi[0] + 40: wissue(1)
        k("s_nop 15")
    k.stamp()
    gemm(12, HB, 32)
    k.stamp()
    k(f"s_and_b32 s9, s2, {NREP-1}")
    k(f"s_mul_i32 s9, s9, {NSH*128}")
    k(f"s_add_u32 s9, s9, {CSZ}")
    k(f"v_and_b32 v63, {NSH-1}, v1")
    k("v_lshlrev_b32 v63, 7, v63")
    k("v_add_u32 v63, s9, v63")
    k.vmem("buffer_load_dword v62, v63, s[80:83], 0 offen sc1", tag="c1")
    for s in range(6):
        k.ds(f"ds_read2_b64 {vr(BR+4*s)}, v13 offset0:{4*s} offset1:{4*s+2}", tag=f"c{s}")
    for e in range(24):
        k(f"v_cvt_pk_bf16_f32 v{PK+e}, v{ACC+2*e}, v{ACC+2*e+1}")
        if e % 8 == 7: wissue(1)
    SA = 168
    k.lgwait_all()
    k("s_nop 1")
    for s in range(6):
        k(f"{MFMA} {vr(SA,16)}, {vr(BR+4*s)}, {vr(PK+4*s)}, {vr(SA,16) if s else 0}")
    k("s_lshl_b32 s9, s3, 12")
    k(f"s_add_u32 s9, s9, {SX}")
    k("v_add_u32 v14, s9, v10")
    k(f"v_add_u32 v15, {SX}, v10")
    k("s_nop 15")
    for e in range(4):
        k.ds(f"ds_write_b128 v14, {vr(SA+4*e)} offset:{1024*e}")
    k.lgwait_all()
    k("s_barrier")
    SS = 184
    for w in range(4):
        for e in range(4):
            k.ds(f"ds_read_b128 {vr(SS+16*w+4*e)}, v15 offset:{4096*w+1024*e}")
    k("v_mul_u32_u24 v4, 9363, v2")
    k("v_lshrrev_b32 v4, 16, v4")
    k("v_mul_u32_u24 v4, 7, v4")
    k("v_lshlrev_b32 v5, 2, v3")
    k("v_sub_u32 v4, v4, v5")
    k("v_mov_b32 v5, 0xff800000")
    k.lgwait_all()
    for r in range(16):
        k(f"v_add_f32 v{SS+r}, v{SS+r}, v{SS+16+r}")
        k(f"v_add_f32 v{SS+32+r}, v{SS+32+r}, v{SS+48+r}")
        if r % 4 == 3: wissue(1)
    for r in range(16):
        k(f"v_add_f32 v{SA+r}, v{SS+r}, v{SS+32+r}")
        if r % 8 == 7: wissue(1)
    k.stamp()
    for r in range(16):
        cr = 8 * (r >> 2) + (r & 3)
        k(f"v_sub_u32 v6, {cr}, v4")
        k("v_cmp_gt_u32 vcc, 7, v6")
        k("s_nop 1")
        k(f"v_cndmask_b32 v{SA+r}, v5, v{SA+r}, vcc")
        if r % 2 == 1: wissue(1)
    k(f"v_max3_f32 v6, v{SA}, v{SA+1}, v{SA+2}")
    for r in range(3, 15, 2):
        k(f"v_max3_f32 v6, v6, v{SA+r}, v{SA+r+1}")
    k(f"v_max_f32 v6, v6, v{SA+15}")
    xhalf(k, "v_max_f32", 6, 7)
    k("v_max_f32 v6, 0xff7fffff, v6")
    for r in range(16):
        k(f"v_sub_f32 v{SA+r}, v{SA+r}, v6")
        if r % 8 == 7: wissue(1)
    for r in range(16):
        k(f"v_exp_f32 v{SA+r}, v{SA+r}")
        if r % 4 == 3: wissue(1)
    k("s_nop 0")
    k(f"v_add_f32 v6, v{SA}, v{SA+1}")
    for r in range(2, 16):
        k(f"v_add_f32 v6, v6, v{SA+r}")
        if r % 8 == 7: wissue(1)
    xhalf(k, "v_add_f32", 6, 7)
    k("v_rcp_f32 v6, v6")
    k("s_nop 0")
    PF = 248
    for r in range(16):
        k(f"v_mul_f32 v{SA+r}, v{SA+r}, v6")
        if r % 8 == 7: wissue(1)
    for p in range(8):
        k(f"v_cvt_pk_bf16_f32 v{PF+p}, v{SA+2*p}, v{SA+2*p+1}")
    wissue(2)
    k("v_and_b32 v4, 15, v1")
    k("v_lshrrev_b32 v5, 2, v4")
    k("v_and_b32 v4, 3, v4")
    k("v_lshl_add_u32 v5, v3, 2, v5")
    k(f"v_mul_u32_u24 v5, {PH}, v5")
    k("v_lshl_add_u32 v5, v4, 3, v5")
    k("v_bfe_u32 v4, v1, 4, 1")
    k("v_lshl_add_u32 v5, v4, 5, v5")
    k("v_add_u32 v5, s8, v5")
    for j in range(3):
        for sp in range(2):
            for q in range(2):
                b = BR + (j * 2 + sp) * 4 + 2 * q
                k.ds(f"ds_read_b64_tr_b16 v[{b}:{b+1}], v5 offset:{HB+(16*sp+8*q)*PH+64*j}")
    k.lgwait_all()
    for j in range(3):
        for sp in range(2):
            k(f"{MFMA} {vr(ACC+16*j,16)}, {vr(BR+(j*2+sp)*4)}, {vr(PF+4*sp)}, {vr(ACC+16*j,16) if sp else 0}")
    k("s_mul_i32 s9, s3, 6144")
    k(f"s_add_u32 s9, s9, {YX}")
    k("v_add_u32 v14, s9, v10")
    k(f"v_add_u32 v15, {YX}, v10")
    k("s_nop 15")
    for e in range(24):
        k(f"v_cvt_pk_bf16_f32 v{PK+e}, v{ACC+2*e}, v{ACC+2*e+1}")
        if e % 6 == 5: wissue(1)
    for s in range(6):
        k.ds(f"ds_write_b128 v14, {vr(PK+4*s)} offset:{1024*s}")
    wissue(6)
    k.lgwait_all()
    k("s_barrier")
    k.vmwait("c1")
    k("v_readlane_b32 s9, v62, 0")
    for i in range(1, NSH):
        k(f"v_readlane_b32 s7, v62, {i}")
        k("s_nop 3")
        k("s_add_u32 s9, s9, s7")
    k("s_cmp_ge_u32 s9, 72")
    k(f"s_cbranch_scc1 {name}_c1ok")
    poll(k, f"{name}_p1", 1, 72)
    k.label(f"{name}_c1ok")
    k.stamp()
    gemm(15, 0, 1024)
    k.stamp()
    XR = 184
    for jq in range(12):
        j, q = jq // 4, jq % 4
        k.ds(f"ds_read_b64 v[{XR+2*jq}:{XR+2*jq+1}], v13 offset:{XB+64*j+16*q}")
    k("v_mov_b32 v6, 0"); k("v_mov_b32 v7, 0")
    k.lgwait_all()
    for jq in range(12):
        for e in range(2):
            a = ACC + jq * 4 + 2 * e
            x = XR + jq * 2 + e
            k(f"v_lshlrev_b32 v65, 16, v{x}")
            k(f"v_and_b32 v66, s11, v{x}")
            k(f"v_add_f32 v{a}, v{a}, v65")
            k(f"v_add_f32 v{a+1}, v{a+1}, v66")
            k(f"v_cvt_pk_bf16_f32 v{x}, v{a}, v{a+1}")
            k(f"v_dot2_f32_bf16 v6, v{x}, s10, v6")
            k(f"v_dot2_f32_bf16 v7, v{x}, v{x}, v7")
        wissue(1)
    for jq in range(12):
        j, q = jq // 4, jq % 4
        k.ds(f"ds_write_b64 v13, v[{XR+2*jq}:{XR+2*jq+1}] offset:{XB+64*j+16*q}")
    k("s_nop 2")
    xhalf(k, "v_add_f32", 6, 64)
    xhalf(k, "v_add_f32", 7, 64)
    k("v_lshlrev_b32 v4, 3, v2")
    k(f"v_add_u32 v4, {ST}, v4")
    k("s_lshl_b32 s9, s3, 8")
    k("v_add_u32 v5, s9, v4")
    k.ds("ds_write_b64 v5, v[6:7]")
    k.lgwait_all()
    k("s_barrier")
    for w in range(4):
        k.ds(f"ds_read_b64 v[{64+2*w}:{65+2*w}], v4 offset:{256*w}", tag="st")
    for j in range(6):
        k.ds(f"ds_read_b128 {vr(XA+4*j)}, v9 offset:{XB+128*j}", tag="x1r")
    k.lgwait("st")
    k("v_add_f32 v64, v64, v66"); k("v_add_f32 v65, v65, v67")
    k("v_add_f32 v68, v68, v70"); k("v_add_f32 v69, v69, v71")
    k("v_add_f32 v64, v64, v68"); k("v_add_f32 v65, v65, v69")
    ln_stats(k, 64, 65, 66, 67, 68)
    k("v_mul_f32 v66, v66, v67")
    k.lgwait("x1r")
    for j in range(6):
        k.vmem(f"buffer_store_dwordx4 {vr(XA+4*j)}, v8, s[40:43], 0 offen offset:{128*j} sc1")
    for e in range(24):
        x = XR + e
        k(f"v_lshlrev_b32 v72, 16, v{x}")
        k(f"v_and_b32 v73, s11, v{x}")
        k(f"v_fma_f32 v72, v72, v67, -v66")
        k(f"v_fma_f32 v73, v73, v67, -v66")
        k(f"v_cvt_pk_bf16_f32 v{PK+e}, v72, v73")
        if e % 2 == 1: wissue(1)
    for jq in range(12):
        j, q = jq // 4, jq % 4
        k.ds(f"ds_write_b64 v13, v[{PK+2*jq}:{PK+2*jq+1}] offset:{HB+64*j+16*q}")
    wissue(8)
    k.lgwait_all()
    k("s_barrier")
    for j in range(6):
        k.ds(f"ds_read_b128 {vr(HA+4*j)}, v9 offset:{HB+128*j}")
    k.lgwait_all()
    for j in range(6):
        k.vmem(f"buffer_store_dwordx4 {vr(HA+4*j)}, v8, s[44:47], 0 offen offset:{128*j} sc1")

def phase2(k, name):
    k.vm = []; k.lg = []
    k(f"s_mul_hi_u32 s4, s6, {((1<<32)+22)//23}")
    k("s_mul_i32 s5, s4, 23")
    k("s_sub_u32 s5, s6, s5")
    k(f"s_mul_i32 s6, s4, {FR_BYTES}")
    k(f"s_add_u32 s7, s6, {WS_H2}")
    k.srd_s(32, 30, 7, FR_BYTES)
    k.srd(36, 30, WS_FQS, WO_BYTES)
    k(f"s_add_u32 s7, s6, {WS_X1}")
    k.srd_s(40, 30, 7, FR_BYTES)
    k.srd_s(44, 26, 6, FR_BYTES)
    k.srd(48, 30, WS_FVS, WO_BYTES)
    HS = 12288
    k.stamp()
    WR = 3 * HS
    for b in range(3):
        k(f"v_add_u32 v7, {64*b}, v1")
        k("v_mul_u32_u24 v8, 1366, v7")
        k("v_lshrrev_b32 v8, 16, v8")
        k("v_mul_u32_u24 v9, 48, v8")
        k("v_sub_u32 v9, v7, v9")
        k("v_lshlrev_b32 v10, 2, v8")
        k("v_xor_b32 v9, v9, v10")
        k("v_mul_u32_u24 v8, 768, v8")
        k(f"v_lshl_add_u32 v{4+b}, v9, 4, v8")
    k(f"s_mul_i32 s8, s3, {WR}")
    tmpi = [0]
    def dma_one(srd, srow, ldsbase_s, ldsoff, tag, i):
        a, b = i // 3, i % 3
        if a:
            t = 7 + (tmpi[0] & 1); tmpi[0] += 1
            k(f"v_xor_b32 v{t}, {16*a}, v{4+b}")
        else:
            t = 4 + b
        k(f"s_add_u32 m0, s{ldsbase_s}, {ldsoff + i*1024}")
        k(f"s_add_u32 s10, s{srow}, {a*3072}")
        k.vmem(f"buffer_load_dwordx4 v{t}, s[{srd}:{srd+3}], s10 offen{SC} lds", tag=tag)
    def dma_half(srd, srow, ldsbase_s, ldsoff, tag):
        for i in range(12): dma_one(srd, srow, ldsbase_s, ldsoff, tag, i)
    k("s_lshl_b32 s11, s5, 5")
    k("s_mul_i32 s11, s11, 768")
    k("s_lshl_b32 s14, s3, 5")
    k("s_mul_i32 s14, s14, 768")
    k("s_mul_hi_u32 s15, s5, 0x2AAAAAAB")
    k("s_mul_i32 s15, s15, 6")
    k("s_sub_u32 s15, s5, s15")
    def hload_one(hf, i):
        if i == 0:
            d = 56 + (hf & 1)
            k(f"s_add_u32 s{d}, s15, {hf // 2}")
            k(f"s_cmp_ge_u32 s{d}, 6")
            k(f"s_cselect_b32 s12, 6, 0")
            k(f"s_sub_u32 s{d}, s{d}, s12")
            k(f"s_mul_i32 s{d}, s{d}, {128*768}")
            k(f"s_add_u32 s{d}, s{d}, s14")
            if hf & 1: k(f"s_add_u32 s{d}, s{d}, {16*768}")
        dma_one(32, 56 + (hf & 1), 8, (hf % 3) * HS, f"h{hf}", i)
    def hload(hf):
        for i in range(12): hload_one(hf, i)
    k("v_and_b32 v28, 15, v2")
    k("v_and_b32 v29, 3, v28")
    k("v_lshlrev_b32 v29, 2, v29")
    k("v_lshrrev_b32 v30, 2, v28")
    k("v_or_b32 v29, v29, v30")
    k("v_mul_u32_u24 v28, 768, v28")
    for bi in range(8):
        k(f"v_add_u32 v30, {2*bi}, v3")
        k("v_xor_b32 v30, v30, v29")
        k(f"v_lshl_add_u32 v{9+bi}, v30, 4, v28")
    k("v_lshrrev_b32 v30, 4, v2")
    k(f"v_mul_u32_u24 v31, {WR}, v30")
    k(f"v_add_u32 v31, {2*HS}, v31")
    for bi in range(8):
        k(f"v_add_u32 v{56+bi}, v{9+bi}, v31")
    k(f"v_mul_u32_u24 v31, {HS}, v30")
    k("v_add_u32 v31, s8, v31")
    for bi in range(8):
        k(f"v_add_u32 v{9+bi}, v{9+bi}, v31")
    k("v_cmp_eq_u32 vcc, 0, v30")
    k(f"v_mov_b32 v31, {2*HS}")
    k(f"v_mov_b32 v28, {(-HS) & 0xffffffff}")
    k("s_nop 0")
    k("v_cndmask_b32 v17, v28, v31, vcc")
    k("v_cndmask_b32 v18, v31, v28, vcc")
    k("v_mov_b32 v19, v28")
    k("v_and_b32 v28, 15, v1")
    k("v_lshrrev_b32 v29, 2, v28")
    k("v_and_b32 v28, 3, v28")
    k("v_bfe_u32 v30, v1, 4, 1")
    k("v_lshlrev_b32 v30, 1, v30")
    k("v_lshrrev_b32 v31, 1, v28")
    k("v_add_u32 v30, v30, v31")
    k("v_and_b32 v28, 1, v28")
    k("v_lshlrev_b32 v28, 3, v28")
    k("v_add_u32 v28, s8, v28")
    for q in range(2):
        k(f"v_lshl_add_u32 v31, v3, 2, v29")
        if q: k("v_add_u32 v31, 8, v31")
        k("v_mul_u32_u24 v31, 768, v31")
        k("v_add_u32 v31, v31, v28")
        k(f"v_add_u32 v32, {2*q}, v3")
        k("v_and_b32 v32, 3, v32")
        k("v_lshl_or_b32 v32, v29, 2, v32")
        for c in range(4):
            k(f"s_add_u32 s12, s3, {c}")
            k("s_and_b32 s12, s12, 3")
            k("s_lshl_b32 s12, s12, 2")
            k("v_add_u32 v33, s12, v30")
            k("v_xor_b32 v33, v33, v32")
            k(f"v_lshl_add_u32 v{20+q*4+c}, v33, 4, v31")
    k("v_lshlrev_b32 v34, 4, v1")
    k("s_mul_i32 s58, s3, 73728")
    RQ = 60
    qi = [0]; qc = [0]
    def qslot(i): return (i % RQ) * 4
    def qissue(n=1):
        for _ in range(n):
            i = qi[0]
            if i >= 72 or i >= qc[0] + RQ: return
            s_, j = i // 3, i % 3
            off = (j * 24 + s_) * 1024
            k(f"s_add_u32 s59, s58, {off & ~4095}")
            k.vmem(f"buffer_load_dwordx4 {ar(qslot(i))}, v34, s[36:39], s59 offen offset:{off & 4095}{SC}", tag=f"q{i}")
            qi[0] += 1
    k("s_cmp_eq_u32 s3, 0")
    k(f"s_cbranch_scc1 {name}_w0")
    qissue(RQ)
    k.vm = []; qi[0] = 0
    k(f"s_branch {name}_np2")
    k.label(f"{name}_w0")
    poll(k, f"{name}_p2", 2, 183)
    k.label(f"{name}_np2")
    k("s_barrier")
    k.rt(4)
    k.stamp()
    k("s_add_u32 s13, s11, {}".format(16*768))
    k("s_mov_b32 s12, 0")
    k(f"s_mov_b32 s9, {WR}")
    k("s_cmp_lg_u32 s3, 0")
    k(f"s_cbranch_scc1 {name}_qa")
    qissue(RQ)
    vm_q = list(k.vm)
    k(f"s_branch {name}_qd")
    k.label(f"{name}_qa")
    for w_ in range(1, 4):
        if w_ < 3:
            k(f"s_cmp_lg_u32 s3, {w_}")
            k(f"s_cbranch_scc1 {name}_qn{w_}")
        k.vm = list(vm_q)
        for p_ in range(8 * (w_ - 1), 8 * w_):
            hh, i = p_ // 12, p_ % 12
            dma_one(32, 13 if hh else 11, 9 if hh else 12, 2 * HS, "u", i)
        if w_ < 3:
            k(f"s_branch {name}_qd")
            k.label(f"{name}_qn{w_}")
    k.label(f"{name}_qd")
    hload(0); hload(1)
    k.vmwait("u")
    k("s_barrier")
    k.stamp()
    QA, QB, NQB = 64, 112, 8
    k.lg = []
    def qrd(s_): k.ds(f"ds_read_b128 {vr(QB+(s_%NQB)*4)}, v{56+(s_%8)} offset:{(s_//8)*256}", tag=f"b{s_}")
    for s_ in range(NQB - 1): qrd(s_)
    for s_ in range(24):
        if s_ + NQB - 1 < 24: qrd(s_ + NQB - 1)
        k.lgwait(f"b{s_}")
        for j in range(3):
            i = qc[0]
            k.vmwait(f"q{i}")
            k(f"{MFMA} {vr(QA+16*j,16)}, {ar(qslot(i))}, {vr(QB+(s_%NQB)*4)}, {vr(QA+16*j,16) if s_ else 0}")
            qc[0] += 1
            qissue(1)
    k("s_nop 15")
    for e in range(24):
        k(f"v_cvt_pk_bf16_f32 v{QB+e}, v{QA+2*e}, v{QA+2*e+1}")
    k("s_nop 1")
    for f_ in range(6):
        k(f"v_permlane32_swap_b32 v{QB+4*f_}, v{QB+4*f_+2}")
        k(f"v_permlane32_swap_b32 v{QB+4*f_+1}, v{QB+4*f_+3}")
    k("s_lshr_b32 s12, s3, 1")
    k(f"s_mul_i32 s12, s12, {WR}")
    k("s_and_b32 s9, s3, 1")
    k("s_mul_i32 s9, s9, 6144")
    k("s_add_u32 s12, s12, s9")
    k(f"s_add_u32 s12, s12, {2*WR + 2*HS}")
    k("v_add_u32 v35, s12, v34")
    k("s_nop 1")
    for f_ in range(6):
        k.ds(f"ds_write_b128 v35, {vr(QB+4*f_)} offset:{1024*f_}")
    k(f"v_add_u32 v35, {2*WR + 2*HS}, v34")
    k(f"v_add_u32 v36, {3*WR + 2*HS}, v34")
    k.lgwait_all()
    k("s_barrier")
    UF = 0
    for s_ in range(24):
        k.ds(f"ds_read_b128 {ar(UF+4*s_)}, v{35 + s_//12} offset:{(s_%12)*1024}")
    k.lgwait_all()
    k("s_barrier")
    k.stamp()
    vm_keep = [t for t in k.vm]
    HT = 96
    KR, NKR = 192, 8
    SA, PF = 32, 48
    OA = 64
    M_, L_ = 28, 29
    THR = 8.0
    wslot = [224 + 4 * i for i in range(8)] + [4 * i for i in range(24)] + [96 + 4 * i for i in range(24)]
    RW = len(wslot)
    k("v_lshlrev_b32 v63, 4, v1")
    k("s_mul_i32 s58, s3, 73728")
    wiss = [0]; wcons = [0]; wlim = [8]
    def wissue(n=1):
        for _ in range(n):
            i = wiss[0]
            if i >= 72: return
            if i < RW:
                if i >= wlim[0]: return
            elif i >= wcons[0] + RW: return
            s, j = i // 3, i % 3
            off = (j * 24 + s) * 1024
            k(f"s_add_u32 s59, s58, {off & ~4095}")
            k.vmem(f"buffer_load_dwordx4 {ar(wslot[i%RW])}, v63, s[48:51], s59 offen offset:{off & 4095}{SC}", tag=f"w{i}")
            wiss[0] += 1
    for tau in range(6):
        hB = 2 * tau + 1
        FINE = 'fine' in FL and tau in (2, 3, 4)
        if 'fine' in FL: k.off = not FINE
        if FINE: k.stamp()
        if tau == 0:
            k.vmwait(f"h{hB}")
        if ('coarse' not in FL or tau in (0, 3)) and ('fine' not in FL or FINE): k.stamp()
        if tau == 0: k.lg = []
        trl = []
        for sp in range(2):
            slot = ((2 * tau + sp) % 3) * HS
            for ct in range(12):
                for q in range(2):
                    d = HT + (ct * 2 + sp) * 4 + 2 * q
                    trl.append(f"ds_read_b64_tr_b16 a[{d}:{d+1}], v{20+q*4+(ct%4)} offset:{slot+(ct//4)*256}")
        def krd(s): k.ds(f"ds_read_b128 {ar(KR+(s%NKR)*4)}, v{9+(s%8)} offset:{(s//8)*256}", tag=f"k{s}")
        PRE = int(os.environ.get("PRE", "5"))
        if tau == 0:
            for s in range(PRE): krd(s)
        hr = 2 * tau + 2
        for s in range(24):
            if s + PRE < 24: krd(s + PRE)
            if s >= 2:
                for _ in range(2 if s < 23 else 4):
                    if trl: k.ds(trl.pop(0))
            k.lgwait(f"k{s}")
            k(f"{MFMA} {vr(SA,16)}, {ar(KR+(s%NKR)*4)}, {ar(UF+4*s)}, {vr(SA,16) if s else 0}")
            if hr < 12 and s % 2 == 1: hload_one(hr, s // 2)
            elif hr >= 12 and s % 3 == 2: wissue(1)
        while trl: k.ds(trl.pop(0))
        if FINE: k.stamp()
        if tau < 5:
            for bi in range(8):
                k(f"v_add_u32 v{9+bi}, v{9+bi}, v{17+(tau%3)}")
        else:
            k("s_nop 7")
        k.lgwait_all()
        if 'coarse' not in FL and ('fine' not in FL or FINE): k.stamp()
        hu = 2 * tau + 3
        ui = [0]
        def urgent(n=1):
            for _ in range(n):
                if hu < 12:
                    if ui[0] < 12:
                        hload_one(hu, ui[0]); ui[0] += 1
                else:
                    wissue(1)
        if tau == 5: wlim[0] = 32
        urgent(2)
        if True:
            k(f"s_add_u32 s60, s15, {tau}")
            k("s_cmp_eq_u32 s60, 5")
            k("s_cselect_b32 s12, 1, 0")
            k("s_cmp_eq_u32 s60, 11")
            k("s_cselect_b32 s12, 1, s12")
            k("s_cmp_lg_u32 s12, 0")
            k(f"s_cbranch_scc1 {name}_mask{tau}")
            k.label(f"{name}_nomask{tau}")
            k.ool_begin()
            k.label(f"{name}_mask{tau}")
            k("s_lshl_b32 s60, s3, 5")
            k(f"s_sub_u32 s60, {N - 640}, s60")
            k("v_lshlrev_b32 v30, 2, v3")
            k("v_mov_b32 v31, 0xff800000")
            for r in range(16):
                cr = 8 * (r >> 2) + (r & 3)
                k(f"v_add_u32 v56, {cr}, v30")
                k("v_cmp_gt_i32 vcc, s60, v56")
                k("s_nop 1")
                k(f"v_cndmask_b32 v{SA+r}, v31, v{SA+r}, vcc")
            k(f"s_branch {name}_nomask{tau}")
            k.ool_end()
        k(f"v_max3_f32 v30, v{SA}, v{SA+1}, v{SA+2}")
        for r in range(3, 15, 2):
            k(f"v_max3_f32 v30, v30, v{SA+r}, v{SA+r+1}")
        k(f"v_max_f32 v30, v30, v{SA+15}")
        xhalf(k, "v_max_f32", 30, 31)
        urgent(1)
        if tau == 0:
            k(f"v_max_f32 v{M_}, 0xf149f2ca, v30")
            k(f"v_mov_b32 v{L_}, 0")
        else:
            k(f"v_add_f32 v31, {hex(f2u(THR))}, v{M_}")
            k("v_cmp_gt_f32 vcc, v30, v31")
            k(f"s_cbranch_vccnz {name}_rs{tau}")
            k.label(f"{name}_nors{tau}")
            k.ool_begin()
            k.label(f"{name}_rs{tau}")
            k(f"v_max_f32 v30, v30, v{M_}")
            k(f"v_sub_f32 v31, v{M_}, v30")
            k("v_exp_f32 v31, v31")
            k(f"v_mov_b32 v{M_}, v30")
            k("s_nop 7")
            k(f"v_mul_f32 v{L_}, v{L_}, v31")
            for r in range(192):
                k(f"v_mul_f32 v{OA+r}, v{OA+r}, v31")
            k("s_nop 1")
            k(f"s_branch {name}_nors{tau}")
            k.ool_end()
        for r in range(8):
            k(f"v_sub_f32 v{SA+r}, v{SA+r}, v{M_}")
        for r in range(8):
            k(f"v_exp_f32 v{SA+r}, v{SA+r}")
        urgent(1)
        for p in range(4):
            k(f"v_cvt_pk_bf16_f32 v{PF+p}, v{SA+2*p}, v{SA+2*p+1}")
        k("s_nop 1")
        if FINE: k.stamp()
        fill = [f"v_sub_f32 v{SA+r}, v{SA+r}, v{M_}" for r in range(8, 16)]
        fill += [f"v_exp_f32 v{SA+r}, v{SA+r}" for r in range(8, 16)]
        fill += [f"v_add_f32 v30, v{SA}, v{SA+1}"]
        fill += [f"v_cvt_pk_bf16_f32 v{PF+p}, v{SA+2*p}, v{SA+2*p+1}" for p in range(4, 8)]
        fill += [f"v_add_f32 v31, v{SA+2}, v{SA+3}"]
        for r in range(4, 16, 2):
            fill += [f"v_add_f32 v30, v30, v{SA+r}", f"v_add_f32 v31, v31, v{SA+r+1}"]
        fill += [f"v_add_f32 v{L_}, v{L_}, v30", f"v_add_f32 v{L_}, v{L_}, v31"]
        n = 0
        for sp in range(2):
            for ct in range(12):
                c = vr(OA + 16 * ct, 16) if (tau or sp) else "0"
                k(f"{MFMA} {vr(OA+16*ct,16)}, {ar(HT+(ct*2+sp)*4)}, {vr(PF+4*sp)}, {c}")
                for _ in range(3 if n < 8 else 2):
                    if fill: k(fill.pop(0))
                if n % 2 == 1 or n >= 10: urgent(1)
                n += 1
                if n == 18 and tau < 5:
                    urgent(12)
                    k.vmwait(f"h{2*tau+3}")
                    k.lg = []
                    for s in range(PRE): krd(s)
        assert not fill
        urgent(12)
    wlim[0] = RW
    if 'fine' in FL: k.off = True
    k.stamp()
    xhalf(k, "v_add_f32", L_, 30)
    STB = 147456
    k("v_lshlrev_b32 v30, 3, v2")
    k(f"v_add_u32 v30, {STB}, v30")
    k("s_lshl_b32 s60, s3, 8")
    k("v_add_u32 v31, s60, v30")
    k.ds(f"ds_write_b64 v31, v[{M_}:{L_}]")
    k("v_add_u32 v31, s8, v63")
    k("s_nop 4")
    for cp in range(1, 4):
        for a_ in range(3):
            for e in range(4):
                k.ds(f"ds_write_b128 v31, {vr(OA+16*(4*a_+cp)+4*e)} offset:{(cp-1)*HS+a_*4096+e*1024}")
        wissue(3)
    for cp in range(4):
        k(f"s_sub_u32 s60, s3, {cp}")
        k("s_and_b32 s60, s60, 3")
        k("s_lshl_b32 s12, s60, 8")
        k(f"v_add_u32 v{56+cp}, s12, v30")
        if cp:
            k(f"s_mul_i32 s12, s60, {WR}")
            k(f"s_add_u32 s12, s12, {(cp-1)*HS}")
            k(f"v_add_u32 v{59+cp}, s12, v63")
    k.lgwait_all()
    k("s_barrier")
    for cp in range(4):
        k.ds(f"ds_read_b64 v[{32+2*cp}:{33+2*cp}], v{56+cp}", tag="st")
    for cp in range(1, 4):
        for a_ in range(3):
            for e in range(4):
                k.ds(f"ds_read_b128 {vr(OA+16*(4*a_+cp)+4*e)}, v{59+cp} offset:{a_*4096+e*1024}", tag=f"pr{cp}")
    k.lgwait("st")
    k("v_max3_f32 v40, v32, v34, v36")
    k("v_max_f32 v40, v40, v38")
    for cp in range(4):
        k(f"v_sub_f32 v{32+2*cp}, v{32+2*cp}, v40")
    for cp in range(4):
        k(f"v_exp_f32 v{32+2*cp}, v{32+2*cp}")
    k("s_nop 0")
    k("v_mul_f32 v42, v32, v33")
    k("v_fmac_f32 v42, v34, v35")
    k("v_fmac_f32 v42, v36, v37")
    k("v_fmac_f32 v42, v38, v39")
    k("v_rcp_f32 v42, v42")
    k("s_nop 0")
    for cp in range(4):
        k(f"v_mul_f32 v{44+cp}, v{32+2*cp}, v42")
    for a_ in range(3):
        for r in range(16):
            k(f"v_mul_f32 v{OA+64*a_+r}, v{OA+64*a_+r}, v44")
    wissue(4)
    for cp in range(1, 4):
        k.lgwait(f"pr{cp}")
        for a_ in range(3):
            for r in range(16):
                k(f"v_fmac_f32 v{OA+64*a_+r}, v{OA+16*(4*a_+cp)+r}, v{44+cp}")
        wissue(4)
    for a_ in range(3):
        for e in range(8):
            k(f"v_cvt_pk_bf16_f32 v{32+a_*8+e}, v{OA+64*a_+2*e}, v{OA+64*a_+2*e+1}")
    for a_ in range(3):
        for sp in range(2):
            k.ds(f"ds_write_b128 v60, {vr(32+a_*8+sp*4)} offset:{(a_*2+sp)*1024}")
    for wp in range(4):
        k(f"v_add_u32 v{56+wp}, {((wp-1)&3)*WR}, v63")
    k("v_lshrrev_b32 v4, 3, v1")
    k("s_lshl_b32 s60, s3, 3")
    k("v_add_u32 v4, s60, v4")
    k("v_and_b32 v5, 7, v1")
    k("s_lshl_b32 s60, s5, 5")
    k("v_add_u32 v6, s60, v4")
    k("v_mul_u32_u24 v6, 768, v6")
    k("v_lshl_add_u32 v6, v5, 4, v6")
    XR = 160
    for j in range(6):
        k.vmem(f"buffer_load_dwordx4 {vr(XR+4*j)}, v6, s[40:43], 0 offen offset:{128*j} sc1", tag="xr")
    k.lgwait_all()
    k("s_barrier")
    YA = 96
    BR, NBR = 64, 8
    k.stamp()
    k.lg = []
    def rd(s):
        ct, sp = s // 2, s % 2
        a_, wp = ct // 4, ct % 4
        k.ds(f"ds_read_b128 {vr(BR+(s%NBR)*4)}, v{56+wp} offset:{(a_*2+sp)*1024}", tag=f"b{s}")
    for s in range(NBR - 1): rd(s)
    wi = 0
    for s in range(24):
        if s + NBR - 1 < 24: rd(s + NBR - 1)
        k.lgwait(f"b{s}")
        for j in range(3):
            k.vmwait(f"w{wi}")
            k(f"{MFMA} {vr(YA+16*j,16)}, {ar(wslot[wi%RW])}, {vr(BR+(s%NBR)*4)}, {vr(YA+16*j,16) if s else 0}")
            wi += 1
            wcons[0] = wi
            wissue(1)
    k("s_nop 15")
    k.stamp()
    YB = 8192
    k(f"v_mul_u32_u24 v7, {PH}, v2")
    k("s_mul_i32 s60, s3, 192")
    k(f"s_add_u32 s60, s60, {YB}")
    k("v_lshl_add_u32 v7, v3, 3, v7")
    k("v_add_u32 v7, s60, v7")
    for e in range(24):
        k(f"v_cvt_pk_bf16_f32 v{64+e}, v{YA+2*e}, v{YA+2*e+1}")
    for jq in range(12):
        j, q = jq // 4, jq % 4
        k.ds(f"ds_write_b64 v7, v[{64+2*jq}:{65+2*jq}] offset:{64*j+16*q}")
    k(f"v_mul_u32_u24 v8, {PH}, v4")
    k("v_lshl_add_u32 v8, v5, 4, v8")
    k.lgwait_all()
    k("s_barrier")
    for j in range(6):
        k.ds(f"ds_read_b128 {vr(96+4*j)}, v8 offset:{YB+128*j}")
    k("s_mov_b32 s60, 0xffff0000")
    k.vmwait("xr")
    k.lgwait_all()
    for e in range(24):
        k(f"v_lshlrev_b32 v64, 16, v{96+e}")
        k(f"v_and_b32 v65, s60, v{96+e}")
        k(f"v_lshlrev_b32 v66, 16, v{XR+e}")
        k(f"v_and_b32 v67, s60, v{XR+e}")
        k("v_add_f32 v64, v64, v66")
        k("v_add_f32 v65, v65, v67")
        k(f"v_cvt_pk_bf16_f32 v{128+e}, v64, v65")
    for j in range(6):
        k.vmem(f"buffer_store_dwordx4 {vr(128+4*j)}, v6, s[44:47], 0 offen offset:{128*j}{OUTF}")


NREP = 8
NSH = 8
WS_SYNC = 24 * MiB
CSZ = NREP * NSH * 128
def spin(k, lab, srd, voff_reg, target, nsh):
    k("s_mov_b32 s61, 0")
    k.label(lab)
    k(f"buffer_load_dword v244, v{voff_reg}, s[{srd}:{srd+3}], 0 offen sc1")
    k("s_waitcnt vmcnt(0)")
    if nsh == 1:
        k("v_readfirstlane_b32 s63, v244")
        k("s_nop 3")
    else:
        k("v_readlane_b32 s63, v244, 0")
        for i in range(1, nsh):
            k(f"v_readlane_b32 s52, v244, {i}")
            k("s_nop 3")
            k("s_add_u32 s63, s63, s52")
    k(f"s_cmp_ge_u32 s63, {target}")
    k(f"s_cbranch_scc1 {lab}_done")
    k(f"s_sleep {SLEEP}")
    k("s_add_u32 s61, s61, 1")
    k("s_cmp_lt_u32 s61, 0x200000")
    k(f"s_cbranch_scc1 {lab}")
    k.label(f"{lab}_done")

def zcheck(k, lab):
    k("s_cmp_lg_u32 s53, 0")
    k(f"s_cbranch_scc1 {lab}_skip")
    k("v_mov_b32 v245, 0")
    spin(k, lab, 64, 245, 1, 1)
    k("s_mov_b32 s53, 1")
    k.label(f"{lab}_skip")

def poll(k, lab, cidx, target):
    zcheck(k, lab + "z")
    k(f"s_and_b32 s63, s2, {NREP-1}")
    k(f"s_mul_i32 s63, s63, {NSH*128}")
    k(f"s_add_u32 s63, s63, {cidx*CSZ}")
    k(f"v_and_b32 v245, {NSH-1}, v1")
    k("v_lshlrev_b32 v245, 7, v245")
    k("v_add_u32 v245, s63, v245")
    spin(k, lab, 80, 245, target, NSH)

def signal(k, lab, cidx):
    k("s_waitcnt vmcnt(0)")
    k("s_barrier")
    k("s_cmp_lg_u32 s3, 0")
    k(f"s_cbranch_scc1 {lab}")
    zcheck(k, lab + "z")
    k("v_mov_b32 v244, 1")
    k("s_lshr_b32 s63, s2, 3")
    k(f"s_and_b32 s63, s63, {NSH-1}")
    k("s_lshl_b32 s63, s63, 7")
    if cidx is None:
        k(f"s_mul_i32 s52, s56, {CSZ}")
        k("s_add_u32 s63, s63, s52")
    else:
        k(f"s_add_u32 s63, s63, {cidx*CSZ}")
    k(f"v_mul_u32_u24 v245, {NSH*128}, v1")
    k("v_add_u32 v245, s63, v245")
    k("s_mov_b64 s[68:69], exec")
    k(f"s_mov_b64 exec, {(1<<NREP)-1}")
    k("buffer_atomic_add v244, v245, s[80:83], 0 offen sc1")
    k("s_mov_b64 exec, s[68:69]")
    k.label(lab)

def gen_main():
    k = K(); name = "standalone__video_timesformer__vision_kernel"
    prologue(k, name, 255)
    k.srd(64, 28, 0, 256)
    k.srd(80, 30, WS_SYNC, 3 * CSZ)
    k("s_mov_b32 s53, 0")
    k(f"s_cmp_lg_u32 s2, {ZWG}")
    k("s_cbranch_scc1 L_noz")
    k("s_cmp_lg_u32 s3, 0")
    k("s_cbranch_scc1 L_noz")
    k("v_mov_b32 v244, 0")
    k("v_lshlrev_b32 v245, 7, v1")
    for c in range(3):
        k(f"s_mov_b32 s63, {c*CSZ}")
        k("buffer_store_dword v244, v245, s[80:83], s63 offen sc1")
    k("s_waitcnt vmcnt(0)")
    k("v_mov_b32 v244, 1")
    k("v_mov_b32 v245, 0")
    k("buffer_store_dword v244, v245, s[64:67], 0 offen sc1")
    k("s_mov_b32 s53, 1")
    k.label("L_noz")
    for i in range(8):
        if 'rt' in FL: k(f"s_mov_b32 s{90+i}, 0")
    k.rt(0)
    k("s_cmp_ge_u32 s2, 72")
    k(f"s_cbranch_scc1 L_cons")
    k(f"s_mul_hi_u32 s54, s2, {((1<<32)+35)//36}")
    k("s_mul_i32 s55, s54, 36")
    k("s_sub_u32 s55, s2, s55")
    k("s_mov_b32 s56, 0")
    k.label("LF_loop")
    k("s_mov_b32 s4, s54")
    k("s_mov_b32 s5, s55")
    fold(k, "LF0")
    k.rt0(1)
    signal(k, "LF0_sig", None)
    k.rt0(2)
    k("s_add_u32 s54, s54, 2")
    k("s_add_u32 s56, s56, 1")
    k("s_cmp_lt_u32 s56, 2")
    k("s_cbranch_scc1 LF_loop")
    k.rt(3)
    k("s_cmp_lg_u32 s3, 0")
    k("s_cbranch_scc1 LF_np1")
    poll(k, "LF_p1", 1, 72)
    k.label("LF_np1")
    k("s_barrier")
    k("s_branch L_ph2")
    k.label("L_cons")
    k("s_sub_u32 s62, s2, 72")
    k.ph = 1
    phase1(k, "L1")
    k.stamp()
    k.rt(2)
    signal(k, "L1_sig", 2)
    k.rt(3)
    k.stamp()
    k.label("L_ph2")
    k("s_and_b32 s4, s2, 7")
    k("s_lshr_b32 s5, s2, 3")
    k("s_cmp_eq_u32 s4, 0")
    k("s_cselect_b32 s7, 21, 20")
    k("s_cmp_ge_u32 s5, s7")
    k(f"s_cbranch_scc1 L_fin")
    k("s_mul_i32 s6, s4, 20")
    k("s_min_u32 s7, s4, 1")
    k("s_add_u32 s6, s6, s7")
    k("s_add_u32 s6, s6, s5")
    k.ph = 2
    if 'fine' in FL: k.off = True
    phase2(k, "L2")
    if 'stamp' in FL:
        k.vmwait_all()
        k.stamp()
        k.dump_stamps(100)
    k.rt(5)
    k.label("L_fin")
    k.dump_rt()
    k.label(f"{name}_end")
    k("s_endpgm")
    return k.text()

HEADER = """; TimeSformer divided space-time attention block, gfx950.  Generated by gen3.py (own generator).
; One persistent launch: workgroups 0..71 fold Wq Wk^T / Wv Wo into MFMA fragment order; workgroups 72..254 do
; @launch grid=(255,1,1) block=(256,1,1) lds=148480
.amdgcn_target "amdgcn-amd-amdhsa--gfx950"
.text
"""
def desc(name, vgpr, accum):
    return f""".amdhsa_kernel {name}
  .amdhsa_next_free_vgpr {vgpr}
  .amdhsa_next_free_sgpr 102
  .amdhsa_accum_offset {accum}
  .amdhsa_group_segment_fixed_size 0
  .amdhsa_kernarg_size 64
  .amdhsa_user_sgpr_count 2
  .amdhsa_user_sgpr_kernarg_segment_ptr 1
  .amdhsa_system_sgpr_workgroup_id_x 1
  .amdhsa_float_denorm_mode_32 3
.end_amdhsa_kernel
"""
def main():
    name = "standalone__video_timesformer__vision_kernel"
    out = HEADER + f".globl {name}\n.p2align 8\n.type {name},@function\n" + gen_main()
    out += '.section .rodata,"a"\n.p2align 6\n' + desc(name, 512, 256)
    path = sys.argv[1] if len(sys.argv) > 1 else "standalone__video_timesformer__vision.s"
    open(path, "w").write(out)
    print("wrote", path, len(out))
if __name__ == "__main__":
    main()
```
